```python
import torch

def _softmax(x, axis=-1):
    return torch.softmax(x, dim=axis)
def _gelu(x):
    return torch.nn.functional.gelu(x, approximate="tanh")
def _silu(x):
    return torch.nn.functional.silu(x)
def _sigmoid(x):
    return torch.sigmoid(x)
def _layernorm(x, axis=-1, eps=1e-5):
    m = x.mean(dim=axis, keepdim=True)
    v = x.var(dim=axis, keepdim=True, unbiased=False)
    return (x - m) / torch.sqrt(v + eps)
def _scatter_add(tgt, idx, src, axis=0):
    return tgt.clone().index_add_(axis, idx, src)
def _segment_sum(src, seg, n):
    out = torch.zeros((n,) + src.shape[1:], dtype=src.dtype)
    return out.index_add_(0, seg, src)
def _pad(x, pw):
    flat = tuple(v for pair in reversed(pw) for v in pair)
    return torch.nn.functional.pad(x, flat)

kernel_name = 'concat_heads__mha_block_cached__gqa_block_cached__near_ridge'

def setup_inputs():

    _w = (lambda a: (lambda t: t.to(torch.bfloat16) if t.is_floating_point() else t)(torch.as_tensor(a)))
    def _A_setup():
        B, Sq, D = 16, 64, 576
        H, Sk, Dh = 32, 64, 128
        return {
            "x": _w((lambda *s: torch.randn(*s, dtype=torch.bfloat16) * 0.8)(B, Sq, D)),
            "k_cache": _w((lambda *s: torch.randn(*s, dtype=torch.bfloat16) * 0.8)(B, H, Sk, Dh)),
            "v_cache": _w((lambda *s: torch.randn(*s, dtype=torch.bfloat16) * 0.05)(B, H, Sk, Dh)),
            "wq": _w((lambda *s: torch.randn(*s, dtype=torch.bfloat16) * 0.8)(D, H * Dh) * (D ** -0.5)),
            "wo": _w((lambda *s: torch.randn(*s, dtype=torch.bfloat16) * 0.05)(H * Dh, D) * ((H * Dh) ** -0.5)),
        }
    _A_in = _A_setup()

    def _B_setup():
        B, Sq, D = 16, 64, 576
        Hq, Hkv, Sk, Dh = 32, 32, 64, 128
        assert Hq % Hkv == 0, (Hq, Hkv)
        return {
            "x": _w((lambda *s: torch.randn(*s, dtype=torch.bfloat16) * 0.8)(B, Sq, D)),
            "k_cache": _w((lambda *s: torch.randn(*s, dtype=torch.bfloat16) * 0.8)(B, Hkv, Sk, Dh)),
            "v_cache": _w((lambda *s: torch.randn(*s, dtype=torch.bfloat16) * 0.05)(B, Hkv, Sk, Dh)),
            "wq": _w((lambda *s: torch.randn(*s, dtype=torch.bfloat16) * 0.8)(D, Hq * Dh) * (D ** -0.5)),
            "wo": _w((lambda *s: torch.randn(*s, dtype=torch.bfloat16) * 0.05)(Hq * Dh, D) * ((Hq * Dh) ** -0.5)),
        }
    _B_in = _B_setup()

    return {
        "A_x": _A_in["x"],
        "A_k_cache": _A_in["k_cache"],
        "A_v_cache": _A_in["v_cache"],
        "A_wq": _A_in["wq"],
        "A_wo": _A_in["wo"],
        "B_x": _B_in["x"],
        "B_k_cache": _B_in["k_cache"],
        "B_v_cache": _B_in["v_cache"],
        "B_wq": _B_in["wq"],
        "B_wo": _B_in["wo"],
    }

def reference(A_x, A_k_cache, A_v_cache, A_wq, A_wo, B_x, B_k_cache, B_v_cache, B_wq, B_wo):
    def _A_ref(x, k_cache, v_cache, wq, wo):
        B, Sq, D = x.shape
        H, Dh = 32, 128
        q = (lambda x, *d: x.permute(*d))((x @ wq).reshape(B, Sq, H, Dh), 0, 2, 1, 3)
        scores = torch.einsum("bhqd,bhkd->bhqk", q, k_cache) * (Dh ** -0.5)
        p = _softmax(scores, axis=-1)
        o = torch.einsum("bhqk,bhkd->bhqd", p, v_cache)
        return (lambda x, *d: x.permute(*d))(o, 0, 2, 1, 3).reshape(B, Sq, H * Dh) @ wo

    def _B_ref(x, k_cache, v_cache, wq, wo):
        B, Sq, D = x.shape
        Hq, Dh = 32, 128
        Hkv = k_cache.shape[1]
        rep = Hq // Hkv
        q = (lambda x, *d: x.permute(*d))((x @ wq).reshape(B, Sq, Hq, Dh), 0, 2, 1, 3)
        k = (lambda x, n, axis: torch.repeat_interleave(x, n, dim=axis))(k_cache, rep, axis=1)
        v = (lambda x, n, axis: torch.repeat_interleave(x, n, dim=axis))(v_cache, rep, axis=1)
        scores = torch.einsum("bhqd,bhkd->bhqk", q, k) * (Dh ** -0.5)
        p = _softmax(scores, axis=-1)
        o = torch.einsum("bhqk,bhkd->bhqd", p, v)
        return (lambda x, *d: x.permute(*d))(o, 0, 2, 1, 3).reshape(B, Sq, Hq * Dh) @ wo

    a = _A_ref(A_x, A_k_cache, A_v_cache, A_wq, A_wo)
    b = _B_ref(B_x, B_k_cache, B_v_cache, B_wq, B_wo)
    return torch.concatenate([a, b], axis=-1)
```

```python
import sys, math

NAME = "concat_heads__mha_block_cached__gqa_block_cached__near_ridge"

class Opt:
    kv_nt = True
    w_nt = False
    x_nt = False
    part_flags = ""
    stamps = False
    pf_v = True
    pf_wo = True
    prio_load = 1
opt = Opt()

class Asm:
    def __init__(self):
        self.l = []
    def __call__(self, s):
        for x in s.strip("\n").split("\n"):
            self.l.append("    " + x.strip() if not x.strip().endswith(":") else x.strip())
    def c(self, s):
        self.l.append("    ; " + s)
    def text(self):
        return "\n".join(self.l) + "\n"

def vr(a, n=1):
    return f"v{a}" if n == 1 else f"v[{a}:{a+n-1}]"
def sr(a, n=1):
    return f"s{a}" if n == 1 else f"s[{a}:{a+n-1}]"

KBASE = 65536
XBASE = 90112
VBASE01 = 131072
WO_RING = 32768
LDS_BYTES = 163840

S_WAVE, S_BR, S_B, S_HG, S_ROT, S_G = 3, 30, 31, 48, 49, 50
S_X, S_K, S_V, S_WQ, S_WO, S_OUT, S_DBG, S_WS = 4, 6, 8, 10, 12, 24, 26, 28

STAMP_OFF = 32 << 20

def stamp(a, idx):
    if opt.stamps:
        a(f"s_memrealtime s[{64+2*idx}:{65+2*idx}]")

def stamp_flush(a, n):
    if not opt.stamps:
        return
    a(f"""
    s_waitcnt lgkmcnt(0)
    s_lshl_b32 s60, s2, 3
    s_add_u32 s60, s60, s{S_WAVE}
    s_lshl_b32 s60, s60, 7
    s_add_u32 s60, s60, {STAMP_OFF}
    s_add_u32 s56, s{S_WS}, s60
    s_addc_u32 s57, s{S_WS+1}, 0
    s_mov_b32 s58, 128
    s_mov_b32 s59, 0x20000
    v_mov_b32 v250, 0
    """)
    for i in range(n):
        a(f"v_mov_b32 v252, s{64+2*i}")
        a(f"v_mov_b32 v253, s{65+2*i}")
        a(f"buffer_store_dwordx2 v[252:253], v250, s[56:59], 0 offen offset:{8*i}")
        a("s_waitcnt vmcnt(0)")

def srd(a, d, base, off_expr_sreg, size):
    a(f"s_add_u32 s{d}, s{base}, s{off_expr_sreg}")
    a(f"s_addc_u32 s{d+1}, s{base+1}, 0")
    a(f"s_mov_b32 s{d+2}, {size}")
    a(f"s_mov_b32 s{d+3}, 0x20000")

class VM:
    def __init__(self, a):
        self.a = a; self.ops = []
    def issue(self, tag, n=1):
        self.ops += [tag] * n
    def wait(self, tag):
        last = max(i for i, t in enumerate(self.ops) if t == tag)
        n = len(self.ops) - 1 - last
        assert n <= 63, n
        self.a(f"s_waitcnt vmcnt({n})")

def prologue(a):
    a(f"""
    s_cmp_ge_u32 s2, 256
    s_cbranch_scc1 L_end
    s_load_dwordx16 s[4:19], s[0:1], 0
    s_load_dwordx8 s[20:27], s[0:1], 64
    s_load_dwordx2 s[28:29], s[0:1], 96
    v_lshrrev_b32 v1, 6, v0
    v_and_b32 v0, 63, v0
    v_readfirstlane_b32 s{S_WAVE}, v1
    s_and_b32 s51, s2, 7
    s_lshr_b32 s52, s2, 3
    s_lshr_b32 s{S_BR}, s51, 2
    s_and_b32 s51, s51, 3
    s_lshr_b32 s{S_B}, s52, 1
    s_and_b32 s52, s52, 1
    s_lshl_b32 s51, s51, 1
    s_add_u32 s{S_HG}, s51, s52
    s_mul_i32 s{S_ROT}, s{S_B}, 9
    s_lshr_b32 s{S_ROT}, s{S_ROT}, 4
    s_lshl_b32 s{S_G}, s{S_BR}, 4
    s_add_u32 s{S_G}, s{S_G}, s{S_B}
    """)
    stamp(a, 0)
    a(f"""
    s_cmp_eq_u32 s{S_BR}, 0
    s_waitcnt lgkmcnt(0)
    s_cselect_b64 s[4:5], s[4:5], s[14:15]
    s_cselect_b64 s[6:7], s[6:7], s[16:17]
    s_cselect_b64 s[8:9], s[8:9], s[18:19]
    s_cselect_b64 s[10:11], s[10:11], s[20:21]
    s_cselect_b64 s[12:13], s[12:13], s[22:23]
    s_cmp_ge_u32 s{S_WAVE}, 6
    s_cbranch_scc1 L_kvload
    s_cmp_ge_u32 s{S_WAVE}, 4
    s_cbranch_scc1 L_wload
    """)

def dma4(a, vbase, srdr, soff, flags, same_v=False):
    for m in range(4):
        v = vbase if same_v else vbase + m
        a(f"buffer_load_dwordx4 v{v}, s[{srdr}:{srdr+3}], s{soff} offen offset:{m*1024}{flags} lds")

def wload(a):
    fl = " nt" if opt.w_nt else ""
    a("L_wload:")
    if opt.prio_load: a(f"s_setprio {opt.prio_load}")
    a(f"""
    s_sub_u32 s51, s{S_WAVE}, 4
    s_lshl_b32 s52, s{S_HG}, 10
    s_mov_b32 s53, {576*8192}
    s_sub_u32 s53, s53, s52
    s_add_u32 s32, s{S_WQ}, s52
    s_addc_u32 s33, s{S_WQ+1}, 0
    s_mov_b32 s34, s53
    s_mov_b32 s35, 0x20000
    s_lshl_b32 s41, s51, 13
    s_lshl_b32 s40, s{S_ROT}, 19
    s_lshl_b32 s52, s51, 16
    s_add_u32 s40, s40, s52
    """)
    for m in range(4):
        a(f"v_xor_b32 v{1+m}, {4*m}, v0")
        a(f"v_lshlrev_b32 v{1+m}, 4, v{1+m}")
        if m: a(f"v_add_u32 v{1+m}, {m*(8192-1024)}, v{1+m}")
    def wq_stage(slot, wrap):
        a(f"s_add_u32 m0, s41, {slot*16384}")
        a(f"s_add_u32 s42, s40, 32768")
        dma4(a, 1, 32, 40, fl)
        a(f"s_add_u32 m0, s41, {slot*16384+4096}")
        a(f"s_add_u32 s40, s40, {16*8192}")
        dma4(a, 1, 32, 42, fl)
        if wrap:
            a(f"s_cmp_ge_u32 s40, {576*8192}")
            a(f"s_cselect_b32 s42, {576*8192}, 0")
            a(f"s_sub_u32 s40, s40, s42")
    for s in range(4):
        wq_stage(s, s == 3)
    a(f"""
    s_mul_i32 s52, s{S_HG}, {512*1152}
    """)
    srd(a, 36, S_WO, 52, 512*1152)
    a(f"""
    v_lshrrev_b32 v9, 3, v0
    v_mul_u32_u24 v9, 1152, v9
    v_bfe_u32 v10, v0, 4, 1
    v_lshlrev_b32 v10, 2, v10
    v_and_b32 v11, 7, v0
    v_xor_b32 v10, v10, v11
    v_lshl_add_u32 v5, v10, 4, v9
    v_add_u32 v6, 8192, v5
    v_add_u32 v7, 16384, v5
    v_add_u32 v8, 24576, v5
    s_mul_i32 s43, s51, {64*1152}
    s_lshl_b32 s52, s{S_ROT}, 7
    s_add_u32 s43, s43, s52
    s_mov_b32 s45, s{S_ROT}
    s_mov_b32 s46, 0
    s_add_u32 s44, s41, {WO_RING}
    s_add_u32 s47, s41, {WO_RING+6*16384}
    s_waitcnt vmcnt(24)
    s_barrier
    s_waitcnt vmcnt(16)
    s_barrier
    s_mov_b32 s54, 8
    L_wq_loop:
    """)
    for s in range(4):
        wq_stage(s, s == 3)
        a("s_waitcnt vmcnt(16)")
        a("s_barrier")
    a("""
    s_sub_u32 s54, s54, 1
    s_cmp_lg_u32 s54, 0
    s_cbranch_scc1 L_wq_loop
    """)
    a("s_waitcnt vmcnt(8)\ns_barrier")
    a("s_waitcnt vmcnt(0)\ns_barrier")
    def wo_stage():
        a(f"""
        s_mov_b32 m0, s44
        s_add_u32 s42, s43, {32*1152}
        """)
        dma4(a, 5, 36, 43, fl)
        a(f"""
        s_add_u32 m0, s44, 4096
        s_add_u32 s44, s44, 16384
        """)
        dma4(a, 5, 36, 42, fl)
        a(f"""
        s_cmp_eq_u32 s44, s47
        s_cselect_b32 s42, {6*16384}, 0
        s_sub_u32 s44, s44, s42
        s_add_u32 s43, s43, {128*1152}
        s_add_u32 s46, s46, 1
        s_cmp_eq_u32 s46, 4
        s_cselect_b32 s42, {512*1152-128}, 0
        s_cselect_b32 s46, 0, s46
        s_cselect_b32 s55, 1, 0
        s_sub_u32 s43, s43, s42
        s_add_u32 s45, s45, s55
        s_cmp_eq_u32 s45, 9
        s_cselect_b32 s42, 1152, 0
        s_cselect_b32 s45, 0, s45
        s_sub_u32 s43, s43, s42
        """)
    wo_stage()
    a("s_barrier")
    wo_stage()
    a("s_barrier")
    a("s_mov_b32 s54, 4\nL_wo_pre:")
    wo_stage()
    a("""
    s_sub_u32 s54, s54, 1
    s_cmp_lg_u32 s54, 0
    s_cbranch_scc1 L_wo_pre
    s_barrier
    s_waitcnt vmcnt(40)
    s_barrier
    s_waitcnt vmcnt(32)
    s_barrier
    s_mov_b32 s54, 30
    L_wo_loop:
    """)
    wo_stage()
    a("""
    s_waitcnt vmcnt(32)
    s_barrier
    s_sub_u32 s54, s54, 1
    s_cmp_lg_u32 s54, 0
    s_cbranch_scc1 L_wo_loop
    s_waitcnt vmcnt(24)
    s_barrier
    s_waitcnt vmcnt(16)
    s_barrier
    s_waitcnt vmcnt(8)
    s_barrier
    s_waitcnt vmcnt(0)
    s_barrier
    s_barrier
    s_endpgm
    """)

def kvload(a):
    vm = VM(a)
    flx = " nt" if opt.x_nt else ""
    flkv = " nt" if opt.kv_nt else ""
    a("L_kvload:")
    if opt.prio_load: a(f"s_setprio {opt.prio_load}")
    a(f"""
    s_sub_u32 s51, s{S_WAVE}, 6
    s_mul_i32 s52, s{S_B}, 73728
    """)
    srd(a, 32, S_X, 52, 73728)
    a(f"""
    v_lshrrev_b32 v12, 3, v0
    v_mul_u32_u24 v12, 1152, v12
    v_lshrrev_b32 v13, 4, v0
    v_and_b32 v14, 7, v0
    v_xor_b32 v14, v14, v13
    v_lshl_add_u32 v1, v14, 4, v12
    v_xor_b32 v14, 4, v14
    v_lshl_add_u32 v2, v14, 4, v12
    v_add_u32 v2, 8192, v2
    v_add_u32 v3, 16384, v1
    v_add_u32 v4, 16384, v2
    s_lshl_b32 s53, s51, 12
    s_mul_i32 s54, s51, 36864
    s_lshl_b32 s55, s{S_ROT}, 7
    s_add_u32 s54, s54, s55
    s_mov_b32 s55, s{S_ROT}
    """)
    def xblk(i):
        a(f"s_add_u32 m0, s53, {XBASE + i*8192}")
        a("s_nop 0")
        dma4(a, 1, 32, 54, flx)
        vm.issue(f"x{i}", 4)
        a(f"""
        s_add_u32 s55, s55, 1
        s_cmp_eq_u32 s55, 9
        s_cselect_b32 s55, 0, s55
        s_cselect_b32 s56, 1152, 0
        s_add_u32 s54, s54, 128
        s_sub_u32 s54, s54, s56
        """)
    xblk(0)
    a(f"""
    s_lshl_b32 s52, s{S_B}, 5
    s_lshl_b32 s57, s{S_HG}, 2
    s_add_u32 s52, s52, s57
    s_lshl_b32 s52, s52, 14
    """)
    srd(a, 36, S_K, 52, 65536)
    srd(a, 40, S_V, 52, 65536)
    xblk(1)
    a(f"""
    v_lshlrev_b32 v12, 8, v13
    v_and_b32 v14, 15, v0
    v_xor_b32 v15, v14, v13
    """)
    for m in range(4):
        if m:
            a(f"v_xor_b32 v16, {4*m}, v15")
            a(f"v_lshl_add_u32 v{5+m}, v16, 4, v12")
        else:
            a(f"v_lshl_add_u32 v5, v15, 4, v12")
    a(f"""
    v_lshlrev_b32 v16, 2, v13
    v_xor_b32 v16, v16, v14
    v_lshl_add_u32 v9, v16, 4, v12
    v_lshlrev_b32 v10, 7, v0
    v_mul_u32_u24 v11, 1152, v0
    s_mul_i32 s52, s{S_HG}, {512*1152}
    """)
    srd(a, 44, S_WO, 52, 512*1152)
    def kblk(n):
        a(f"s_add_u32 s56, s53, {n*8192}")
        a(f"s_add_u32 m0, s53, {KBASE + n*8192}")
        a("s_nop 0")
        dma4(a, 5, 36, 56, flkv)
        vm.issue(f"k{n}", 4)
    def vblk(n, nt=True):
        dst = VBASE01 + n*8192 if n < 4 else (n-4)*8192
        a(f"s_add_u32 s56, s53, {n*8192}")
        a(f"s_add_u32 m0, s53, {dst}")
        a("s_nop 0")
        dma4(a, 9, 40, 56, flkv if nt else "", same_v=True)
        vm.issue(f"v{n}", 4)
    def pf_v(n):
        if not opt.pf_v: return
        a(f"s_add_u32 s56, s51, {n}")
        a(f"s_lshl_b32 s56, s56, 13")
        a(f"buffer_load_dword v20, v10, s[40:43], s56 offen")
        vm.issue("pf")
    def pf_wo(n):
        if not opt.pf_wo: return
        a(f"s_lshl_b32 s56, s51, 2")
        a(f"s_add_u32 s56, s56, {n}")
        a(f"s_mul_i32 s56, s56, {64*1152}")
        a(f"s_lshl_b32 s57, s{S_ROT}, 7")
        a(f"s_add_u32 s56, s56, s57")
        a(f"buffer_load_dword v21, v11, s[44:47], s56 offen")
        vm.issue("pf")
    xblk(2)
    kblk(0)
    vm.wait("x0")
    a("s_barrier")
    kblk(1); kblk(2)
    ev = {s: [] for s in range(36)}
    for i in range(3, 9):
        ev[4*(i-3)].append(lambda i=i: xblk(i))
    for i in range(5):
        ev[4*i+3].append(lambda i=i: kblk(3+i))
    for i in range(5, 8):
        ev[4*i+3].append(lambda i=i: vblk(i-5))
    ev[35].append(lambda: vblk(3, nt=not opt.pf_v))
    ev[32].append(lambda: (vblk(4, nt=not opt.pf_v), vblk(5, nt=not opt.pf_v)))
    ev[33].append(lambda: (vblk(6, nt=not opt.pf_v), vblk(7, nt=not opt.pf_v)))
    ev[9].append(lambda: pf_v(3))
    ev[17].append(lambda: pf_v(5))
    ev[25].append(lambda: pf_v(7))
    for n in range(4):
        ev[28+n].append(lambda n=n: pf_wo(n))
    waits = {4*i-1: f"x{i}" for i in range(1, 9)}
    waits[35] = "k7"
    for s in range(36):
        if s in waits:
            vm.wait(waits[s])
        a("s_barrier")
        for f in ev[s]:
            f()
    a("s_barrier")
    a("s_waitcnt vmcnt(0)")
    a("s_barrier")
    a("s_endpgm")

def mfma(a, d, A, B, C=None):
    c = "0" if C == "zero" else vr(d if C is None else C, 16)
    a(f"v_mfma_f32_32x32x16_bf16 {vr(d,16)}, {vr(A,4)}, {vr(B,4)}, {c}")

def compute(a):
    AW, AX, AK = 240, 244, 248
    ABUF = [128, 144]; BBUF = [160, 168]
    KF = 176
    a(f"""
    v_lshrrev_b32 v1, 5, v0
    v_bfe_u32 v2, v0, 4, 1
    v_bfe_u32 v3, v0, 2, 2
    v_and_b32 v4, 1, v0
    v_bfe_u32 v6, v0, 1, 1
    v_lshl_add_u32 v4, v4, 1, v6
    v_and_b32 v5, 31, v0
    """)
    a(f"""
    v_lshlrev_b32 v6, 5, v2
    v_lshl_add_u32 v6, v4, 3, v6
    v_lshl_add_u32 v7, v1, 3, v3
    s_lshl_b32 s51, s{S_WAVE}, 8
    v_lshl_add_u32 v8, v7, 10, v6
    v_add_u32 v8, s51, v8
    """)
    for dt in range(4):
        a(f"v_xor_b32 v9, {dt}, v3")
        a(f"v_lshl_add_u32 v{AW+dt}, v9, 6, v8")
    a(f"""
    v_lshrrev_b32 v8, 3, v5
    v_lshlrev_b32 v8, 10, v8
    v_and_b32 v9, 7, v5
    v_lshl_add_u32 v8, v9, 7, v8
    v_add_u32 v8, {XBASE}, v8
    v_bfe_u32 v9, v5, 1, 3
    v_xor_b32 v9, v9, v1
    """)
    for sp in range(4):
        a(f"v_xor_b32 v10, {2*sp}, v9")
        a(f"v_lshl_add_u32 v{AX+sp}, v10, 4, v8")
    a(f"""
    v_bfe_u32 v8, v0, 2, 1
    v_bfe_u32 v9, v0, 3, 1
    v_lshl_add_u32 v8, v8, 1, v9
    v_and_b32 v9, 3, v0
    v_lshl_add_u32 v8, v8, 2, v9
    v_lshl_add_u32 v9, v2, 4, v8
    s_lshl_b32 s51, s{S_WAVE}, 14
    s_add_u32 s52, s51, {KBASE}
    v_lshlrev_b32 v9, 8, v9
    v_add_u32 v9, s52, v9
    v_xor_b32 v8, v8, v1
    """)
    for ds in range(8):
        a(f"v_xor_b32 v10, {2*ds}, v8")
        a(f"v_lshl_add_u32 v{AK+ds}, v10, 4, v9")
    a(f"""
    v_lshlrev_b32 v232, 4, v0
    v_mov_b32 v233, v6
    v_mov_b32 v234, v7
    v_mov_b32 v235, v3
    s_add_u32 s52, s51, {VBASE01}
    s_cmp_ge_u32 s{S_WAVE}, 2
    s_cselect_b32 s53, {LDS_BYTES}, 0
    s_sub_u32 s52, s52, s53
    """)
    a(f"""
    s_lshl_b32 s53, s{S_G}, 3
    s_add_u32 s53, s53, s{S_HG}
    s_mul_i32 s53, s53, 73728
    """)
    srd(a, 32, S_WS, 53, 73728)
    for i in range(128):
        a(f"v_mov_b32 v{i}, 0")
    def reads(buf, slot, sp):
        r = []
        for qt in range(2):
            r.append(f"ds_read_b128 {vr(BBUF[buf]+4*qt,4)}, v{AX+sp} offset:{qt*4096}")
        for dt in range(4):
            for j in range(2):
                r.append(f"ds_read_b64_tr_b16 {vr(ABUF[buf]+4*dt+2*j,2)}, v{AW+dt} offset:{slot*16384+j*4096}")
        return [r[2], r[3], r[0], r[1]] + r[4:]
    def step(buf, rd, per_gap=2, pre=None):
        rd = list(rd)
        k = 0
        for dt in range(4):
            for qt in range(2):
                if k == 7:
                    a("s_waitcnt lgkmcnt(0)")
                mfma(a, 32*dt+16*qt, ABUF[buf]+4*dt, BBUF[buf]+4*qt)
                if k == 0 and pre: a(pre)
                for _ in range(per_gap):
                    if rd and k < 7: a(rd.pop(0))
                k += 1
        assert not rd
    a("s_barrier")
    stamp(a, 1)
    for r in reads(0, 0, 0): a(r)
    a("s_mov_b32 s54, 9")
    a("s_waitcnt lgkmcnt(0)")
    a("L_g1_loop:")
    for sp in range(3):
        a("s_barrier")
        step(sp & 1, reads((sp+1) & 1, sp+1, sp+1))
    a("""
    s_sub_u32 s54, s54, 1
    s_cmp_eq_u32 s54, 0
    s_cbranch_scc1 L_g1_last
    s_barrier
    """)
    step(1, reads(0, 0, 0), pre="\n".join(f"v_add_u32 v{AX+i}, 8192, v{AX+i}" for i in range(4)))
    a("s_branch L_g1_loop")
    a("L_g1_last:")
    a("s_barrier")
    a("""
    v_mov_b32 v240, v232
    v_mov_b32 v241, v233
    v_mov_b32 v242, v234
    v_mov_b32 v243, v235
    """)
    krd = [f"ds_read_b128 {vr(KF+8*ds+4*kt,4)}, v{AK+ds} offset:{kt*8192}" for ds in range(8) for kt in range(2)]
    step(1, krd, per_gap=3)
    a("s_barrier")
    stamp(a, 2)
    for dt in range(4):
        for qt in range(2):
            T = 32*dt + 16*qt
            for u in range(2):
                for e in range(4):
                    a(f"v_cvt_pk_bf16_f32 v{8*(2*dt+u)+4*qt+e}, v{T+8*u+2*e}, v{T+8*u+2*e+1}")
    a(f"""
    v_lshl_add_u32 v248, v242, 8, v241
    v_add_u32 v248, s52, v248
    """)
    for dt in range(4):
        a(f"v_xor_b32 v249, {dt}, v243")
        a(f"v_lshl_add_u32 v{244+dt}, v249, 6, v248")
    for ds in range(8):
        for kt in range(2):
            for qt in range(2):
                mfma(a, 64+32*kt+16*qt, KF+8*ds+4*kt, 8*ds+4*qt, "zero" if ds == 0 else None)
    a("s_barrier")
    stamp(a, 3)
    VF = 176
    for ks in range(4):
        for dt in range(4):
            for j in range(2):
                a(f"ds_read_b64_tr_b16 {vr(VF+16*ks+4*dt+2*j,2)}, v{244+dt} offset:{ks*4096+j*1024}")
    c = math.log2(math.e) / math.sqrt(128.0)
    import struct
    cbits = struct.unpack("<I", struct.pack("<f", c))[0]
    a(f"s_mov_b32 s56, {hex(cbits)}")
    a(f"s_mov_b32 s57, {hex(cbits)}")
    S = lambda kt, qt, r: 64 + 32*kt + 16*qt + r
    vals = [[S(kt, qt, r) for kt in range(2) for r in range(16)] for qt in range(2)]
    M = [160, 162]; T = [164, 166]; SUM = [168, 170]
    for qt in range(2):
        a(f"v_max3_f32 v{M[qt]}, v{vals[qt][0]}, v{vals[qt][1]}, v{vals[qt][2]}")
    for i in range(3, 31, 2):
        for qt in range(2):
            a(f"v_max3_f32 v{M[qt]}, v{M[qt]}, v{vals[qt][i]}, v{vals[qt][i+1]}")
    for qt in range(2):
        a(f"v_max_f32 v{M[qt]}, v{M[qt]}, v{vals[qt][31]}")
    for qt in range(2):
        a(f"v_mov_b32 v{T[qt]}, v{M[qt]}")
    a("s_nop 1")
    for qt in range(2):
        a(f"v_permlane32_swap_b32 v{M[qt]}, v{T[qt]}")
    a("s_nop 1")
    for qt in range(2):
        a(f"v_max_f32 v{M[qt]}, v{M[qt]}, v{T[qt]}")
    for qt in range(2):
        a(f"v_mul_f32 v{M[qt]}, s56, v{M[qt]}")
    for i in range(0, 32, 2):
        for qt in range(2):
            x = vals[qt][i]
            a(f"v_pk_fma_f32 {vr(x,2)}, {vr(x,2)}, s[56:57], {vr(M[qt],2)} op_sel_hi:[1,1,0] neg_lo:[0,0,1] neg_hi:[0,0,1]")
    for i in range(32):
        for qt in range(2):
            x = vals[qt][i]
            a(f"v_exp_f32 v{x}, v{x}")
    for qt in range(2):
        a(f"v_pk_add_f32 {vr(SUM[qt],2)}, {vr(vals[qt][0],2)}, {vr(vals[qt][2],2)}")
    for i in range(4, 32, 2):
        for qt in range(2):
            a(f"v_pk_add_f32 {vr(SUM[qt],2)}, {vr(SUM[qt],2)}, {vr(vals[qt][i],2)}")
    for qt in range(2):
        a(f"v_add_f32 v{SUM[qt]}, v{SUM[qt]}, v{SUM[qt]+1}")
    for qt in range(2):
        a(f"v_mov_b32 v{T[qt]}, v{SUM[qt]}")
    a("s_nop 1")
    for qt in range(2):
        a(f"v_permlane32_swap_b32 v{SUM[qt]}, v{T[qt]}")
    a("s_nop 1")
    for qt in range(2):
        a(f"v_add_f32 v{SUM[qt]}, v{SUM[qt]}, v{T[qt]}")
    for qt in range(2):
        a(f"v_rcp_f32 v{SUM[qt]}, v{SUM[qt]}")
    a("s_nop 0")
    for i in range(0, 32, 2):
        for qt in range(2):
            x = vals[qt][i]
            a(f"v_pk_mul_f32 {vr(x,2)}, {vr(x,2)}, {vr(SUM[qt],2)} op_sel_hi:[1,0]")
    for kt in range(2):
        for u in range(2):
            for qt in range(2):
                for e in range(4):
                    a(f"v_cvt_pk_bf16_f32 v{128+8*(2*kt+u)+4*qt+e}, v{S(kt,qt,8*u+2*e)}, v{S(kt,qt,8*u+2*e+1)}")
    a("s_waitcnt lgkmcnt(0)")
    a("s_nop 0")
    stamp(a, 4)
    for ks in range(4):
        for dt in range(4):
            for qt in range(2):
                mfma(a, 32*dt+16*qt, VF+16*ks+4*dt, 128+8*ks+4*qt, "zero" if ks == 0 else None)
    a(f"""
    s_lshr_b32 s53, s{S_WAVE}, 1
    s_and_b32 s55, s{S_WAVE}, 1
    v_add_u32 v244, s52, v240
    s_lshl_b32 s55, s55, 10
    v_add_u32 v246, s55, v240
    v_add_u32 v245, {VBASE01}, v246
    v_lshl_add_u32 v247, v242, 7, v241
    v_bfe_u32 v248, v243, 1, 1
    v_xor_b32 v248, s53, v248
    v_lshl_add_u32 v247, v248, 6, v247
    s_lshl_b32 s55, s{S_WAVE}, 11
    v_add_u32 v249, s55, v240
    v_add_u32 v248, {WO_RING}, v247
    """)
    for dt in range(4):
        for qt in range(2):
            Tt = 32*dt + 16*qt
            for u in range(2):
                for e in range(4):
                    a(f"v_cvt_pk_bf16_f32 v{128+8*(2*dt+u)+4*qt+e}, v{Tt+8*u+2*e}, v{Tt+8*u+2*e+1}")
                a(f"ds_write_b128 v244, {vr(128+8*(2*dt+u)+4*qt,4)} offset:{((2*dt+u)*2+qt)*1024}")
    a("s_waitcnt lgkmcnt(0)")
    a("s_barrier")
    stamp(a, 5)
    ACCA, ACCB = 128, 144
    WB = [160, 192]
    PK = 224
    def wreads(buf):
        return [f"ds_read_b64_tr_b16 {vr(WB[buf]+4*ks+2*j,2)}, v248 offset:{ks*2048+j*512}" for ks in range(8) for j in range(2)]
    for r in wreads(0): a(r)
    for h in range(4):
        for ks in range(8):
            a(f"ds_read_b128 {vr(32*h+4*ks,4)}, v{245 if h < 2 else 246} offset:{(h&1)*16384+ks*2048}")
    a(f"""
    s_mov_b32 s54, 0
    s_mov_b32 s55, {WO_RING}
    s_lshl_b32 s58, s{S_ROT}, 13
    s_waitcnt lgkmcnt(0)
    L_p2_loop:
    """)
    def drain():
        d = []
        for u in range(2):
            for e in range(4):
                d.append(f"v_cvt_pk_bf16_f32 v{PK+4*u+e}, v{ACCB+8*u+2*e}, v{ACCB+8*u+2*e+1}")
        for u in range(2):
            d.append(f"buffer_store_dwordx4 {vr(PK+4*u,4)}, v249, s[32:35], s58 offen offset:{u*1024} {opt.part_flags}".rstrip())
        return d
    for kq in range(4):
        buf = kq & 1
        a("s_barrier")
        rd = wreads(buf ^ 1)
        for ks in range(8):
            if ks == 7: a("s_waitcnt lgkmcnt(0)")
            first = kq == 0 and ks == 0
            last = kq == 3 and ks == 7
            if last:
                mfma(a, ACCB, WB[buf]+4*ks, 32*kq+4*ks, ACCA)
            else:
                mfma(a, ACCA, WB[buf]+4*ks, 32*kq+4*ks, "zero" if first else None)
            if ks == 0:
                a(f"""
                s_add_u32 s55, s55, 16384
                s_cmp_eq_u32 s55, {WO_RING+6*16384}
                s_cselect_b32 s55, {WO_RING}, s55
                v_add_u32 v248, s55, v247
                """)
            else:
                for _ in range(3):
                    if rd: a(rd.pop(0))
        assert not rd
        if kq == 0:
            a("s_cmp_eq_u32 s54, 0")
            a("s_cbranch_scc1 L_p2_nodrain")
            for d in drain(): a(d)
            a(f"""
            s_add_u32 s58, s58, 8192
            s_cmp_eq_u32 s58, 73728
            s_cselect_b32 s58, 0, s58
            L_p2_nodrain:
            """)
    a("""
    s_add_u32 s54, s54, 1
    s_cmp_lg_u32 s54, 9
    s_cbranch_scc1 L_p2_loop
    s_nop 7
    s_nop 7
    """)
    for d in drain(): a(d)
    stamp(a, 6)
    if opt.stamps:
        a("s_waitcnt vmcnt(0)")
        stamp(a, 7)
        stamp_flush(a, 8)
    a("L_end:")
    a("s_endpgm")

def reduce_kernel(a):
    a(f"""
    s_cmp_ge_u32 s2, 256
    s_cbranch_scc1 L_rend
    s_load_dwordx2 s[4:5], s[0:1], 80
    s_load_dwordx2 s[6:7], s[0:1], 96
    v_lshrrev_b32 v1, 6, v0
    v_and_b32 v0, 63, v0
    v_readfirstlane_b32 s3, v1
    s_lshr_b32 s8, s2, 3
    s_and_b32 s9, s2, 7
    v_lshrrev_b32 v1, 3, v0
    v_and_b32 v2, 7, v0
    v_lshrrev_b32 v3, 2, v1
    v_bfe_u32 v4, v1, 1, 1
    v_and_b32 v5, 1, v1
    s_lshr_b32 s10, s9, 2
    s_and_b32 s11, s9, 3
    s_lshl_b32 s10, s10, 11
    s_lshl_b32 s11, s11, 7
    s_add_u32 s10, s10, s11
    s_lshl_b32 s11, s3, 13
    s_add_u32 s10, s10, s11
    v_lshlrev_b32 v3, 12, v3
    v_lshl_add_u32 v3, v4, 10, v3
    v_lshl_add_u32 v3, v5, 9, v3
    v_lshl_add_u32 v3, v2, 4, v3
    v_add_u32 v3, s10, v3
    s_mul_i32 s12, s8, {8*73728}
    s_and_b32 s13, s8, 15
    s_lshr_b32 s14, s8, 4
    s_lshl_b32 s13, s13, 6
    s_lshl_b32 s15, s9, 3
    s_add_u32 s13, s13, s15
    s_mul_i32 s13, s13, 2304
    s_mul_i32 s14, s14, 1152
    s_add_u32 s13, s13, s14
    s_lshl_b32 s14, s3, 7
    s_add_u32 s13, s13, s14
    v_mul_u32_u24 v4, 2304, v2
    v_lshl_add_u32 v4, v1, 4, v4
    s_waitcnt lgkmcnt(0)
    s_add_u32 s16, s6, s12
    s_addc_u32 s17, s7, 0
    s_mov_b32 s18, {8*73728}
    s_mov_b32 s19, 0x20000
    s_mov_b32 s20, s4
    s_mov_b32 s21, s5
    s_mov_b32 s22, {16*64*1152*2}
    s_mov_b32 s23, 0x20000
    """)
    for s in range(8):
        a(f"s_mov_b32 s24, {s*73728}")
        a(f"buffer_load_dwordx4 {vr(8+4*s,4)}, v3, s[16:19], s24 offen")
    for s in range(8):
        a(f"s_waitcnt vmcnt({7-s})")
        for e in range(4):
            x = 8+4*s+e
            if s == 0:
                a(f"v_lshlrev_b32 v{40+2*e}, 16, v{x}")
                a(f"v_and_b32 v{41+2*e}, 0xffff0000, v{x}")
            else:
                a(f"v_lshlrev_b32 v48, 16, v{x}")
                a(f"v_and_b32 v49, 0xffff0000, v{x}")
                a(f"v_pk_add_f32 {vr(40+2*e,2)}, {vr(40+2*e,2)}, v[48:49]")
    for e in range(4):
        a(f"v_cvt_pk_bf16_f32 v{8+e}, v{40+2*e}, v{41+2*e}")
    a("buffer_store_dwordx4 v[8:11], v4, s[20:23], s13 offen")
    a("L_rend:")
    a("s_endpgm")

def kd(name, vgpr, sgpr):
    acc = (vgpr + 3)//4*4
    return f""".section .rodata,"a"
.p2align 6
.amdhsa_kernel {name}
  .amdhsa_next_free_vgpr {vgpr}
  .amdhsa_next_free_sgpr {sgpr}
  .amdhsa_accum_offset {acc}
  .amdhsa_group_segment_fixed_size 0
  .amdhsa_kernarg_size 104
  .amdhsa_user_sgpr_count 2
  .amdhsa_user_sgpr_kernarg_segment_ptr 1
  .amdhsa_system_sgpr_workgroup_id_x 1
.end_amdhsa_kernel
"""

def build():
    main = NAME + "_kernel"
    red = "mha_reduce_kernel"
    out = []
    out.append(f"; @launch kernel={main} grid=(256,1,1) block=(512,1,1) lds={LDS_BYTES}")
    out.append(f"; @launch kernel={red} grid=(256,1,1) block=(576,1,1) lds=0")
    out.append('.amdgcn_target "amdgcn-amd-amdhsa--gfx950"')
    out.append(".text")
    a = Asm()
    prologue(a); compute(a); wload(a); kvload(a)
    out.append(f".globl {main}\n.p2align 8\n.type {main},@function\n{main}:")
    out.append(a.text())
    a = Asm(); reduce_kernel(a)
    out.append(f".globl {red}\n.p2align 8\n.type {red},@function\n{red}:")
    out.append(a.text())
    out.append(kd(main, 256, 96))
    out.append(kd(red, 56, 32))
    return "\n".join(out)

if __name__ == "__main__":
    path = sys.argv[1]
    for kv in sys.argv[2:]:
        k, v = kv.split("=", 1)
        cur = getattr(opt, k)
        setattr(opt, k, type(cur)(int(v)) if isinstance(cur, (bool, int)) else v)
    open(path, "w").write(build())
```

```python
import sys, math

NAME = "concat_heads__mha_block_cached__gqa_block_cached__near_ridge"

class Opt:
    kv_nt = True
    w_nt = False
    x_nt = False
    part_flags = ""
    stamps = False
    pf_v = True
    pf_wo = True
    prio_load = 1
    extra_launch = 0
opt = Opt()

class Asm:
    def __init__(self):
        self.l = []
    def __call__(self, s):
        for x in s.strip("\n").split("\n"):
            self.l.append("    " + x.strip() if not x.strip().endswith(":") else x.strip())
    def c(self, s):
        self.l.append("    ; " + s)
    def text(self):
        return "\n".join(self.l) + "\n"

def vr(a, n=1):
    return f"v{a}" if n == 1 else f"v[{a}:{a+n-1}]"
def sr(a, n=1):
    return f"s{a}" if n == 1 else f"s[{a}:{a+n-1}]"

KBASE = 65536
XBASE = 90112
VBASE01 = 131072
WO_RING = 32768
LDS_BYTES = 163840

S_WAVE, S_BR, S_B, S_HG, S_ROT, S_G = 3, 30, 31, 48, 49, 50
S_X, S_K, S_V, S_WQ, S_WO, S_OUT, S_DBG, S_WS = 4, 6, 8, 10, 12, 24, 26, 28

STAMP_OFF = 32 << 20

def stamp(a, idx):
    if opt.stamps:
        a(f"s_memrealtime s[{64+2*idx}:{65+2*idx}]")
        a(f"s_memtime s[{80+2*idx}:{81+2*idx}]")

def stamp_flush(a, n):
    if not opt.stamps:
        return
    a(f"""
    s_waitcnt lgkmcnt(0)
    s_lshl_b32 s60, s2, 3
    s_add_u32 s60, s60, s{S_WAVE}
    s_lshl_b32 s60, s60, 7
    s_add_u32 s60, s60, {STAMP_OFF}
    s_add_u32 s56, s{S_WS}, s60
    s_addc_u32 s57, s{S_WS+1}, 0
    s_mov_b32 s58, 128
    s_mov_b32 s59, 0x20000
    v_mov_b32 v250, 0
    """)
    for i in range(2*n):
        a(f"v_mov_b32 v252, s{64+2*i}")
        a(f"v_mov_b32 v253, s{65+2*i}")
        a(f"buffer_store_dwordx2 v[252:253], v250, s[56:59], 0 offen offset:{8*i}")
        a("s_waitcnt vmcnt(0)")

def srd(a, d, base, off_expr_sreg, size):
    a(f"s_add_u32 s{d}, s{base}, s{off_expr_sreg}")
    a(f"s_addc_u32 s{d+1}, s{base+1}, 0")
    a(f"s_mov_b32 s{d+2}, {size}")
    a(f"s_mov_b32 s{d+3}, 0x20000")

class VM:
    def __init__(self, a):
        self.a = a; self.ops = []
    def issue(self, tag, n=1):
        self.ops += [tag] * n
    def wait(self, tag):
        last = max(i for i, t in enumerate(self.ops) if t == tag)
        n = len(self.ops) - 1 - last
        assert n <= 63, n
        self.a(f"s_waitcnt vmcnt({n})")

def prologue(a):
    a(f"""
    s_cmp_ge_u32 s2, 256
    s_cbranch_scc1 L_end
    s_load_dwordx16 s[4:19], s[0:1], 0
    s_load_dwordx8 s[20:27], s[0:1], 64
    s_load_dwordx2 s[28:29], s[0:1], 96
    v_lshrrev_b32 v1, 6, v0
    v_and_b32 v0, 63, v0
    v_readfirstlane_b32 s{S_WAVE}, v1
    s_and_b32 s51, s2, 7
    s_lshr_b32 s52, s2, 3
    s_lshr_b32 s{S_BR}, s51, 2
    s_and_b32 s51, s51, 3
    s_lshr_b32 s{S_B}, s52, 1
    s_and_b32 s52, s52, 1
    s_lshl_b32 s51, s51, 1
    s_add_u32 s{S_HG}, s51, s52
    s_mul_i32 s{S_ROT}, s{S_B}, 9
    s_lshr_b32 s{S_ROT}, s{S_ROT}, 4
    s_lshl_b32 s{S_G}, s{S_BR}, 4
    s_add_u32 s{S_G}, s{S_G}, s{S_B}
    """)
    stamp(a, 0)
    a(f"""
    s_cmp_eq_u32 s{S_BR}, 0
    s_waitcnt lgkmcnt(0)
    s_cselect_b64 s[4:5], s[4:5], s[14:15]
    s_cselect_b64 s[6:7], s[6:7], s[16:17]
    s_cselect_b64 s[8:9], s[8:9], s[18:19]
    s_cselect_b64 s[10:11], s[10:11], s[20:21]
    s_cselect_b64 s[12:13], s[12:13], s[22:23]
    s_cmp_ge_u32 s{S_WAVE}, 6
    s_cbranch_scc1 L_kvload
    s_cmp_ge_u32 s{S_WAVE}, 4
    s_cbranch_scc1 L_wload
    """)

def dma4(a, vbase, srdr, soff, flags, same_v=False):
    for m in range(4):
        v = vbase if same_v else vbase + m
        a(f"buffer_load_dwordx4 v{v}, s[{srdr}:{srdr+3}], s{soff} offen offset:{m*1024}{flags} lds")

def wload(a):
    fl = " nt" if opt.w_nt else ""
    a("L_wload:")
    if opt.prio_load: a(f"s_setprio {opt.prio_load}")
    a(f"""
    s_sub_u32 s51, s{S_WAVE}, 4
    s_lshl_b32 s52, s{S_HG}, 10
    s_mov_b32 s53, {576*8192}
    s_sub_u32 s53, s53, s52
    s_add_u32 s32, s{S_WQ}, s52
    s_addc_u32 s33, s{S_WQ+1}, 0
    s_mov_b32 s34, s53
    s_mov_b32 s35, 0x20000
    s_lshl_b32 s41, s51, 13
    s_lshl_b32 s40, s{S_ROT}, 19
    s_lshl_b32 s52, s51, 16
    s_add_u32 s40, s40, s52
    """)
    for m in range(4):
        a(f"v_xor_b32 v{1+m}, {4*m}, v0")
        a(f"v_lshlrev_b32 v{1+m}, 4, v{1+m}")
        if m: a(f"v_add_u32 v{1+m}, {m*(8192-1024)}, v{1+m}")
    def wq_stage(slot, wrap):
        a(f"s_add_u32 m0, s41, {slot*16384}")
        a(f"s_add_u32 s42, s40, 32768")
        dma4(a, 1, 32, 40, fl)
        a(f"s_add_u32 m0, s41, {slot*16384+4096}")
        a(f"s_add_u32 s40, s40, {16*8192}")
        dma4(a, 1, 32, 42, fl)
        if wrap:
            a(f"s_cmp_ge_u32 s40, {576*8192}")
            a(f"s_cselect_b32 s42, {576*8192}, 0")
            a(f"s_sub_u32 s40, s40, s42")
    for s in range(4):
        wq_stage(s, s == 3)
    a(f"""
    s_mul_i32 s52, s{S_HG}, {512*1152}
    """)
    srd(a, 36, S_WO, 52, 512*1152)
    a(f"""
    v_lshrrev_b32 v9, 3, v0
    v_mul_u32_u24 v9, 1152, v9
    v_bfe_u32 v10, v0, 4, 1
    v_lshlrev_b32 v10, 2, v10
    v_and_b32 v11, 7, v0
    v_xor_b32 v10, v10, v11
    v_lshl_add_u32 v5, v10, 4, v9
    v_add_u32 v6, 8192, v5
    v_add_u32 v7, 16384, v5
    v_add_u32 v8, 24576, v5
    s_mul_i32 s43, s51, {64*1152}
    s_lshl_b32 s52, s{S_ROT}, 7
    s_add_u32 s43, s43, s52
    s_mov_b32 s45, s{S_ROT}
    s_mov_b32 s46, 0
    s_add_u32 s44, s41, {WO_RING}
    s_add_u32 s47, s41, {WO_RING+6*16384}
    s_waitcnt vmcnt(24)
    s_barrier
    s_waitcnt vmcnt(16)
    s_barrier
    s_mov_b32 s54, 8
    L_wq_loop:
    """)
    for s in range(4):
        wq_stage(s, s == 3)
        a("s_waitcnt vmcnt(16)")
        a("s_barrier")
    a("""
    s_sub_u32 s54, s54, 1
    s_cmp_lg_u32 s54, 0
    s_cbranch_scc1 L_wq_loop
    """)
    a("s_waitcnt vmcnt(8)\ns_barrier")
    a("s_waitcnt vmcnt(0)\ns_barrier")
    def wo_stage():
        a(f"""
        s_mov_b32 m0, s44
        s_add_u32 s42, s43, {32*1152}
        """)
        dma4(a, 5, 36, 43, fl)
        a(f"""
        s_add_u32 m0, s44, 4096
        s_add_u32 s44, s44, 16384
        """)
        dma4(a, 5, 36, 42, fl)
        a(f"""
        s_cmp_eq_u32 s44, s47
        s_cselect_b32 s42, {6*16384}, 0
        s_sub_u32 s44, s44, s42
        s_add_u32 s43, s43, {128*1152}
        s_add_u32 s46, s46, 1
        s_cmp_eq_u32 s46, 4
        s_cselect_b32 s42, {512*1152-128}, 0
        s_cselect_b32 s46, 0, s46
        s_cselect_b32 s55, 1, 0
        s_sub_u32 s43, s43, s42
        s_add_u32 s45, s45, s55
        s_cmp_eq_u32 s45, 9
        s_cselect_b32 s42, 1152, 0
        s_cselect_b32 s45, 0, s45
        s_sub_u32 s43, s43, s42
        """)
    wo_stage()
    a("s_barrier")
    wo_stage()
    a("s_barrier")
    a("s_mov_b32 s54, 4\nL_wo_pre:")
    wo_stage()
    a("""
    s_sub_u32 s54, s54, 1
    s_cmp_lg_u32 s54, 0
    s_cbranch_scc1 L_wo_pre
    s_barrier
    s_waitcnt vmcnt(40)
    s_barrier
    s_waitcnt vmcnt(32)
    s_barrier
    s_mov_b32 s54, 30
    L_wo_loop:
    """)
    wo_stage()
    a("""
    s_waitcnt vmcnt(32)
    s_barrier
    s_sub_u32 s54, s54, 1
    s_cmp_lg_u32 s54, 0
    s_cbranch_scc1 L_wo_loop
    s_waitcnt vmcnt(24)
    s_barrier
    s_waitcnt vmcnt(16)
    s_barrier
    s_waitcnt vmcnt(8)
    s_barrier
    s_waitcnt vmcnt(0)
    s_barrier
    s_barrier
    s_endpgm
    """)

def kvload(a):
    vm = VM(a)
    flx = " nt" if opt.x_nt else ""
    flkv = " nt" if opt.kv_nt else ""
    a("L_kvload:")
    if opt.prio_load: a(f"s_setprio {opt.prio_load}")
    a(f"""
    s_sub_u32 s51, s{S_WAVE}, 6
    s_mul_i32 s52, s{S_B}, 73728
    """)
    srd(a, 32, S_X, 52, 73728)
    a(f"""
    v_lshrrev_b32 v12, 3, v0
    v_mul_u32_u24 v12, 1152, v12
    v_lshrrev_b32 v13, 4, v0
    v_and_b32 v14, 7, v0
    v_xor_b32 v14, v14, v13
    v_lshl_add_u32 v1, v14, 4, v12
    v_xor_b32 v14, 4, v14
    v_lshl_add_u32 v2, v14, 4, v12
    v_add_u32 v2, 8192, v2
    v_add_u32 v3, 16384, v1
    v_add_u32 v4, 16384, v2
    s_lshl_b32 s53, s51, 12
    s_mul_i32 s54, s51, 36864
    s_lshl_b32 s55, s{S_ROT}, 7
    s_add_u32 s54, s54, s55
    s_mov_b32 s55, s{S_ROT}
    """)
    def xblk(i):
        a(f"s_add_u32 m0, s53, {XBASE + i*8192}")
        a("s_nop 0")
        dma4(a, 1, 32, 54, flx)
        vm.issue(f"x{i}", 4)
        a(f"""
        s_add_u32 s55, s55, 1
        s_cmp_eq_u32 s55, 9
        s_cselect_b32 s55, 0, s55
        s_cselect_b32 s56, 1152, 0
        s_add_u32 s54, s54, 128
        s_sub_u32 s54, s54, s56
        """)
    xblk(0)
    a(f"""
    s_lshl_b32 s52, s{S_B}, 5
    s_lshl_b32 s57, s{S_HG}, 2
    s_add_u32 s52, s52, s57
    s_lshl_b32 s52, s52, 14
    """)
    srd(a, 36, S_K, 52, 65536)
    srd(a, 40, S_V, 52, 65536)
    xblk(1)
    a(f"""
    v_lshlrev_b32 v12, 8, v13
    v_and_b32 v14, 15, v0
    v_xor_b32 v15, v14, v13
    """)
    for m in range(4):
        if m:
            a(f"v_xor_b32 v16, {4*m}, v15")
            a(f"v_lshl_add_u32 v{5+m}, v16, 4, v12")
        else:
            a(f"v_lshl_add_u32 v5, v15, 4, v12")
    a(f"""
    v_lshlrev_b32 v16, 2, v13
    v_xor_b32 v16, v16, v14
    v_lshl_add_u32 v9, v16, 4, v12
    v_lshlrev_b32 v10, 7, v0
    v_mul_u32_u24 v11, 1152, v0
    s_mul_i32 s52, s{S_HG}, {512*1152}
    """)
    srd(a, 44, S_WO, 52, 512*1152)
    def kblk(n):
        a(f"s_add_u32 s56, s53, {n*8192}")
        a(f"s_add_u32 m0, s53, {KBASE + n*8192}")
        a("s_nop 0")
        dma4(a, 5, 36, 56, flkv)
        vm.issue(f"k{n}", 4)
    def vblk(n, nt=True):
        dst = VBASE01 + n*8192 if n < 4 else (n-4)*8192
        a(f"s_add_u32 s56, s53, {n*8192}")
        a(f"s_add_u32 m0, s53, {dst}")
        a("s_nop 0")
        dma4(a, 9, 40, 56, flkv if nt else "", same_v=True)
        vm.issue(f"v{n}", 4)
    def pf_v(n):
        if not opt.pf_v: return
        a(f"s_add_u32 s56, s51, {n}")
        a(f"s_lshl_b32 s56, s56, 13")
        a(f"buffer_load_dword v20, v10, s[40:43], s56 offen")
        vm.issue("pf")
    def pf_wo(n):
        if not opt.pf_wo: return
        a(f"s_lshl_b32 s56, s51, 2")
        a(f"s_add_u32 s56, s56, {n}")
        a(f"s_mul_i32 s56, s56, {64*1152}")
        a(f"s_lshl_b32 s57, s{S_ROT}, 7")
        a(f"s_add_u32 s56, s56, s57")
        a(f"buffer_load_dword v21, v11, s[44:47], s56 offen")
        vm.issue("pf")
    xblk(2)
    kblk(0)
    vm.wait("x0")
    a("s_barrier")
    kblk(1); kblk(2)
    ev = {s: [] for s in range(36)}
    for i in range(3, 9):
        ev[4*(i-3)].append(lambda i=i: xblk(i))
    for i in range(5):
        ev[4*i+3].append(lambda i=i: kblk(3+i))
    for i in range(5, 8):
        ev[4*i+3].append(lambda i=i: vblk(i-5))
    ev[35].append(lambda: vblk(3, nt=not opt.pf_v))
    ev[32].append(lambda: (vblk(4, nt=not opt.pf_v), vblk(5, nt=not opt.pf_v)))
    ev[33].append(lambda: (vblk(6, nt=not opt.pf_v), vblk(7, nt=not opt.pf_v)))
    ev[9].append(lambda: pf_v(3))
    ev[17].append(lambda: pf_v(5))
    ev[25].append(lambda: pf_v(7))
    for n in range(4):
        ev[28+n].append(lambda n=n: pf_wo(n))
    waits = {4*i-1: f"x{i}" for i in range(1, 9)}
    waits[35] = "k7"
    for s in range(36):
        if s in waits:
            vm.wait(waits[s])
        a("s_barrier")
        for f in ev[s]:
            f()
    a("s_barrier")
    a("s_waitcnt vmcnt(0)")
    a("s_barrier")
    a("s_endpgm")

def mfma(a, d, A, B, C=None):
    c = "0" if C == "zero" else vr(d if C is None else C, 16)
    a(f"v_mfma_f32_32x32x16_bf16 {vr(d,16)}, {vr(A,4)}, {vr(B,4)}, {c}")

def compute(a):
    AW, AX, AK = 240, 244, 248
    ABUF = [128, 144]; BBUF = [160, 168]
    KF = 176
    a(f"""
    v_lshrrev_b32 v1, 5, v0
    v_bfe_u32 v2, v0, 4, 1
    v_bfe_u32 v3, v0, 2, 2
    v_and_b32 v4, 1, v0
    v_bfe_u32 v6, v0, 1, 1
    v_lshl_add_u32 v4, v4, 1, v6
    v_and_b32 v5, 31, v0
    """)
    a(f"""
    v_lshlrev_b32 v6, 5, v2
    v_lshl_add_u32 v6, v4, 3, v6
    v_lshl_add_u32 v7, v1, 3, v3
    s_lshl_b32 s51, s{S_WAVE}, 8
    v_lshl_add_u32 v8, v7, 10, v6
    v_add_u32 v8, s51, v8
    """)
    for dt in range(4):
        a(f"v_xor_b32 v9, {dt}, v3")
        a(f"v_lshl_add_u32 v{AW+dt}, v9, 6, v8")
    a(f"""
    v_lshrrev_b32 v8, 3, v5
    v_lshlrev_b32 v8, 10, v8
    v_and_b32 v9, 7, v5
    v_lshl_add_u32 v8, v9, 7, v8
    v_add_u32 v8, {XBASE}, v8
    v_bfe_u32 v9, v5, 1, 3
    v_xor_b32 v9, v9, v1
    """)
    for sp in range(4):
        a(f"v_xor_b32 v10, {2*sp}, v9")
        a(f"v_lshl_add_u32 v{AX+sp}, v10, 4, v8")
    a(f"""
    v_bfe_u32 v8, v0, 2, 1
    v_bfe_u32 v9, v0, 3, 1
    v_lshl_add_u32 v8, v8, 1, v9
    v_and_b32 v9, 3, v0
    v_lshl_add_u32 v8, v8, 2, v9
    v_lshl_add_u32 v9, v2, 4, v8
    s_lshl_b32 s51, s{S_WAVE}, 14
    s_add_u32 s52, s51, {KBASE}
    v_lshlrev_b32 v9, 8, v9
    v_add_u32 v9, s52, v9
    v_xor_b32 v8, v8, v1
    """)
    for ds in range(8):
        a(f"v_xor_b32 v10, {2*ds}, v8")
        a(f"v_lshl_add_u32 v{AK+ds}, v10, 4, v9")
    a(f"""
    v_lshlrev_b32 v232, 4, v0
    v_mov_b32 v233, v6
    v_mov_b32 v234, v7
    v_mov_b32 v235, v3
    s_add_u32 s52, s51, {VBASE01}
    s_cmp_ge_u32 s{S_WAVE}, 2
    s_cselect_b32 s53, {LDS_BYTES}, 0
    s_sub_u32 s52, s52, s53
    """)
    a(f"""
    s_lshl_b32 s53, s{S_G}, 3
    s_add_u32 s53, s53, s{S_HG}
    s_mul_i32 s53, s53, 73728
    """)
    srd(a, 32, S_WS, 53, 73728)
    for i in range(128):
        a(f"v_mov_b32 v{i}, 0")
    def reads(buf, slot, sp):
        r = []
        for qt in range(2):
            r.append(f"ds_read_b128 {vr(BBUF[buf]+4*qt,4)}, v{AX+sp} offset:{qt*4096}")
        for dt in range(4):
            for j in range(2):
                r.append(f"ds_read_b64_tr_b16 {vr(ABUF[buf]+4*dt+2*j,2)}, v{AW+dt} offset:{slot*16384+j*4096}")
        return [r[2], r[3], r[0], r[1]] + r[4:]
    def step(buf, rd, per_gap=2, pre=None):
        rd = list(rd)
        k = 0
        for dt in range(4):
            for qt in range(2):
                if k == 7:
                    a("s_waitcnt lgkmcnt(0)")
                mfma(a, 32*dt+16*qt, ABUF[buf]+4*dt, BBUF[buf]+4*qt)
                if k == 0 and pre: a(pre)
                for _ in range(per_gap):
                    if rd and k < 7: a(rd.pop(0))
                k += 1
        assert not rd
    a("s_barrier")
    stamp(a, 1)
    for r in reads(0, 0, 0): a(r)
    a("s_mov_b32 s54, 9")
    a("s_waitcnt lgkmcnt(0)")
    a("L_g1_loop:")
    for sp in range(3):
        a("s_barrier")
        step(sp & 1, reads((sp+1) & 1, sp+1, sp+1))
    a("""
    s_sub_u32 s54, s54, 1
    s_cmp_eq_u32 s54, 0
    s_cbranch_scc1 L_g1_last
    s_barrier
    """)
    step(1, reads(0, 0, 0), pre="\n".join(f"v_add_u32 v{AX+i}, 8192, v{AX+i}" for i in range(4)))
    a("s_branch L_g1_loop")
    a("L_g1_last:")
    a("s_barrier")
    a("""
    v_mov_b32 v240, v232
    v_mov_b32 v241, v233
    v_mov_b32 v242, v234
    v_mov_b32 v243, v235
    """)
    krd = [f"ds_read_b128 {vr(KF+8*ds+4*kt,4)}, v{AK+ds} offset:{kt*8192}" for ds in range(8) for kt in range(2)]
    step(1, krd, per_gap=3)
    a("s_barrier")
    stamp(a, 2)
    for dt in range(4):
        for qt in range(2):
            T = 32*dt + 16*qt
            for u in range(2):
                for e in range(4):
                    a(f"v_cvt_pk_bf16_f32 v{8*(2*dt+u)+4*qt+e}, v{T+8*u+2*e}, v{T+8*u+2*e+1}")
    a(f"""
    v_lshl_add_u32 v248, v242, 8, v241
    v_add_u32 v248, s52, v248
    """)
    for dt in range(4):
        a(f"v_xor_b32 v249, {dt}, v243")
        a(f"v_lshl_add_u32 v{244+dt}, v249, 6, v248")
    for ds in range(8):
        for kt in range(2):
            for qt in range(2):
                mfma(a, 64+32*kt+16*qt, KF+8*ds+4*kt, 8*ds+4*qt, "zero" if ds == 0 else None)
    a("s_barrier")
    stamp(a, 3)
    VF = 176
    for ks in range(4):
        for dt in range(4):
            for j in range(2):
                a(f"ds_read_b64_tr_b16 {vr(VF+16*ks+4*dt+2*j,2)}, v{244+dt} offset:{ks*4096+j*1024}")
    c = math.log2(math.e) / math.sqrt(128.0)
    import struct
    cbits = struct.unpack("<I", struct.pack("<f", c))[0]
    a(f"s_mov_b32 s56, {hex(cbits)}")
    a(f"s_mov_b32 s57, {hex(cbits)}")
    S = lambda kt, qt, r: 64 + 32*kt + 16*qt + r
    vals = [[S(kt, qt, r) for kt in range(2) for r in range(16)] for qt in range(2)]
    M = [160, 162]; T = [164, 166]; SUM = [168, 170]
    for qt in range(2):
        a(f"v_max3_f32 v{M[qt]}, v{vals[qt][0]}, v{vals[qt][1]}, v{vals[qt][2]}")
    for i in range(3, 31, 2):
        for qt in range(2):
            a(f"v_max3_f32 v{M[qt]}, v{M[qt]}, v{vals[qt][i]}, v{vals[qt][i+1]}")
    for qt in range(2):
        a(f"v_max_f32 v{M[qt]}, v{M[qt]}, v{vals[qt][31]}")
    for qt in range(2):
        a(f"v_mov_b32 v{T[qt]}, v{M[qt]}")
    a("s_nop 1")
    for qt in range(2):
        a(f"v_permlane32_swap_b32 v{M[qt]}, v{T[qt]}")
    a("s_nop 1")
    for qt in range(2):
        a(f"v_max_f32 v{M[qt]}, v{M[qt]}, v{T[qt]}")
    for qt in range(2):
        a(f"v_mul_f32 v{M[qt]}, s56, v{M[qt]}")
    for i in range(0, 32, 2):
        for qt in range(2):
            x = vals[qt][i]
            a(f"v_pk_fma_f32 {vr(x,2)}, {vr(x,2)}, s[56:57], {vr(M[qt],2)} op_sel_hi:[1,1,0] neg_lo:[0,0,1] neg_hi:[0,0,1]")
    for i in range(32):
        for qt in range(2):
            x = vals[qt][i]
            a(f"v_exp_f32 v{x}, v{x}")
    for qt in range(2):
        a(f"v_pk_add_f32 {vr(SUM[qt],2)}, {vr(vals[qt][0],2)}, {vr(vals[qt][2],2)}")
    for i in range(4, 32, 2):
        for qt in range(2):
            a(f"v_pk_add_f32 {vr(SUM[qt],2)}, {vr(SUM[qt],2)}, {vr(vals[qt][i],2)}")
    for qt in range(2):
        a(f"v_add_f32 v{SUM[qt]}, v{SUM[qt]}, v{SUM[qt]+1}")
    for qt in range(2):
        a(f"v_mov_b32 v{T[qt]}, v{SUM[qt]}")
    a("s_nop 1")
    for qt in range(2):
        a(f"v_permlane32_swap_b32 v{SUM[qt]}, v{T[qt]}")
    a("s_nop 1")
    for qt in range(2):
        a(f"v_add_f32 v{SUM[qt]}, v{SUM[qt]}, v{T[qt]}")
    for qt in range(2):
        a(f"v_rcp_f32 v{SUM[qt]}, v{SUM[qt]}")
    a("s_nop 0")
    for i in range(0, 32, 2):
        for qt in range(2):
            x = vals[qt][i]
            a(f"v_pk_mul_f32 {vr(x,2)}, {vr(x,2)}, {vr(SUM[qt],2)} op_sel_hi:[1,0]")
    for kt in range(2):
        for u in range(2):
            for qt in range(2):
                for e in range(4):
                    a(f"v_cvt_pk_bf16_f32 v{128+8*(2*kt+u)+4*qt+e}, v{S(kt,qt,8*u+2*e)}, v{S(kt,qt,8*u+2*e+1)}")
    a("s_waitcnt lgkmcnt(0)")
    a("s_nop 0")
    stamp(a, 4)
    for ks in range(4):
        for dt in range(4):
            for qt in range(2):
                mfma(a, 32*dt+16*qt, VF+16*ks+4*dt, 128+8*ks+4*qt, "zero" if ks == 0 else None)
    a(f"""
    s_lshr_b32 s53, s{S_WAVE}, 1
    s_and_b32 s55, s{S_WAVE}, 1
    v_add_u32 v244, s52, v240
    s_lshl_b32 s55, s55, 10
    v_add_u32 v246, s55, v240
    v_add_u32 v245, {VBASE01}, v246
    v_lshl_add_u32 v247, v242, 7, v241
    v_bfe_u32 v248, v243, 1, 1
    v_xor_b32 v248, s53, v248
    v_lshl_add_u32 v247, v248, 6, v247
    s_lshl_b32 s55, s{S_WAVE}, 11
    v_add_u32 v249, s55, v240
    v_add_u32 v248, {WO_RING}, v247
    """)
    for dt in range(4):
        for qt in range(2):
            Tt = 32*dt + 16*qt
            for u in range(2):
                for e in range(4):
                    a(f"v_cvt_pk_bf16_f32 v{128+8*(2*dt+u)+4*qt+e}, v{Tt+8*u+2*e}, v{Tt+8*u+2*e+1}")
                a(f"ds_write_b128 v244, {vr(128+8*(2*dt+u)+4*qt,4)} offset:{((2*dt+u)*2+qt)*1024}")
    a("s_waitcnt lgkmcnt(0)")
    a("s_barrier")
    stamp(a, 5)
    ACCA, ACCB = 128, 144
    WB = [160, 192]
    PK = 224
    def wreads(buf):
        return [f"ds_read_b64_tr_b16 {vr(WB[buf]+4*ks+2*j,2)}, v248 offset:{ks*2048+j*512}" for ks in range(8) for j in range(2)]
    for r in wreads(0): a(r)
    for h in range(4):
        for ks in range(8):
            a(f"ds_read_b128 {vr(32*h+4*ks,4)}, v{245 if h < 2 else 246} offset:{(h&1)*16384+ks*2048}")
    a(f"""
    s_mov_b32 s54, 0
    s_mov_b32 s55, {WO_RING}
    s_lshl_b32 s58, s{S_ROT}, 13
    s_waitcnt lgkmcnt(0)
    L_p2_loop:
    """)
    def drain():
        d = []
        for u in range(2):
            for e in range(4):
                d.append(f"v_cvt_pk_bf16_f32 v{PK+4*u+e}, v{ACCB+8*u+2*e}, v{ACCB+8*u+2*e+1}")
        for u in range(2):
            d.append(f"buffer_store_dwordx4 {vr(PK+4*u,4)}, v249, s[32:35], s58 offen offset:{u*1024} {opt.part_flags}".rstrip())
        return d
    for kq in range(4):
        buf = kq & 1
        a("s_barrier")
        rd = wreads(buf ^ 1)
        for ks in range(8):
            if ks == 7: a("s_waitcnt lgkmcnt(0)")
            first = kq == 0 and ks == 0
            last = kq == 3 and ks == 7
            if last:
                mfma(a, ACCB, WB[buf]+4*ks, 32*kq+4*ks, ACCA)
            else:
                mfma(a, ACCA, WB[buf]+4*ks, 32*kq+4*ks, "zero" if first else None)
            if ks == 0:
                a(f"""
                s_add_u32 s55, s55, 16384
                s_cmp_eq_u32 s55, {WO_RING+6*16384}
                s_cselect_b32 s55, {WO_RING}, s55
                v_add_u32 v248, s55, v247
                """)
            else:
                for _ in range(3):
                    if rd: a(rd.pop(0))
        assert not rd
        if kq == 0:
            a("s_cmp_eq_u32 s54, 0")
            a("s_cbranch_scc1 L_p2_nodrain")
            for d in drain(): a(d)
            a(f"""
            s_add_u32 s58, s58, 8192
            s_cmp_eq_u32 s58, 73728
            s_cselect_b32 s58, 0, s58
            L_p2_nodrain:
            """)
    a("""
    s_add_u32 s54, s54, 1
    s_cmp_lg_u32 s54, 9
    s_cbranch_scc1 L_p2_loop
    s_nop 7
    s_nop 7
    """)
    for d in drain(): a(d)
    stamp(a, 6)
    if opt.stamps:
        a("s_waitcnt vmcnt(0)")
        stamp(a, 7)
        stamp_flush(a, 8)
    a("L_end:")
    a("s_endpgm")

def reduce_kernel(a):
    a(f"""
    s_cmp_ge_u32 s2, 256
    s_cbranch_scc1 L_rend
    s_load_dwordx2 s[4:5], s[0:1], 80
    s_load_dwordx2 s[6:7], s[0:1], 96
    v_lshrrev_b32 v1, 6, v0
    v_and_b32 v0, 63, v0
    v_readfirstlane_b32 s3, v1
    s_lshr_b32 s8, s2, 3
    s_and_b32 s9, s2, 7
    v_lshrrev_b32 v1, 3, v0
    v_and_b32 v2, 7, v0
    v_lshrrev_b32 v3, 2, v1
    v_bfe_u32 v4, v1, 1, 1
    v_and_b32 v5, 1, v1
    s_lshr_b32 s10, s9, 2
    s_and_b32 s11, s9, 3
    s_lshl_b32 s10, s10, 11
    s_lshl_b32 s11, s11, 7
    s_add_u32 s10, s10, s11
    s_lshl_b32 s11, s3, 13
    s_add_u32 s10, s10, s11
    v_lshlrev_b32 v3, 12, v3
    v_lshl_add_u32 v3, v4, 10, v3
    v_lshl_add_u32 v3, v5, 9, v3
    v_lshl_add_u32 v3, v2, 4, v3
    v_add_u32 v3, s10, v3
    s_mul_i32 s12, s8, {8*73728}
    s_and_b32 s13, s8, 15
    s_lshr_b32 s14, s8, 4
    s_lshl_b32 s13, s13, 6
    s_lshl_b32 s15, s9, 3
    s_add_u32 s13, s13, s15
    s_mul_i32 s13, s13, 2304
    s_mul_i32 s14, s14, 1152
    s_add_u32 s13, s13, s14
    s_lshl_b32 s14, s3, 7
    s_add_u32 s13, s13, s14
    v_mul_u32_u24 v4, 2304, v2
    v_lshl_add_u32 v4, v1, 4, v4
    s_waitcnt lgkmcnt(0)
    s_add_u32 s16, s6, s12
    s_addc_u32 s17, s7, 0
    s_mov_b32 s18, {8*73728}
    s_mov_b32 s19, 0x20000
    s_mov_b32 s20, s4
    s_mov_b32 s21, s5
    s_mov_b32 s22, {16*64*1152*2}
    s_mov_b32 s23, 0x20000
    """)
    for s in range(8):
        a(f"s_mov_b32 s24, {s*73728}")
        a(f"buffer_load_dwordx4 {vr(8+4*s,4)}, v3, s[16:19], s24 offen")
    for s in range(8):
        a(f"s_waitcnt vmcnt({7-s})")
        for e in range(4):
            x = 8+4*s+e
            if s == 0:
                a(f"v_lshlrev_b32 v{40+2*e}, 16, v{x}")
                a(f"v_and_b32 v{41+2*e}, 0xffff0000, v{x}")
            else:
                a(f"v_lshlrev_b32 v48, 16, v{x}")
                a(f"v_and_b32 v49, 0xffff0000, v{x}")
                a(f"v_pk_add_f32 {vr(40+2*e,2)}, {vr(40+2*e,2)}, v[48:49]")
    for e in range(4):
        a(f"v_cvt_pk_bf16_f32 v{8+e}, v{40+2*e}, v{41+2*e}")
    a("buffer_store_dwordx4 v[8:11], v4, s[20:23], s13 offen")
    a("L_rend:")
    a("s_endpgm")

def kd(name, vgpr, sgpr):
    acc = (vgpr + 3)//4*4
    return f""".section .rodata,"a"
.p2align 6
.amdhsa_kernel {name}
  .amdhsa_next_free_vgpr {vgpr}
  .amdhsa_next_free_sgpr {sgpr}
  .amdhsa_accum_offset {acc}
  .amdhsa_group_segment_fixed_size 0
  .amdhsa_kernarg_size 104
  .amdhsa_user_sgpr_count 2
  .amdhsa_user_sgpr_kernarg_segment_ptr 1
  .amdhsa_system_sgpr_workgroup_id_x 1
.end_amdhsa_kernel
"""

def build():
    main = NAME + "_kernel"
    red = "mha_reduce_kernel"
    out = []
    out.append(f"; @launch kernel={main} grid=(256,1,1) block=(512,1,1) lds={LDS_BYTES}")
    out.append(f"; @launch kernel={red} grid=(256,1,1) block=(576,1,1) lds=0")
    for _ in range(opt.extra_launch):
        out.append(f"; @launch kernel=nop_kernel grid=(1,1,1) block=(64,1,1) lds=0")
    out.append('.amdgcn_target "amdgcn-amd-amdhsa--gfx950"')
    out.append(".text")
    a = Asm()
    prologue(a); compute(a); wload(a); kvload(a)
    out.append(f".globl {main}\n.p2align 8\n.type {main},@function\n{main}:")
    out.append(a.text())
    a = Asm(); reduce_kernel(a)
    out.append(f".globl {red}\n.p2align 8\n.type {red},@function\n{red}:")
    out.append(a.text())
    if opt.extra_launch:
        out.append(".globl nop_kernel\n.p2align 8\n.type nop_kernel,@function\nnop_kernel:\n    s_endpgm\n")
        out.append(kd("nop_kernel", 8, 16))
        out.append(".text")
    out.append(kd(main, 256, 100))
    out.append(kd(red, 56, 32))
    return "\n".join(out)

if __name__ == "__main__":
    path = sys.argv[1]
    for kv in sys.argv[2:]:
        k, v = kv.split("=", 1)
        cur = getattr(opt, k)
        setattr(opt, k, type(cur)(int(v)) if isinstance(cur, (bool, int)) else v)
    open(path, "w").write(build())
```

```python
import sys, math

NAME = "concat_heads__mha_block_cached__gqa_block_cached__near_ridge"

class Opt:
    kv_nt = True
    w_nt = False
    x_nt = False
    part_flags = ""
    stamps = False
    pf_v = True
    pf_wo = True
    prio_load = 1
    extra_launch = 0
    diag = -1
opt = Opt()

class Asm:
    def __init__(self):
        self.l = []
    def __call__(self, s):
        for x in s.strip("\n").split("\n"):
            self.l.append("    " + x.strip() if not x.strip().endswith(":") else x.strip())
    def c(self, s):
        self.l.append("    ; " + s)
    def text(self):
        return "\n".join(self.l) + "\n"

def vr(a, n=1):
    return f"v{a}" if n == 1 else f"v[{a}:{a+n-1}]"
def sr(a, n=1):
    return f"s{a}" if n == 1 else f"s[{a}:{a+n-1}]"

KBASE = 65536
XBASE = 90112
VBASE01 = 131072
WO_RING = 32768
LDS_BYTES = 163840

S_WAVE, S_BR, S_B, S_HG, S_ROT, S_G = 3, 30, 31, 48, 49, 50
S_X, S_K, S_V, S_WQ, S_WO, S_OUT, S_DBG, S_WS = 4, 6, 8, 10, 12, 24, 26, 28

STAMP_OFF = 32 << 20

def stamp(a, idx):
    if opt.stamps:
        a(f"s_memrealtime s[{64+2*idx}:{65+2*idx}]")
        a(f"s_memtime s[{80+2*idx}:{81+2*idx}]")

def stamp_flush(a, n):
    if not opt.stamps:
        return
    a(f"""
    s_waitcnt lgkmcnt(0)
    s_lshl_b32 s60, s2, 3
    s_add_u32 s60, s60, s{S_WAVE}
    s_lshl_b32 s60, s60, 7
    s_add_u32 s60, s60, {STAMP_OFF}
    s_add_u32 s56, s{S_WS}, s60
    s_addc_u32 s57, s{S_WS+1}, 0
    s_mov_b32 s58, 128
    s_mov_b32 s59, 0x20000
    v_mov_b32 v250, 0
    """)
    for i in range(2*n):
        a(f"v_mov_b32 v252, s{64+2*i}")
        a(f"v_mov_b32 v253, s{65+2*i}")
        a(f"buffer_store_dwordx2 v[252:253], v250, s[56:59], 0 offen offset:{8*i}")
        a("s_waitcnt vmcnt(0)")

def srd(a, d, base, off_expr_sreg, size):
    a(f"s_add_u32 s{d}, s{base}, s{off_expr_sreg}")
    a(f"s_addc_u32 s{d+1}, s{base+1}, 0")
    a(f"s_mov_b32 s{d+2}, {size}")
    a(f"s_mov_b32 s{d+3}, 0x20000")

class VM:
    def __init__(self, a):
        self.a = a; self.ops = []
    def issue(self, tag, n=1):
        self.ops += [tag] * n
    def wait(self, tag):
        last = max(i for i, t in enumerate(self.ops) if t == tag)
        n = len(self.ops) - 1 - last
        assert n <= 63, n
        self.a(f"s_waitcnt vmcnt({n})")

def prologue(a):
    a(f"""
    s_cmp_ge_u32 s2, 256
    s_cbranch_scc1 L_end
    s_load_dwordx16 s[4:19], s[0:1], 0
    s_load_dwordx8 s[20:27], s[0:1], 64
    s_load_dwordx2 s[28:29], s[0:1], 96
    v_lshrrev_b32 v1, 6, v0
    v_and_b32 v0, 63, v0
    v_readfirstlane_b32 s{S_WAVE}, v1
    s_and_b32 s51, s2, 7
    s_lshr_b32 s52, s2, 3
    s_lshr_b32 s{S_BR}, s51, 2
    s_and_b32 s51, s51, 3
    s_lshr_b32 s{S_B}, s52, 1
    s_and_b32 s52, s52, 1
    s_lshl_b32 s51, s51, 1
    s_add_u32 s{S_HG}, s51, s52
    s_mul_i32 s{S_ROT}, s{S_B}, 9
    s_lshr_b32 s{S_ROT}, s{S_ROT}, 4
    s_lshl_b32 s{S_G}, s{S_BR}, 4
    s_add_u32 s{S_G}, s{S_G}, s{S_B}
    """)
    stamp(a, 0)
    a(f"""
    s_cmp_eq_u32 s{S_BR}, 0
    s_waitcnt lgkmcnt(0)
    s_cselect_b64 s[4:5], s[4:5], s[14:15]
    s_cselect_b64 s[6:7], s[6:7], s[16:17]
    s_cselect_b64 s[8:9], s[8:9], s[18:19]
    s_cselect_b64 s[10:11], s[10:11], s[20:21]
    s_cselect_b64 s[12:13], s[12:13], s[22:23]
    s_cmp_ge_u32 s{S_WAVE}, 6
    s_cbranch_scc1 L_kvload
    s_cmp_ge_u32 s{S_WAVE}, 4
    s_cbranch_scc1 L_wload
    """)

def dma4(a, vbase, srdr, soff, flags, same_v=False):
    for m in range(4):
        v = vbase if same_v else vbase + m
        a(f"buffer_load_dwordx4 v{v}, s[{srdr}:{srdr+3}], s{soff} offen offset:{m*1024}{flags} lds")

def wload(a):
    fl = " nt" if opt.w_nt else ""
    a("L_wload:")
    if opt.prio_load: a(f"s_setprio {opt.prio_load}")
    a(f"""
    s_sub_u32 s51, s{S_WAVE}, 4
    s_lshl_b32 s52, s{S_HG}, 10
    s_mov_b32 s53, {576*8192}
    s_sub_u32 s53, s53, s52
    s_add_u32 s32, s{S_WQ}, s52
    s_addc_u32 s33, s{S_WQ+1}, 0
    s_mov_b32 s34, s53
    s_mov_b32 s35, 0x20000
    s_lshl_b32 s41, s51, 13
    s_lshl_b32 s40, s{S_ROT}, 19
    s_lshl_b32 s52, s51, 16
    s_add_u32 s40, s40, s52
    """)
    for m in range(4):
        a(f"v_xor_b32 v{1+m}, {4*m}, v0")
        a(f"v_lshlrev_b32 v{1+m}, 4, v{1+m}")
        if m: a(f"v_add_u32 v{1+m}, {m*(8192-1024)}, v{1+m}")
    def wq_stage(slot, wrap):
        a(f"s_add_u32 m0, s41, {slot*16384}")
        a(f"s_add_u32 s42, s40, 32768")
        dma4(a, 1, 32, 40, fl)
        a(f"s_add_u32 m0, s41, {slot*16384+4096}")
        a(f"s_add_u32 s40, s40, {16*8192}")
        dma4(a, 1, 32, 42, fl)
        if wrap:
            a(f"s_cmp_ge_u32 s40, {576*8192}")
            a(f"s_cselect_b32 s42, {576*8192}, 0")
            a(f"s_sub_u32 s40, s40, s42")
    for s in range(4):
        wq_stage(s, s == 3)
    a(f"""
    s_mul_i32 s52, s{S_HG}, {512*1152}
    """)
    srd(a, 36, S_WO, 52, 512*1152)
    a(f"""
    v_lshrrev_b32 v9, 3, v0
    v_mul_u32_u24 v9, 1152, v9
    v_bfe_u32 v10, v0, 4, 1
    v_lshlrev_b32 v10, 2, v10
    v_and_b32 v11, 7, v0
    v_xor_b32 v10, v10, v11
    v_lshl_add_u32 v5, v10, 4, v9
    v_add_u32 v6, 8192, v5
    v_add_u32 v7, 16384, v5
    v_add_u32 v8, 24576, v5
    s_mul_i32 s43, s51, {64*1152}
    s_lshl_b32 s52, s{S_ROT}, 7
    s_add_u32 s43, s43, s52
    s_mov_b32 s45, s{S_ROT}
    s_mov_b32 s46, 0
    s_add_u32 s44, s41, {WO_RING}
    s_add_u32 s47, s41, {WO_RING+6*16384}
    s_waitcnt vmcnt(24)
    s_barrier
    s_waitcnt vmcnt(16)
    s_barrier
    s_mov_b32 s54, 8
    L_wq_loop:
    """)
    for s in range(4):
        wq_stage(s, s == 3)
        a("s_waitcnt vmcnt(16)")
        a("s_barrier")
    a("""
    s_sub_u32 s54, s54, 1
    s_cmp_lg_u32 s54, 0
    s_cbranch_scc1 L_wq_loop
    """)
    a("s_waitcnt vmcnt(8)\ns_barrier")
    a("s_waitcnt vmcnt(0)\ns_barrier")
    def wo_stage():
        a(f"""
        s_mov_b32 m0, s44
        s_add_u32 s42, s43, {32*1152}
        """)
        dma4(a, 5, 36, 43, fl)
        a(f"""
        s_add_u32 m0, s44, 4096
        s_add_u32 s44, s44, 16384
        """)
        dma4(a, 5, 36, 42, fl)
        a(f"""
        s_cmp_eq_u32 s44, s47
        s_cselect_b32 s42, {6*16384}, 0
        s_sub_u32 s44, s44, s42
        s_add_u32 s43, s43, {128*1152}
        s_add_u32 s46, s46, 1
        s_cmp_eq_u32 s46, 4
        s_cselect_b32 s42, {512*1152-128}, 0
        s_cselect_b32 s46, 0, s46
        s_cselect_b32 s55, 1, 0
        s_sub_u32 s43, s43, s42
        s_add_u32 s45, s45, s55
        s_cmp_eq_u32 s45, 9
        s_cselect_b32 s42, 1152, 0
        s_cselect_b32 s45, 0, s45
        s_sub_u32 s43, s43, s42
        """)
    wo_stage()
    a("s_barrier")
    wo_stage()
    a("s_barrier")
    a("s_mov_b32 s54, 4\nL_wo_pre:")
    wo_stage()
    a("""
    s_sub_u32 s54, s54, 1
    s_cmp_lg_u32 s54, 0
    s_cbranch_scc1 L_wo_pre
    s_barrier
    s_waitcnt vmcnt(40)
    s_barrier
    s_waitcnt vmcnt(32)
    s_barrier
    s_mov_b32 s54, 30
    L_wo_loop:
    """)
    wo_stage()
    a("""
    s_waitcnt vmcnt(32)
    s_barrier
    s_sub_u32 s54, s54, 1
    s_cmp_lg_u32 s54, 0
    s_cbranch_scc1 L_wo_loop
    s_waitcnt vmcnt(24)
    s_barrier
    s_waitcnt vmcnt(16)
    s_barrier
    s_waitcnt vmcnt(8)
    s_barrier
    s_waitcnt vmcnt(0)
    s_barrier
    s_barrier
    s_endpgm
    """)

def kvload(a):
    vm = VM(a)
    flx = " nt" if opt.x_nt else ""
    flkv = " nt" if opt.kv_nt else ""
    a("L_kvload:")
    if opt.prio_load: a(f"s_setprio {opt.prio_load}")
    a(f"""
    s_sub_u32 s51, s{S_WAVE}, 6
    s_mul_i32 s52, s{S_B}, 73728
    """)
    srd(a, 32, S_X, 52, 73728)
    a(f"""
    v_lshrrev_b32 v12, 3, v0
    v_mul_u32_u24 v12, 1152, v12
    v_lshrrev_b32 v13, 4, v0
    v_and_b32 v14, 7, v0
    v_xor_b32 v14, v14, v13
    v_lshl_add_u32 v1, v14, 4, v12
    v_xor_b32 v14, 4, v14
    v_lshl_add_u32 v2, v14, 4, v12
    v_add_u32 v2, 8192, v2
    v_add_u32 v3, 16384, v1
    v_add_u32 v4, 16384, v2
    s_lshl_b32 s53, s51, 12
    s_mul_i32 s54, s51, 36864
    s_lshl_b32 s55, s{S_ROT}, 7
    s_add_u32 s54, s54, s55
    s_mov_b32 s55, s{S_ROT}
    """)
    def xblk(i):
        a(f"s_add_u32 m0, s53, {XBASE + i*8192}")
        a("s_nop 0")
        dma4(a, 1, 32, 54, flx)
        vm.issue(f"x{i}", 4)
        a(f"""
        s_add_u32 s55, s55, 1
        s_cmp_eq_u32 s55, 9
        s_cselect_b32 s55, 0, s55
        s_cselect_b32 s56, 1152, 0
        s_add_u32 s54, s54, 128
        s_sub_u32 s54, s54, s56
        """)
    xblk(0)
    a(f"""
    s_lshl_b32 s52, s{S_B}, 5
    s_lshl_b32 s57, s{S_HG}, 2
    s_add_u32 s52, s52, s57
    s_lshl_b32 s52, s52, 14
    """)
    srd(a, 36, S_K, 52, 65536)
    srd(a, 40, S_V, 52, 65536)
    xblk(1)
    a(f"""
    v_lshlrev_b32 v12, 8, v13
    v_and_b32 v14, 15, v0
    v_xor_b32 v15, v14, v13
    """)
    for m in range(4):
        if m:
            a(f"v_xor_b32 v16, {4*m}, v15")
            a(f"v_lshl_add_u32 v{5+m}, v16, 4, v12")
        else:
            a(f"v_lshl_add_u32 v5, v15, 4, v12")
    a(f"""
    v_lshlrev_b32 v16, 2, v13
    v_xor_b32 v16, v16, v14
    v_lshl_add_u32 v9, v16, 4, v12
    v_lshlrev_b32 v10, 7, v0
    v_mul_u32_u24 v11, 1152, v0
    s_mul_i32 s52, s{S_HG}, {512*1152}
    """)
    srd(a, 44, S_WO, 52, 512*1152)
    def kblk(n):
        a(f"s_add_u32 s56, s53, {n*8192}")
        a(f"s_add_u32 m0, s53, {KBASE + n*8192}")
        a("s_nop 0")
        dma4(a, 5, 36, 56, flkv)
        vm.issue(f"k{n}", 4)
    def vblk(n, nt=True):
        dst = VBASE01 + n*8192 if n < 4 else (n-4)*8192
        a(f"s_add_u32 s56, s53, {n*8192}")
        a(f"s_add_u32 m0, s53, {dst}")
        a("s_nop 0")
        dma4(a, 9, 40, 56, flkv if nt else "", same_v=True)
        vm.issue(f"v{n}", 4)
    def pf_v(n):
        if not opt.pf_v: return
        a(f"s_add_u32 s56, s51, {n}")
        a(f"s_lshl_b32 s56, s56, 13")
        a(f"buffer_load_dword v20, v10, s[40:43], s56 offen")
        vm.issue("pf")
    def pf_wo(n):
        if not opt.pf_wo: return
        a(f"s_lshl_b32 s56, s51, 2")
        a(f"s_add_u32 s56, s56, {n}")
        a(f"s_mul_i32 s56, s56, {64*1152}")
        a(f"s_lshl_b32 s57, s{S_ROT}, 7")
        a(f"s_add_u32 s56, s56, s57")
        a(f"buffer_load_dword v21, v11, s[44:47], s56 offen")
        vm.issue("pf")
    xblk(2)
    kblk(0)
    vm.wait("x0")
    a("s_barrier")
    kblk(1); kblk(2)
    ev = {s: [] for s in range(36)}
    for i in range(3, 9):
        ev[4*(i-3)].append(lambda i=i: xblk(i))
    for i in range(5):
        ev[4*i+3].append(lambda i=i: kblk(3+i))
    for i in range(5, 8):
        ev[4*i+3].append(lambda i=i: vblk(i-5))
    ev[35].append(lambda: vblk(3, nt=not opt.pf_v))
    ev[32].append(lambda: (vblk(4, nt=not opt.pf_v), vblk(5, nt=not opt.pf_v)))
    ev[33].append(lambda: (vblk(6, nt=not opt.pf_v), vblk(7, nt=not opt.pf_v)))
    ev[9].append(lambda: pf_v(3))
    ev[17].append(lambda: pf_v(5))
    ev[25].append(lambda: pf_v(7))
    for n in range(4):
        ev[28+n].append(lambda n=n: pf_wo(n))
    waits = {4*i-1: f"x{i}" for i in range(1, 9)}
    waits[35] = "k7"
    for s in range(36):
        if s in waits:
            vm.wait(waits[s])
        a("s_barrier")
        for f in ev[s]:
            f()
    a("s_barrier")
    a("s_waitcnt vmcnt(0)")
    a("s_barrier")
    a("s_endpgm")

def mfma(a, d, A, B, C=None):
    c = "0" if C == "zero" else vr(d if C is None else C, 16)
    a(f"v_mfma_f32_32x32x16_bf16 {vr(d,16)}, {vr(A,4)}, {vr(B,4)}, {c}")

def compute(a):
    AW, AX, AK = 240, 244, 248
    ABUF = [128, 144]; BBUF = [160, 168]
    KF = 176
    a(f"""
    v_lshrrev_b32 v1, 5, v0
    v_bfe_u32 v2, v0, 4, 1
    v_bfe_u32 v3, v0, 2, 2
    v_and_b32 v4, 1, v0
    v_bfe_u32 v6, v0, 1, 1
    v_lshl_add_u32 v4, v4, 1, v6
    v_and_b32 v5, 31, v0
    """)
    a(f"""
    v_lshlrev_b32 v6, 5, v2
    v_lshl_add_u32 v6, v4, 3, v6
    v_lshl_add_u32 v7, v1, 3, v3
    s_lshl_b32 s51, s{S_WAVE}, 8
    v_lshl_add_u32 v8, v7, 10, v6
    v_add_u32 v8, s51, v8
    """)
    for dt in range(4):
        a(f"v_xor_b32 v9, {dt}, v3")
        a(f"v_lshl_add_u32 v{AW+dt}, v9, 6, v8")
    a(f"""
    v_lshrrev_b32 v8, 3, v5
    v_lshlrev_b32 v8, 10, v8
    v_and_b32 v9, 7, v5
    v_lshl_add_u32 v8, v9, 7, v8
    v_add_u32 v8, {XBASE}, v8
    v_bfe_u32 v9, v5, 1, 3
    v_xor_b32 v9, v9, v1
    """)
    for sp in range(4):
        a(f"v_xor_b32 v10, {2*sp}, v9")
        a(f"v_lshl_add_u32 v{AX+sp}, v10, 4, v8")
    a(f"""
    v_bfe_u32 v8, v0, 2, 1
    v_bfe_u32 v9, v0, 3, 1
    v_lshl_add_u32 v8, v8, 1, v9
    v_and_b32 v9, 3, v0
    v_lshl_add_u32 v8, v8, 2, v9
    v_lshl_add_u32 v9, v2, 4, v8
    s_lshl_b32 s51, s{S_WAVE}, 14
    s_add_u32 s52, s51, {KBASE}
    v_lshlrev_b32 v9, 8, v9
    v_add_u32 v9, s52, v9
    v_xor_b32 v8, v8, v1
    """)
    for ds in range(8):
        a(f"v_xor_b32 v10, {2*ds}, v8")
        a(f"v_lshl_add_u32 v{AK+ds}, v10, 4, v9")
    a(f"""
    v_lshlrev_b32 v232, 4, v0
    v_mov_b32 v233, v6
    v_mov_b32 v234, v7
    v_mov_b32 v235, v3
    s_add_u32 s52, s51, {VBASE01}
    s_cmp_ge_u32 s{S_WAVE}, 2
    s_cselect_b32 s53, {LDS_BYTES}, 0
    s_sub_u32 s52, s52, s53
    """)
    a(f"""
    s_lshl_b32 s53, s{S_G}, 3
    s_add_u32 s53, s53, s{S_HG}
    s_mul_i32 s53, s53, 73728
    """)
    srd(a, 32, S_WS, 53, 73728)
    for i in range(128):
        a(f"v_mov_b32 v{i}, 0")
    def reads(buf, slot, sp):
        r = []
        for qt in range(2):
            r.append(f"ds_read_b128 {vr(BBUF[buf]+4*qt,4)}, v{AX+sp} offset:{qt*4096}")
        for dt in range(4):
            for j in range(2):
                r.append(f"ds_read_b64_tr_b16 {vr(ABUF[buf]+4*dt+2*j,2)}, v{AW+dt} offset:{slot*16384+j*4096}")
        return [r[2], r[3], r[0], r[1]] + r[4:]
    def step(buf, rd, per_gap=2, pre=None):
        rd = list(rd)
        k = 0
        for dt in range(4):
            for qt in range(2):
                if k == 7:
                    a("s_waitcnt lgkmcnt(0)")
                mfma(a, 32*dt+16*qt, ABUF[buf]+4*dt, BBUF[buf]+4*qt)
                if k == 0 and pre: a(pre)
                for _ in range(per_gap):
                    if rd and k < 7: a(rd.pop(0))
                k += 1
        assert not rd
    a("s_barrier")
    stamp(a, 1)
    for r in reads(0, 0, 0): a(r)
    a("s_mov_b32 s54, 9")
    a("s_waitcnt lgkmcnt(0)")
    a("L_g1_loop:")
    for sp in range(3):
        a("s_barrier")
        step(sp & 1, reads((sp+1) & 1, sp+1, sp+1))
    a("""
    s_sub_u32 s54, s54, 1
    s_cmp_eq_u32 s54, 0
    s_cbranch_scc1 L_g1_last
    s_barrier
    """)
    step(1, reads(0, 0, 0), pre="\n".join(f"v_add_u32 v{AX+i}, 8192, v{AX+i}" for i in range(4)))
    a("s_branch L_g1_loop")
    a("L_g1_last:")
    a("s_barrier")
    a("""
    v_mov_b32 v240, v232
    v_mov_b32 v241, v233
    v_mov_b32 v242, v234
    v_mov_b32 v243, v235
    """)
    krd = [f"ds_read_b128 {vr(KF+8*ds+4*kt,4)}, v{AK+ds} offset:{kt*8192}" for ds in range(8) for kt in range(2)]
    step(1, krd, per_gap=3)
    a("s_barrier")
    stamp(a, 2)
    for dt in range(4):
        for qt in range(2):
            T = 32*dt + 16*qt
            for u in range(2):
                for e in range(4):
                    a(f"v_cvt_pk_bf16_f32 v{8*(2*dt+u)+4*qt+e}, v{T+8*u+2*e}, v{T+8*u+2*e+1}")
    a(f"""
    v_lshl_add_u32 v248, v242, 8, v241
    v_add_u32 v248, s52, v248
    """)
    for dt in range(4):
        a(f"v_xor_b32 v249, {dt}, v243")
        a(f"v_lshl_add_u32 v{244+dt}, v249, 6, v248")
    for ds in range(8):
        for kt in range(2):
            for qt in range(2):
                mfma(a, 64+32*kt+16*qt, KF+8*ds+4*kt, 8*ds+4*qt, "zero" if ds == 0 else None)
    a("s_barrier")
    stamp(a, 3)
    VF = 176
    for ks in range(4):
        for dt in range(4):
            for j in range(2):
                a(f"ds_read_b64_tr_b16 {vr(VF+16*ks+4*dt+2*j,2)}, v{244+dt} offset:{ks*4096+j*1024}")
    c = math.log2(math.e) / math.sqrt(128.0)
    import struct
    cbits = struct.unpack("<I", struct.pack("<f", c))[0]
    a(f"s_mov_b32 s56, {hex(cbits)}")
    a(f"s_mov_b32 s57, {hex(cbits)}")
    S = lambda kt, qt, r: 64 + 32*kt + 16*qt + r
    vals = [[S(kt, qt, r) for kt in range(2) for r in range(16)] for qt in range(2)]
    M = [160, 162]; T = [164, 166]; SUM = [168, 170]
    for qt in range(2):
        a(f"v_max3_f32 v{M[qt]}, v{vals[qt][0]}, v{vals[qt][1]}, v{vals[qt][2]}")
    for i in range(3, 31, 2):
        for qt in range(2):
            a(f"v_max3_f32 v{M[qt]}, v{M[qt]}, v{vals[qt][i]}, v{vals[qt][i+1]}")
    for qt in range(2):
        a(f"v_max_f32 v{M[qt]}, v{M[qt]}, v{vals[qt][31]}")
    for qt in range(2):
        a(f"v_mov_b32 v{T[qt]}, v{M[qt]}")
    a("s_nop 1")
    for qt in range(2):
        a(f"v_permlane32_swap_b32 v{M[qt]}, v{T[qt]}")
    a("s_nop 1")
    for qt in range(2):
        a(f"v_max_f32 v{M[qt]}, v{M[qt]}, v{T[qt]}")
    for qt in range(2):
        a(f"v_mul_f32 v{M[qt]}, s56, v{M[qt]}")
    for i in range(0, 32, 2):
        for qt in range(2):
            x = vals[qt][i]
            a(f"v_pk_fma_f32 {vr(x,2)}, {vr(x,2)}, s[56:57], {vr(M[qt],2)} op_sel_hi:[1,1,0] neg_lo:[0,0,1] neg_hi:[0,0,1]")
    for i in range(32):
        for qt in range(2):
            x = vals[qt][i]
            a(f"v_exp_f32 v{x}, v{x}")
    for qt in range(2):
        a(f"v_pk_add_f32 {vr(SUM[qt],2)}, {vr(vals[qt][0],2)}, {vr(vals[qt][2],2)}")
    for i in range(4, 32, 2):
        for qt in range(2):
            a(f"v_pk_add_f32 {vr(SUM[qt],2)}, {vr(SUM[qt],2)}, {vr(vals[qt][i],2)}")
    for qt in range(2):
        a(f"v_add_f32 v{SUM[qt]}, v{SUM[qt]}, v{SUM[qt]+1}")
    for qt in range(2):
        a(f"v_mov_b32 v{T[qt]}, v{SUM[qt]}")
    a("s_nop 1")
    for qt in range(2):
        a(f"v_permlane32_swap_b32 v{SUM[qt]}, v{T[qt]}")
    a("s_nop 1")
    for qt in range(2):
        a(f"v_add_f32 v{SUM[qt]}, v{SUM[qt]}, v{T[qt]}")
    for qt in range(2):
        a(f"v_rcp_f32 v{SUM[qt]}, v{SUM[qt]}")
    a("s_nop 0")
    for i in range(0, 32, 2):
        for qt in range(2):
            x = vals[qt][i]
            a(f"v_pk_mul_f32 {vr(x,2)}, {vr(x,2)}, {vr(SUM[qt],2)} op_sel_hi:[1,0]")
    for kt in range(2):
        for u in range(2):
            for qt in range(2):
                for e in range(4):
                    a(f"v_cvt_pk_bf16_f32 v{128+8*(2*kt+u)+4*qt+e}, v{S(kt,qt,8*u+2*e)}, v{S(kt,qt,8*u+2*e+1)}")
    a("s_waitcnt lgkmcnt(0)")
    a("s_nop 0")
    stamp(a, 4)
    for ks in range(4):
        for dt in range(4):
            for qt in range(2):
                mfma(a, 32*dt+16*qt, VF+16*ks+4*dt, 128+8*ks+4*qt, "zero" if ks == 0 else None)
    a(f"""
    s_lshr_b32 s53, s{S_WAVE}, 1
    s_and_b32 s55, s{S_WAVE}, 1
    v_add_u32 v244, s52, v240
    s_lshl_b32 s55, s55, 10
    v_add_u32 v246, s55, v240
    v_add_u32 v245, {VBASE01}, v246
    v_lshl_add_u32 v247, v242, 7, v241
    v_bfe_u32 v248, v243, 1, 1
    v_xor_b32 v248, s53, v248
    v_lshl_add_u32 v247, v248, 6, v247
    s_lshl_b32 s55, s{S_WAVE}, 11
    v_add_u32 v249, s55, v240
    v_add_u32 v248, {WO_RING}, v247
    """)
    for dt in range(4):
        for qt in range(2):
            Tt = 32*dt + 16*qt
            for u in range(2):
                for e in range(4):
                    a(f"v_cvt_pk_bf16_f32 v{128+8*(2*dt+u)+4*qt+e}, v{Tt+8*u+2*e}, v{Tt+8*u+2*e+1}")
                a(f"ds_write_b128 v244, {vr(128+8*(2*dt+u)+4*qt,4)} offset:{((2*dt+u)*2+qt)*1024}")
    a("s_waitcnt lgkmcnt(0)")
    a("s_barrier")
    stamp(a, 5)
    ACCA, ACCB = 128, 144
    WB = [160, 192]
    PK = 224
    def wreads(buf):
        return [f"ds_read_b64_tr_b16 {vr(WB[buf]+4*ks+2*j,2)}, v248 offset:{ks*2048+j*512}" for ks in range(8) for j in range(2)]
    for r in wreads(0): a(r)
    for h in range(4):
        for ks in range(8):
            a(f"ds_read_b128 {vr(32*h+4*ks,4)}, v{245 if h < 2 else 246} offset:{(h&1)*16384+ks*2048}")
    a(f"""
    s_mov_b32 s54, 0
    s_mov_b32 s55, {WO_RING}
    s_lshl_b32 s58, s{S_ROT}, 13
    s_waitcnt lgkmcnt(0)
    L_p2_loop:
    """)
    def drain():
        d = []
        for u in range(2):
            for e in range(4):
                d.append(f"v_cvt_pk_bf16_f32 v{PK+4*u+e}, v{ACCB+8*u+2*e}, v{ACCB+8*u+2*e+1}")
        for u in range(2):
            d.append(f"buffer_store_dwordx4 {vr(PK+4*u,4)}, v249, s[32:35], s58 offen offset:{u*1024} {opt.part_flags}".rstrip())
        return d
    for kq in range(4):
        buf = kq & 1
        a("s_barrier")
        rd = wreads(buf ^ 1)
        for ks in range(8):
            if ks == 7: a("s_waitcnt lgkmcnt(0)")
            first = kq == 0 and ks == 0
            last = kq == 3 and ks == 7
            if last:
                mfma(a, ACCB, WB[buf]+4*ks, 32*kq+4*ks, ACCA)
            else:
                mfma(a, ACCA, WB[buf]+4*ks, 32*kq+4*ks, "zero" if first else None)
            if ks == 0:
                a(f"""
                s_add_u32 s55, s55, 16384
                s_cmp_eq_u32 s55, {WO_RING+6*16384}
                s_cselect_b32 s55, {WO_RING}, s55
                v_add_u32 v248, s55, v247
                """)
            else:
                for _ in range(3):
                    if rd: a(rd.pop(0))
        assert not rd
        if kq == 0:
            a("s_cmp_eq_u32 s54, 0")
            a("s_cbranch_scc1 L_p2_nodrain")
            for d in drain(): a(d)
            a(f"""
            s_add_u32 s58, s58, 8192
            s_cmp_eq_u32 s58, 73728
            s_cselect_b32 s58, 0, s58
            L_p2_nodrain:
            """)
    a("""
    s_add_u32 s54, s54, 1
    s_cmp_lg_u32 s54, 9
    s_cbranch_scc1 L_p2_loop
    s_nop 7
    s_nop 7
    """)
    for d in drain(): a(d)
    stamp(a, 6)
    if opt.stamps:
        a("s_waitcnt vmcnt(0)")
        stamp(a, 7)
        stamp_flush(a, 8)
    a("L_end:")
    a("s_endpgm")

def reduce_kernel(a):
    a(f"""
    s_cmp_ge_u32 s2, 256
    s_cbranch_scc1 L_rend
    s_load_dwordx2 s[4:5], s[0:1], 80
    s_load_dwordx2 s[6:7], s[0:1], 96
    v_lshrrev_b32 v1, 6, v0
    v_and_b32 v0, 63, v0
    v_readfirstlane_b32 s3, v1
    s_lshr_b32 s8, s2, 3
    s_and_b32 s9, s2, 7
    v_lshrrev_b32 v1, 3, v0
    v_and_b32 v2, 7, v0
    v_lshrrev_b32 v3, 2, v1
    v_bfe_u32 v4, v1, 1, 1
    v_and_b32 v5, 1, v1
    s_lshr_b32 s10, s9, 2
    s_and_b32 s11, s9, 3
    s_lshl_b32 s10, s10, 11
    s_lshl_b32 s11, s11, 7
    s_add_u32 s10, s10, s11
    s_lshl_b32 s11, s3, 13
    s_add_u32 s10, s10, s11
    v_lshlrev_b32 v3, 12, v3
    v_lshl_add_u32 v3, v4, 10, v3
    v_lshl_add_u32 v3, v5, 9, v3
    v_lshl_add_u32 v3, v2, 4, v3
    v_add_u32 v3, s10, v3
    s_mul_i32 s12, s8, {8*73728}
    s_and_b32 s13, s8, 15
    s_lshr_b32 s14, s8, 4
    s_lshl_b32 s13, s13, 6
    s_lshl_b32 s15, s9, 3
    s_add_u32 s13, s13, s15
    s_mul_i32 s13, s13, 2304
    s_mul_i32 s14, s14, 1152
    s_add_u32 s13, s13, s14
    s_lshl_b32 s14, s3, 7
    s_add_u32 s13, s13, s14
    v_mul_u32_u24 v4, 2304, v2
    v_lshl_add_u32 v4, v1, 4, v4
    s_waitcnt lgkmcnt(0)
    s_add_u32 s16, s6, s12
    s_addc_u32 s17, s7, 0
    s_mov_b32 s18, {8*73728}
    s_mov_b32 s19, 0x20000
    s_mov_b32 s20, s4
    s_mov_b32 s21, s5
    s_mov_b32 s22, {16*64*1152*2}
    s_mov_b32 s23, 0x20000
    """)
    for s in range(8):
        a(f"s_mov_b32 s24, {s*73728}")
        a(f"buffer_load_dwordx4 {vr(8+4*s,4)}, v3, s[16:19], s24 offen")
    for s in range(8):
        a(f"s_waitcnt vmcnt({7-s})")
        for e in range(4):
            x = 8+4*s+e
            if s == 0:
                a(f"v_lshlrev_b32 v{40+2*e}, 16, v{x}")
                a(f"v_and_b32 v{41+2*e}, 0xffff0000, v{x}")
            else:
                a(f"v_lshlrev_b32 v48, 16, v{x}")
                a(f"v_and_b32 v49, 0xffff0000, v{x}")
                a(f"v_pk_add_f32 {vr(40+2*e,2)}, {vr(40+2*e,2)}, v[48:49]")
    for e in range(4):
        a(f"v_cvt_pk_bf16_f32 v{8+e}, v{40+2*e}, v{41+2*e}")
    a("buffer_store_dwordx4 v[8:11], v4, s[20:23], s13 offen")
    if opt.stamps:
        a(f"""
        s_waitcnt vmcnt(0)
        s_memrealtime s[24:25]
        s_cmp_ge_u32 s3, 4
        s_cbranch_scc1 L_rend
        s_lshl_b32 s26, s2, 3
        s_add_u32 s26, s26, s3
        s_lshl_b32 s26, s26, 7
        s_add_u32 s26, s26, {STAMP_OFF}
        s_add_u32 s16, s6, s26
        s_addc_u32 s17, s7, 0
        s_mov_b32 s18, 128
        s_waitcnt lgkmcnt(0)
        v_mov_b32 v8, s24
        v_mov_b32 v9, s25
        v_mov_b32 v10, 0
        buffer_store_dwordx2 v[8:9], v10, s[16:19], 0 offen offset:120
        """)
    a("L_rend:")
    a("s_endpgm")

def diag_kernel(a):
    a(f"""
    s_cmp_ge_u32 s2, 1
    s_cbranch_scc1 L_dend
    s_load_dwordx2 s[6:7], s[0:1], 96
    v_lshrrev_b32 v1, 2, v0
    v_and_b32 v2, 3, v0
    v_lshlrev_b32 v1, 10, v1
    v_lshl_add_u32 v1, v2, 7, v1
    s_waitcnt lgkmcnt(0)
    s_add_u32 s8, s6, {STAMP_OFF}
    s_addc_u32 s9, s7, 0
    s_mov_b32 s10, {256*1024}
    s_mov_b32 s11, 0x20000
    """)
    for i in range(16):
        a(f"s_mov_b32 s12, {i*16384}")
        a(f"buffer_load_dword v{8+i}, v1, s[8:11], s12 offen")
        a(f"buffer_load_dword v{24+i}, v1, s[8:11], s12 offen offset:{8*opt.diag}")
    a("s_waitcnt vmcnt(0)")
    a("v_readfirstlane_b32 s13, v8")
    a("s_sub_u32 s13, s13, 100000")
    a("s_nop 1")
    for i in range(32):
        a(f"v_subrev_u32 v{8+i}, s13, v{8+i}")
    for i in range(1, 16):
        a(f"v_min_u32 v8, v8, v{8+i}")
        a(f"v_max_u32 v24, v24, v{24+i}")
    a("s_mov_b32 s14, -1\ns_mov_b32 s15, 0\ns_nop 1")
    for l in range(64):
        a(f"v_readlane_b32 s16, v8, {l}")
        a(f"v_readlane_b32 s17, v24, {l}")
        a("s_nop 3")
        a("s_min_u32 s14, s14, s16")
        a("s_max_u32 s15, s15, s17")
    a("""
    s_sub_u32 s15, s15, s14
    s_min_u32 s15, s15, 20000
    s_mul_i32 s15, s15, 10
    s_memrealtime s[18:19]
    s_waitcnt lgkmcnt(0)
    L_dspin:
    s_memrealtime s[20:21]
    s_waitcnt lgkmcnt(0)
    s_sub_u32 s20, s20, s18
    s_cmp_lt_u32 s20, s15
    s_cbranch_scc1 L_dspin
    L_dend:
    s_endpgm
    """)

def kd(name, vgpr, sgpr):
    acc = (vgpr + 3)//4*4
    return f""".section .rodata,"a"
.p2align 6
.amdhsa_kernel {name}
  .amdhsa_next_free_vgpr {vgpr}
  .amdhsa_next_free_sgpr {sgpr}
  .amdhsa_accum_offset {acc}
  .amdhsa_group_segment_fixed_size 0
  .amdhsa_kernarg_size 104
  .amdhsa_user_sgpr_count 2
  .amdhsa_user_sgpr_kernarg_segment_ptr 1
  .amdhsa_system_sgpr_workgroup_id_x 1
.end_amdhsa_kernel
"""

def build():
    main = NAME + "_kernel"
    red = "mha_reduce_kernel"
    out = []
    out.append(f"; @launch kernel={main} grid=(256,1,1) block=(512,1,1) lds={LDS_BYTES}")
    out.append(f"; @launch kernel={red} grid=(256,1,1) block=(576,1,1) lds=0")
    if opt.diag >= 0:
        out.append(f"; @launch kernel=diag_kernel grid=(1,1,1) block=(64,1,1) lds=0")
    for _ in range(opt.extra_launch):
        out.append(f"; @launch kernel=nop_kernel grid=(1,1,1) block=(64,1,1) lds=0")
    out.append('.amdgcn_target "amdgcn-amd-amdhsa--gfx950"')
    out.append(".text")
    a = Asm()
    prologue(a); compute(a); wload(a); kvload(a)
    out.append(f".globl {main}\n.p2align 8\n.type {main},@function\n{main}:")
    out.append(a.text())
    a = Asm(); reduce_kernel(a)
    out.append(f".globl {red}\n.p2align 8\n.type {red},@function\n{red}:")
    out.append(a.text())
    if opt.diag >= 0:
        a = Asm(); diag_kernel(a)
        out.append(".globl diag_kernel\n.p2align 8\n.type diag_kernel,@function\ndiag_kernel:\n" + a.text())
        out.append(kd("diag_kernel", 48, 32))
        out.append(".text")
    if opt.extra_launch:
        out.append(".globl nop_kernel\n.p2align 8\n.type nop_kernel,@function\nnop_kernel:\n    s_endpgm\n")
        out.append(kd("nop_kernel", 8, 16))
        out.append(".text")
    out.append(kd(main, 256, 100))
    out.append(kd(red, 56, 32))
    return "\n".join(out)

if __name__ == "__main__":
    path = sys.argv[1]
    for kv in sys.argv[2:]:
        k, v = kv.split("=", 1)
        cur = getattr(opt, k)
        setattr(opt, k, type(cur)(int(v)) if isinstance(cur, (bool, int)) else v)
    open(path, "w").write(build())
```

```python
import sys, math, struct

NAME = "concat_heads__mha_block_cached__gqa_block_cached__near_ridge"

class Opt:
    kv_nt = True
    w_nt = False
    x_nt = False
    part_flags = "sc1"
    stamps = False
    pf_v = True
    pf_wo = True
    prio_load = 0
    extra_launch = 0
    ltime = 0
    pro = 0
    steps = 0
    x_nodma = 0
    x_noread = 0
    x_nowait = 0
    x_nochain = 0
    x_nostore = 0
    x_dbuf = 0
    st_pos = "89"
    steps2 = 0
    x_nodsw = 0
    lead = 7
    pub_late = 0
    x_nopub = 0
    fused = 1
    prio_comp = 0
    sched = "0:x1|2:d0|1+:x2,x3,k0|7+:x4,x5,k1,k2,k3|15+:x6,x7,k4,k5,k6|23+:x8,k7,v0|31:v1,v2|32:v4|33:v5|35:v6,v7,v3"
    stagger = "0"
    p2quota = "222222222222222"
    diag = -1
opt = Opt()

class Asm:
    def __init__(self):
        self.l = []
    def __call__(self, s):
        for x in s.strip("\n").split("\n"):
            if not x.strip(): continue
            self.l.append("    " + x.strip() if not x.strip().endswith(":") else x.strip())
    def c(self, s):
        self.l.append("    ; " + s)
    def text(self):
        return "\n".join(self.l) + "\n"

def vr(a, n=1):
    return f"v{a}" if n == 1 else f"v[{a}:{a+n-1}]"
def sr(a, n=1):
    return f"s{a}" if n == 1 else f"s[{a}:{a+n-1}]"

KBASE = 65536
XBASE = 90112
VBASE01 = 131072
WO_RING = 32768
LDS_BYTES = 163840

S_WAVE, S_BR, S_B, S_HG, S_ROT, S_G, S_ROT2 = 3, 30, 31, 48, 49, 50, 14
S_X, S_K, S_V, S_WQ, S_WO, S_OUT, S_DBG, S_WS = 4, 6, 8, 10, 12, 24, 26, 28

FLAG_OFF = 24 << 20
STAGE = 0
STAMP_OFF = 32 << 20

def stamp(a, idx):
    if opt.stamps:
        a(f"s_memrealtime s[{64+2*idx}:{65+2*idx}]")
        a(f"s_memtime s[{80+2*idx}:{81+2*idx}]")

def stamp_flush(a, n):
    if not opt.stamps:
        return
    a(f"""
    s_waitcnt lgkmcnt(0)
    s_lshl_b32 s60, s2, 3
    s_add_u32 s60, s60, s{S_WAVE}
    s_lshl_b32 s60, s60, 7
    s_add_u32 s60, s60, {STAMP_OFF}
    s_add_u32 s56, s{S_WS}, s60
    s_addc_u32 s57, s{S_WS+1}, 0
    s_mov_b32 s58, 128
    s_mov_b32 s59, 0x20000
    v_mov_b32 v250, 0
    """)
    for i in range(2*n):
        a(f"v_mov_b32 v252, s{64+2*i}")
        a(f"v_mov_b32 v253, s{65+2*i}")
        a(f"buffer_store_dwordx2 v[252:253], v250, s[56:59], 0 offen offset:{8*i}")
        a("s_waitcnt vmcnt(0)")

def tbegin(a):
    if opt.stamps and opt.ltime:
        for i in range(16): a(f"s_mov_b64 s[{64+2*i}:{65+2*i}], 0")
        a("s_memtime s[96:97]\ns_waitcnt lgkmcnt(0)")
def tacc(a, idx):
    if opt.stamps and opt.ltime:
        a(f"""
        s_memtime s[98:99]
        s_waitcnt lgkmcnt(0)
        s_sub_u32 s97, s98, s96
        s_add_u32 s{64+2*idx}, s{64+2*idx}, s97
        s_mov_b32 s96, s98
        """)

def srd(a, d, base, off_expr_sreg, size):
    a(f"s_add_u32 s{d}, s{base}, s{off_expr_sreg}")
    a(f"s_addc_u32 s{d+1}, s{base+1}, 0")
    a(f"s_mov_b32 s{d+2}, {size}")
    a(f"s_mov_b32 s{d+3}, 0x20000")

class VM:
    def __init__(self, a):
        self.a = a; self.ops = []
    def issue(self, tag, n=1):
        self.ops += [tag] * n
    def wait(self, tag):
        last = max(i for i, t in enumerate(self.ops) if t == tag)
        n = len(self.ops) - 1 - last
        assert n <= 63, n
        self.a(f"s_waitcnt vmcnt({n})")
    def wait_all(self, tags):
        last = max(i for i, t in enumerate(self.ops) if t in tags)
        assert all(t in self.ops for t in tags), tags
        self.wait(self.ops[last])

def prologue(a):
    a(f"""
    s_cmp_ge_u32 s2, 256
    s_cbranch_scc1 L_end
    {"s_memrealtime s[92:93]" if opt.pro else ""}
    s_load_dwordx16 s[4:19], s[0:1], 0
    s_load_dwordx8 s[20:27], s[0:1], 64
    s_load_dwordx2 s[28:29], s[0:1], 96
    v_lshrrev_b32 v1, 6, v0
    v_and_b32 v0, 63, v0
    v_readfirstlane_b32 s{S_WAVE}, v1
    s_and_b32 s51, s2, 7
    s_lshr_b32 s52, s2, 3
    s_lshr_b32 s{S_BR}, s51, 2
    s_and_b32 s51, s51, 3
    s_lshr_b32 s{S_B}, s52, 1
    s_and_b32 s52, s52, 1
    s_lshl_b32 s51, s51, 1
    s_add_u32 s{S_HG}, s51, s52
    s_mul_i32 s53, s{S_B}, 9
    s_lshr_b32 s53, s53, 4
    s_lshl_b32 s52, s52, 2
    s_add_u32 s{S_ROT}, s53, s52
    s_cmp_ge_u32 s{S_ROT}, 9
    s_cselect_b32 s52, 9, 0
    s_sub_u32 s{S_ROT}, s{S_ROT}, s52
    s_lshl_b32 s{S_G}, s{S_BR}, 4
    s_add_u32 s{S_G}, s{S_G}, s{S_B}
    """)
    stamp(a, 0)
    a(f"""
    s_cmp_eq_u32 s{S_BR}, 0
    s_waitcnt lgkmcnt(0)
    s_cselect_b64 s[4:5], s[4:5], s[14:15]
    s_cselect_b64 s[6:7], s[6:7], s[16:17]
    s_cselect_b64 s[8:9], s[8:9], s[18:19]
    s_cselect_b64 s[10:11], s[10:11], s[20:21]
    s_cselect_b64 s[12:13], s[12:13], s[22:23]
    s_mov_b32 s{S_ROT2}, s53
    {"s_memrealtime s[66:67]" if opt.pro else ""}
    s_cmp_lt_u32 s{S_WAVE}, 4
    s_cbranch_scc1 L_compute
    """)

def dma4(a, vbase, srdr, soff, flags, same_v=False):
    for m in range(4):
        v = vbase if same_v else vbase + m
        a(f"buffer_load_dwordx4 v{v}, s[{srdr}:{srdr+3}], s{soff} offen offset:{m*1024}{flags} lds")

def loader(a):
    vm = VM(a)
    flw = " nt" if opt.w_nt else ""
    flx = " nt" if opt.x_nt else ""
    flkv = " nt" if opt.kv_nt else ""
    SX, SWQ, SK, SV, SWO = 32, 36, 40, 44, 60
    a("L_load:")
    if opt.prio_load: a(f"s_setprio {opt.prio_load}")
    a(f"""
    s_sub_u32 s51, s{S_WAVE}, 4
    s_mul_i32 s52, s{S_B}, 73728
    """)
    srd(a, SX, S_X, 52, 73728)
    a(f"""
    v_lshrrev_b32 v12, 3, v0
    v_mul_u32_u24 v12, 1152, v12
    v_lshrrev_b32 v13, 4, v0
    v_and_b32 v14, 7, v0
    v_xor_b32 v14, v14, v13
    v_lshl_add_u32 v5, v14, 4, v12
    v_xor_b32 v14, 4, v14
    v_lshl_add_u32 v6, v14, 4, v12
    v_add_u32 v6, 8192, v6
    s_lshl_b32 s53, s51, 12
    s_lshl_b32 s59, s51, 11
    s_mul_i32 s54, s51, {16*1152}
    s_lshl_b32 s55, s{S_ROT}, 7
    s_add_u32 s54, s54, s55
    s_mov_b32 s55, s{S_ROT}
    """)
    def xblk(i):
        a(f"s_add_u32 m0, s59, {XBASE + i*8192}")
        a(f"s_add_u32 s55, s55, 1")
        for m in range(2):
            a(f"buffer_load_dwordx4 v{5+m}, s[{SX}:{SX+3}], s54 offen offset:{m*1024}{flx} lds")
        vm.issue(f"x{i}", 2)
        a(f"""
        s_add_u32 s54, s54, 128
        s_cmp_eq_u32 s55, 9
        s_cselect_b32 s55, 0, s55
        s_cselect_b32 s56, 1152, 0
        s_sub_u32 s54, s54, s56
        """)
    if opt.pro: a("s_memrealtime s[68:69]")
    xblk(0)
    a(f"""
    s_lshl_b32 s52, s{S_HG}, 10
    s_mov_b32 s56, {576*8192}
    s_sub_u32 s56, s56, s52
    s_add_u32 s{SWQ}, s{S_WQ}, s52
    s_addc_u32 s{SWQ+1}, s{S_WQ+1}, 0
    s_mov_b32 s{SWQ+2}, s56
    s_mov_b32 s{SWQ+3}, 0x20000
    s_lshl_b32 s57, s{S_ROT}, 19
    s_lshl_b32 s52, s51, 15
    s_add_u32 s57, s57, s52
    """)
    a("s_and_b32 s52, s51, 1")
    a("s_lshl_b32 s52, s52, 3")
    a("v_xor_b32 v10, s52, v0")
    for m in range(4):
        a(f"v_xor_b32 v{1+m}, {2*m}, v10")
        a(f"v_lshlrev_b32 v{1+m}, 4, v{1+m}")
        if m: a(f"v_add_u32 v{1+m}, {m*(8192-1024)}, v{1+m}")
    def wq(u):
        a(f"s_add_u32 m0, s53, {(u%4)*16384}")
        a("s_nop 0")
        dma4(a, 1, SWQ, 57, flw)
        vm.issue(f"w{u}", 4)
        a(f"s_add_u32 s57, s57, {16*8192}")
        if u % 4 == 3:
            a(f"s_cmp_ge_u32 s57, {576*8192}")
            a(f"s_cselect_b32 s56, {576*8192}, 0")
            a(f"s_sub_u32 s57, s57, s56")
    wq(0)
    if opt.pro: a("s_memrealtime s[70:71]")
    wq(1)
    a(f"""
    s_lshl_b32 s52, s{S_B}, 5
    s_lshl_b32 s56, s{S_HG}, 2
    s_add_u32 s52, s52, s56
    s_lshl_b32 s52, s52, 14
    """)
    srd(a, SK, S_K, 52, 65536)
    srd(a, SV, S_V, 52, 65536)
    a(f"""
    s_and_b32 s52, s51, 1
    s_lshl_b32 s52, s52, 3
    v_lshlrev_b32 v12, 8, v13
    v_and_b32 v14, 15, v0
    v_xor_b32 v15, v14, v13
    v_xor_b32 v15, s52, v15
    v_lshl_add_u32 v7, v15, 4, v12
    v_xor_b32 v15, 4, v15
    v_lshl_add_u32 v8, v15, 4, v12
    v_lshlrev_b32 v16, 1, v13
    v_xor_b32 v16, v16, v14
    v_lshl_add_u32 v9, v16, 4, v12
    v_xor_b32 v16, 8, v16
    v_lshl_add_u32 v10, v16, 4, v12
    s_mul_i32 s52, s{S_HG}, {512*1152}
    """)
    srd(a, SWO, S_WO, 52, 512*1152)
    a(f"""
    v_lshrrev_b32 v12, 3, v0
    v_mul_u32_u24 v12, 1152, v12
    v_lshlrev_b32 v14, 1, v13
    v_and_b32 v15, 7, v0
    v_xor_b32 v14, v14, v15
    v_lshl_add_u32 v16, v14, 4, v12
    v_add_u32 v17, 8192, v16
    v_add_u32 v18, 16384, v16
    v_add_u32 v19, 24576, v16
    """)
    def kblk(n):
        a(f"s_add_u32 m0, s59, {KBASE + n*8192}")
        a(f"s_add_u32 s56, s59, {n*8192}")
        for m in range(2):
            a(f"buffer_load_dwordx4 v{7+m}, s[{SK}:{SK+3}], s56 offen offset:{m*1024}{flkv} lds")
        vm.issue(f"k{n}", 2)
    def vblk(n):
        dst = VBASE01 + n*8192 if n < 4 else (n-4)*8192
        a(f"s_add_u32 m0, s59, {dst}")
        a(f"s_add_u32 s56, s59, {n*8192}")
        for m in range(2):
            a(f"buffer_load_dwordx4 v{9+m}, s[{SV}:{SV+3}], s56 offen offset:{m*1024}{flkv} lds")
        vm.issue(f"v{n}", 2)
    def wo_init():
        a(f"""
        s_mul_i32 s54, s51, {32*1152}
        s_lshl_b32 s52, s{S_ROT2}, 7
        s_add_u32 s54, s54, s52
        s_mov_b32 s55, s{S_ROT2}
        """)
    def wo(t):
        a(f"s_add_u32 m0, s53, {((t+2)%10)*16384}")
        if t % 4 == 3: a("s_add_u32 s55, s55, 1")
        else: a("s_nop 0")
        if not (opt.x_nodma and t >= 6): dma4(a, 16, SWO, 54, flw)
        vm.issue(f"o{t}", 4)
        if t % 4 != 3:
            a(f"s_add_u32 s54, s54, {128*1152}")
        else:
            a(f"""
            s_cmp_eq_u32 s55, 9
            s_cselect_b32 s55, 0, s55
            s_cselect_b32 s56, 1152, 0
            s_sub_u32 s54, s54, {3*128*1152-128}
            s_sub_u32 s54, s54, s56
            """)
    F = {"x": xblk, "k": kblk, "v": vblk}
    if opt.fused:
        a(f"""
        s_lshl_b32 s52, s{S_G}, 12
        s_add_u32 s52, s52, {FLAG_OFF}
        """)
        srd(a, 16, S_WS, 52, 4096)
        a(f"""
        s_mov_b32 s20, s{S_DBG}
        s_mov_b32 s21, s{S_DBG+1}
        s_mov_b32 s22, 256
        s_mov_b32 s23, 0x20000
        s_lshl_b32 s52, s{S_G}, 2
        v_mov_b32 v72, s52
        s_add_u32 s56, s{S_HG}, s51
        s_cmp_eq_u32 s56, 0
        s_cselect_b32 s98, 4096, 0
        s_mov_b32 s96, s16
        s_mov_b32 s97, s17
        s_mov_b32 s99, 0x20000
        v_mov_b32 v32, 0
        v_mov_b32 v33, 0
        v_mov_b32 v34, 0
        v_mov_b32 v35, 0
        v_lshlrev_b32 v36, 4, v0
        v_mov_b32 v31, 1
        buffer_store_dwordx4 v[32:35], v36, s[96:99], 0 offen sc1
        buffer_store_dwordx4 v[32:35], v36, s[96:99], 0 offen offset:1024 sc1
        buffer_store_dwordx4 v[32:35], v36, s[96:99], 0 offen offset:2048 sc1
        """)
        vm.issue("z", 3)
    def announce(_):
        if not opt.fused: return
        vm.wait("z")
        a("""
        s_mov_b32 s96, s20
        s_mov_b32 s97, s21
        s_lshr_b32 s98, s98, 4
        buffer_store_dword v31, v72, s[96:99], 0 offen sc1
        """)
        vm.issue("d")
    F["d"] = announce
    if opt.pro:
        a("s_memrealtime s[72:73]")
        vm.wait("x0")
        a("s_memrealtime s[74:75]")
    vm.wait("w0")
    if opt.pro: a("s_memrealtime s[76:77]")
    a("s_barrier")
    if opt.pro: a("s_memrealtime s[78:79]\ns_waitcnt lgkmcnt(0)\ns_mov_b64 s[64:65], s[92:93]")
    wq(2); wq(3)
    offs = [int(x) for x in opt.stagger.split(",")]
    if len(offs) > 1:
        a(f"s_and_b32 s52, s{S_B}, {len(offs)-1}")
        for g in range(1, len(offs)):
            a(f"s_cmp_eq_u32 s52, {g}")
            a(f"s_cbranch_scc1 L_var{g}")
    ops0 = list(vm.ops)
    for g, off in enumerate(offs):
        vm.ops = list(ops0)
        if g: a(f"L_var{g}:")
        ev = {s: [] for s in range(36)}
        for item in opt.sched.split("|"):
            st, names = item.split(":")
            st = int(st[:-1]) + off if st.endswith("+") else int(st)
            for nm in names.split(","):
                n = int(nm[1:])
                free = {"d": 1, "x": -1, "k": 4*(n-3)+3 if n >= 3 else -1, "v": 4*(n+5)+3 if n < 4 else 32+(n-4)//2}[nm[0]]
                assert st >= free, (nm, st, free)
                if nm[0] == "x": assert st < 4*n-1, (nm, st)
                ev[st].append(lambda nm=nm: F[nm[0]](int(nm[1:])))
        for s in range(36):
            need = [f"w{s+1}"] if s < 35 else [f"k{n}" for n in range(8)]
            if s % 4 == 3 and s < 35: need.append(f"x{(s+1)//4}")
            vm.wait_all(need)
            a("s_barrier")
            if s + 4 < 36: wq(s + 4)
            for f in ev[s]: f()
        if g == 0: ops1 = list(vm.ops)
        assert vm.ops[-12:] == ops1[-12:] and sorted(vm.ops) == sorted(ops1)
        if g < len(offs) - 1: a("s_branch L_att")
    a("L_att:")
    vm.ops = ops1
    wo_init()
    wo(0); wo(1)
    SP, SG, SO, SF, SD = 32, 36, 40, 16, 20
    pf = opt.part_flags
    a(f"""
    s_mul_i32 s52, s{S_G}, {8*73728}
    """)
    srd(a, SG, S_WS, 52, 8*73728)
    a(f"""
    s_mov_b32 s{SO}, s{S_OUT}
    s_mov_b32 s{SO+1}, s{S_OUT+1}
    s_mov_b32 s{SO+2}, {16*64*1152*2}
    s_mov_b32 s{SO+3}, 0x20000
    v_lshrrev_b32 v26, 5, v0
    v_bfe_u32 v27, v0, 3, 2
    v_and_b32 v28, 7, v0
    s_lshr_b32 s52, s{S_HG}, 1
    s_lshl_b32 s56, s52, 10
    s_and_b32 s57, s{S_HG}, 1
    s_lshl_b32 s57, s57, 7
    s_add_u32 s56, s56, s57
    v_lshlrev_b32 v22, 12, v26
    v_lshl_add_u32 v22, v27, 8, v22
    v_lshl_add_u32 v22, v28, 4, v22
    v_add_u32 v22, s56, v22
    v_mul_u32_u24 v23, 2304, v28
    v_lshl_add_u32 v23, v26, 6, v23
    v_lshl_add_u32 v23, v27, 3, v23
    s_lshl_b32 s52, s52, 5
    v_lshl_add_u32 v24, v28, 2, s52
    v_bfe_u32 v29, v0, 3, 1
    v_lshl_add_u32 v25, v29, 7, v24
    s_lshl_b32 s52, s{S_B}, 6
    s_lshl_b32 s56, s{S_HG}, 3
    s_add_u32 s52, s52, s56
    s_mul_i32 s52, s52, 2304
    s_mul_i32 s56, s{S_BR}, 1152
    s_add_u32 s15, s52, s56
    """)
    if opt.fused:
        a(f"buffer_load_dword v29, v72, s[{SD}:{SD+3}], 0 offen sc1")
        vm.issue("dbg")
    vm.wait_all([f"v{n}" for n in range(8)])
    a("s_barrier")
    wo(2); wo(3)
    vm.wait("o0")
    a("s_barrier")
    wo(4); wo(5)
    def spin(tag, reg, load, label):
        vm.wait(tag)
        a(f"""
        s_mov_b32 s46, 0x8000
        {label}:
        v_cmp_ne_u32 vcc, 1, v{reg}
        s_sub_u32 s46, s46, 1
        s_cbranch_scc1 {label}_ok
        s_nop 3
        s_cbranch_vccz {label}_ok
        s_sleep 2
        {load}
        s_waitcnt vmcnt(0)
        s_branch {label}
        {label}_ok:
        """)
    def task_setup(t_add):
        a(f"""
        s_add_u32 s52, s51, {t_add}
        s_add_u32 s56, s52, s{S_ROT2}
        s_cmp_ge_u32 s56, 9
        s_cselect_b32 s57, 9, 0
        s_sub_u32 s56, s56, s57
        s_lshl_b32 s52, s52, 8
        """)
    def poll_ld(last):
        return f"buffer_load_dword v29, v25, s[{SF}:{SF+3}], s52 offen sc1"
    def gather(base, tag):
        a("s_lshl_b32 s57, s56, 13")
        for src in range(8):
            a(f"buffer_load_dwordx4 {vr(base+4*src,4)}, v22, s[{SG}:{SG+3}], s57 offen sc1")
            if src < 7: a("s_add_u32 s57, s57, 73728")
        vm.issue(tag, 8)
    def total(base, sreg, tag, later):
        for src in range(8):
            a(f"s_waitcnt vmcnt({7-src+later})")
            for e in range(4):
                x = base + 4*src + e
                if src == 0:
                    a(f"v_lshlrev_b32 v{64+2*e}, 16, v{x}")
                    a(f"v_and_b32 v{65+2*e}, 0xffff0000, v{x}")
                else:
                    a(f"v_lshlrev_b32 v74, 16, v{x}")
                    a(f"v_and_b32 v75, 0xffff0000, v{x}")
                    a(f"v_pk_add_f32 {vr(64+2*e,2)}, {vr(64+2*e,2)}, v[74:75]")
        for e in range(4):
            a(cvt(76+e, 64+2*e))
        a(f"s_lshl_b32 s57, s{sreg}, 7")
        a("s_add_u32 s57, s57, s15")
        a(f"buffer_store_dwordx2 v[76:77], v23, s[{SO}:{SO+3}], s57 offen")
        a(f"buffer_store_dwordx2 v[78:79], v23, s[{SO}:{SO+3}], s57 offen offset:32")
        vm.issue("out", 2)
    nxt = 6
    for i in range(18):
        vm.wait(f"o{min(2*i+2, 35)}")
        a("s_barrier")
        if i == 1 and opt.fused:
            spin("dbg", 29, f"buffer_load_dword v29, v72, s[{SD}:{SD+3}], 0 offen sc1", "L_dbg")
        for _ in range(opt.lead - 5 if i == 0 else 2):
            if nxt < 36:
                assert nxt <= 2*i + 9
                wo(nxt); nxt += 1
        if opt.fused and i == 15:
            task_setup(0); a(poll_ld(False)); vm.issue("poll0")
        if opt.fused and i == 16:
            spin("poll0", 29, poll_ld(False), "L_poll0")
            gather(80, "g0")
            a("s_mov_b32 s59, s56")
    assert nxt == 36
    if opt.fused:
        task_setup(4); a(poll_ld(False)); vm.issue("poll1")
        later = len(vm.ops) - 1 - max(i for i, t in enumerate(vm.ops) if t == "g0")
        total(80, 59, "g0", later)
        spin("poll1", 29, poll_ld(False), "L_poll1")
        gather(80, "g1")
        total(80, 56, "g1", 0)
        a("s_cmp_lg_u32 s51, 0")
        a("s_cbranch_scc1 L_load_end")
        task_setup(8); a(poll_ld(True)); vm.issue("poll2")
        spin("poll2", 29, poll_ld(True), "L_poll2")
        gather(80, "g2")
        total(80, 56, "g2", 0)
        a("L_load_end:")
        if opt.stamps and not (opt.ltime or opt.pro):
            a("s_waitcnt vmcnt(0)")
            stamp(a, 0)
            stamp_flush(a, 1)
    if opt.ltime or opt.pro: stamp_flush(a, 8)
    a("s_endpgm")

def mfma(a, d, A, B, C=None):
    c = "0" if C == "zero" else vr(d if C is None else C, 4)
    a(f"v_mfma_f32_16x16x32_bf16 {vr(d,4)}, {vr(A,4)}, {vr(B,4)}, {c}")

def weave(a, mf, fill, per=lambda k: 1, start=0):
    fill = list(fill)
    for k, m in enumerate(mf):
        m()
        if k >= start:
            for _ in range(per(k)):
                if fill: a(fill.pop(0))
    for f in fill: a(f)

def cvt(d, s0):
    return f"v_cvt_pk_bf16_f32 v{d}, v{s0}, v{s0+1}"

def xreduce(a, op, m, t, mid):
    a("s_nop 1")
    a(f"v_permlane16_swap_b32 v{m[0]}, v{m[1]}")
    a(f"v_permlane16_swap_b32 v{m[2]}, v{m[3]}")
    a("s_nop 0")
    a(f"{op} v{m[0]}, v{m[0]}, v{m[1]}")
    a(f"{op} v{m[2]}, v{m[2]}, v{m[3]}")
    a("s_nop 1")
    a(f"v_permlane32_swap_b32 v{m[0]}, v{m[2]}")
    a("s_nop 1")
    a(f"{op} v{m[0]}, v{m[0]}, v{m[2]}")
    mid(m[0])
    a(f"v_mov_b32 v{m[2]}, v{m[0]}")
    a("s_nop 1")
    a(f"v_permlane32_swap_b32 v{m[0]}, v{m[2]}")
    a("s_nop 1")
    a(f"v_mov_b32 v{m[1]}, v{m[0]}")
    a(f"v_mov_b32 v{m[3]}, v{m[2]}")
    a("s_nop 1")
    a(f"v_permlane16_swap_b32 v{m[0]}, v{m[1]}")
    a(f"v_permlane16_swap_b32 v{m[2]}, v{m[3]}")
    a("s_nop 1")

def compute(a):
    FB = [128, 176]
    AW, AX, L16, ROW4, C8, AK = 224, 232, 236, 237, 238, 240
    a("L_compute:")
    if opt.prio_comp: a(f"s_setprio {opt.prio_comp}")
    a(f"""
    v_lshrrev_b32 v1, 4, v0
    v_and_b32 v2, 15, v0
    v_lshrrev_b32 v{ROW4}, 2, v0
    v_and_b32 v3, 3, v0
    v_lshlrev_b32 v{C8}, 3, v3
    v_lshlrev_b32 v{L16}, 4, v0
    s_lshl_b32 s51, s{S_WAVE}, 8
    v_lshl_add_u32 v4, v{ROW4}, 10, v{C8}
    v_add_u32 v4, s51, v4
    v_and_b32 v5, 7, v{ROW4}
    """)
    for dt in range(8):
        a(f"v_xor_b32 v6, {dt}, v5")
        a(f"v_lshl_add_u32 v{AW+dt}, v6, 5, v4")
    a(f"""
    v_lshrrev_b32 v4, 3, v2
    v_lshlrev_b32 v4, 10, v4
    v_and_b32 v5, 7, v2
    v_lshl_add_u32 v4, v5, 7, v4
    v_and_b32 v5, 1, v1
    v_lshlrev_b32 v7, 3, v5
    v_add_u32 v4, v4, v7
    v_add_u32 v4, {XBASE}, v4
    v_lshrrev_b32 v8, 1, v1
    v_lshrrev_b32 v5, 1, v2
    v_xor_b32 v5, v5, v8
    """)
    for sp in range(4):
        a(f"v_xor_b32 v6, {2*sp}, v5")
        a(f"v_lshl_add_u32 v{AX+sp}, v6, 4, v4")
    a(f"""
    s_lshl_b32 s51, s{S_WAVE}, 14
    s_add_u32 s52, s51, {KBASE}
    v_lshl_add_u32 v4, v2, 8, v7
    v_add_u32 v4, s52, v4
    v_xor_b32 v5, v2, v8
    """)
    for i in range(8):
        a(f"v_xor_b32 v6, {2*i}, v5")
        a(f"v_lshl_add_u32 v{AK+i}, v6, 4, v4")
    a(f"""
    s_add_u32 s52, s51, {VBASE01}
    s_cmp_ge_u32 s{S_WAVE}, 2
    s_cselect_b32 s53, {LDS_BYTES}, 0
    s_sub_u32 s52, s52, s53
    s_lshl_b32 s53, s{S_G}, 3
    s_add_u32 s53, s53, s{S_HG}
    s_mul_i32 s53, s53, 73728
    """)
    srd(a, 32, S_WS, 53, 73728)
    for i in range(128):
        a(f"v_mov_b32 v{i}, 0")
    def reads(u):
        fb = FB[(u >> 1) & 1] + 2*(u & 1)
        r = [f"ds_read_b64_tr_b16 {vr(fb+4*dt,2)}, v{AW+dt} offset:{(u%4)*16384}" for dt in range(8)]
        x = [f"ds_read_b64 {vr(fb+32+4*qt,2)}, v{AX+u%4} offset:{qt*2048}" for qt in range(4)]
        return x + r
    def half(buf, hf):
        return [lambda dt=dt, qt=qt: mfma(a, 16*dt+4*qt, FB[buf]+4*dt, FB[buf]+32+4*qt) for dt in range(4*hf, 4*hf+4) for qt in range(4)]
    def interval(buf, hf, rd, pre=(), mark=True):
        mf = half(buf, hf)
        if opt.steps and mark: a("s_memrealtime s[96:97]")
        weave(a, mf[:15], list(pre) + rd)
        a("s_waitcnt lgkmcnt(0)")
        if opt.steps and mark: a("v_writelane_b32 v250, s96, m0\ns_add_u32 m0, m0, 1")
        mf[15]()
    a("s_barrier")
    stamp(a, 1)
    for r in reads(0): a(r)
    a("s_mov_b32 s54, 9")
    if opt.steps: a("s_mov_b32 m0, 0\nv_mov_b32 v250, 0")
    a("s_waitcnt lgkmcnt(0)")
    a("s_barrier")
    for r in reads(1): a(r)
    a("s_waitcnt lgkmcnt(0)")
    a("L_g1_loop:")
    a("s_barrier")
    interval(0, 0, reads(2))
    a("s_barrier")
    interval(0, 1, reads(3), pre=["s_sub_u32 s54, s54, 1"])
    a("""
    s_cmp_eq_u32 s54, 0
    s_cbranch_scc1 L_g1_last
    s_barrier
    """)
    interval(1, 0, reads(4), pre=[f"v_add_u32 v{AX}, 8192, v{AX}"])
    a("s_barrier")
    interval(1, 1, reads(5), pre=[f"v_add_u32 v{AX+i}, 8192, v{AX+i}" for i in range(1, 4)])
    a("s_branch L_g1_loop")
    a("L_g1_last:")
    a("s_barrier")
    if opt.steps:
        a(f"""
        s_lshl_b32 s60, s2, 2
        s_add_u32 s60, s60, s{S_WAVE}
        s_lshl_b32 s60, s60, 8
        s_add_u32 s60, s60, {STAMP_OFF + (1 << 20)}
        s_add_u32 s56, s{S_WS}, s60
        s_addc_u32 s57, s{S_WS+1}, 0
        s_mov_b32 s58, 256
        s_mov_b32 s59, 0x20000
        v_lshrrev_b32 v251, 2, v{L16}
        buffer_store_dword v250, v251, s[56:59], 0 offen
        """)
    KF = lambda kt, ds: 128 + 16*ds + 4*kt
    krd = lambda ds: [f"ds_read_b64 {vr(KF(kt,ds)+2*jj,2)}, v{AK+2*ds+jj} offset:{kt*4096}" for kt in range(4) for jj in range(2)]
    weave(a, half(1, 0), krd(0) + krd(1) + krd(2), per=lambda k: 2)
    def qcvt(ds):
        return [cvt(16*ds+4*qt+2*u+e, 32*ds+16*u+4*qt+2*e) for qt in range(4) for u in range(2) for e in range(2)]
    av = [f"v_lshl_add_u32 v248, v{ROW4}, 8, v{C8}", "v_add_u32 v248, s52, v248", f"v_and_b32 v249, 7, v{ROW4}"]
    for dt in range(8):
        av += [f"v_xor_b32 v239, {dt}, v249", f"v_lshl_add_u32 v{AW+dt}, v239, 5, v248"]
    weave(a, half(1, 1), krd(3) + qcvt(0) + qcvt(1)[:8], per=lambda k: 2)
    stamp(a, 2)
    for x in qcvt(1)[8:] + av[:3] + qcvt(2) + qcvt(3): a(x)
    a("s_waitcnt lgkmcnt(0)")
    S = lambda kt, qt: 64 + 16*kt + 4*qt
    g2 = [lambda ds=ds, kt=kt, qt=qt: mfma(a, S(kt, qt), KF(kt, ds), 16*ds+4*qt, "zero" if ds == 0 else None)
          for ds in range(4) for kt in range(4) for qt in range(4)]
    cbits = struct.unpack("<I", struct.pack("<f", math.log2(math.e) / math.sqrt(128.0)))[0]
    weave(a, g2, av[3:] + [f"s_mov_b32 s56, {hex(cbits)}", f"s_mov_b32 s57, {hex(cbits)}"])
    stamp(a, 3)
    VF = lambda dt, ks: 128 + 32*ks + 4*dt
    vrd = [f"ds_read_b64_tr_b16 {vr(VF(dt,ks)+2*j,2)}, v{AW+dt} offset:{ks*8192+j*4096}" for ks in range(2) for dt in range(8) for j in range(2)]
    vals = [[S(kt, qt) + e for kt in range(4) for e in range(4)] for qt in range(4)]
    M = [240, 242, 244, 246]; SUM = [232, 234, 248, 250]
    for qt in range(4):
        a(f"v_max3_f32 v{M[qt]}, v{vals[qt][0]}, v{vals[qt][1]}, v{vals[qt][2]}")
    for i in range(3, 15, 2):
        for qt in range(4):
            a(f"v_max3_f32 v{M[qt]}, v{M[qt]}, v{vals[qt][i]}, v{vals[qt][i+1]}")
    for qt in range(4):
        a(f"v_max_f32 v{M[qt]}, v{M[qt]}, v{vals[qt][15]}")
    xreduce(a, "v_max_f32", M, None, lambda u: a(f"v_mul_f32 v{u}, s56, v{u}"))
    for i in range(0, 16, 2):
        for qt in range(4):
            x = vals[qt][i]
            a(f"v_pk_fma_f32 {vr(x,2)}, {vr(x,2)}, s[56:57], {vr(M[qt],2)} op_sel_hi:[1,1,0] neg_lo:[0,0,1] neg_hi:[0,0,1]")
    for i in range(16):
        for qt in range(4):
            a(f"v_exp_f32 v{vals[qt][i]}, v{vals[qt][i]}")
    for qt in range(4):
        a(f"v_pk_add_f32 {vr(SUM[qt],2)}, {vr(vals[qt][0],2)}, {vr(vals[qt][2],2)}")
    for i in range(4, 16, 2):
        for qt in range(4):
            a(f"v_pk_add_f32 {vr(SUM[qt],2)}, {vr(SUM[qt],2)}, {vr(vals[qt][i],2)}")
    for qt in range(4):
        a(f"v_add_f32 v{SUM[qt]}, v{SUM[qt]}, v{SUM[qt]+1}")
    xreduce(a, "v_add_f32", SUM, None, lambda u: a(f"v_rcp_f32 v{u}, v{u}\ns_nop 0"))
    a("s_barrier")
    PF = lambda ks, qt: 192 + 16*ks + 4*qt
    for i in range(0, 16, 2):
        for qt in range(4):
            x = vals[qt][i]
            a(f"v_pk_mul_f32 {vr(x,2)}, {vr(x,2)}, {vr(SUM[qt],2)} op_sel_hi:[1,0]")
            a(vrd.pop(0))
    for ks in range(2):
        for qt in range(4):
            for u in range(2):
                for e in range(2):
                    a(cvt(PF(ks, qt)+2*u+e, S(2*ks+u, qt)+2*e))
    a("s_waitcnt lgkmcnt(0)")
    a("s_nop 0")
    stamp(a, 4)
    g3 = [lambda ks=ks, dt=dt, qt=qt: mfma(a, 16*dt+4*qt, VF(dt, ks), PF(ks, qt), "zero" if ks == 0 else None)
          for ks in range(2) for dt in range(8) for qt in range(4)]
    OW, OR0, OR1, PV, AOB, AO, FV, ONE = 242, 243, 244, 245, 246, 248, 252, 253
    ad = f"""
    s_lshr_b32 s53, s{S_WAVE}, 1
    s_and_b32 s55, s{S_WAVE}, 1
    v_add_u32 v{OW}, s52, v{L16}
    s_lshl_b32 s55, s55, 11
    v_add_u32 v{OR1}, s55, v{L16}
    v_add_u32 v{OR0}, {VBASE01}, v{OR1}
    s_lshl_b32 s55, s{S_WAVE}, 11
    v_add_u32 v{PV}, s55, v{L16}
    s_lshl_b32 s53, s53, 1
    v_lshl_add_u32 v239, v{ROW4}, 7, v{C8}
    v_bfe_u32 v240, v{ROW4}, 1, 2
    v_xor_b32 v240, s53, v240
    v_lshl_add_u32 v{AOB}, v240, 5, v239
    v_xor_b32 v240, 1, v240
    v_lshl_add_u32 v{AOB+1}, v240, 5, v239
    v_add_u32 v{AO}, {WO_RING}, v{AOB}
    v_add_u32 v{AO+1}, {WO_RING}, v{AOB+1}
    s_lshl_b32 s55, s{S_G}, 12
    s_add_u32 s55, s55, {FLAG_OFF}
    s_add_u32 s36, s{S_WS}, s55
    s_addc_u32 s37, s{S_WS+1}, 0
    s_mov_b32 s38, 0
    s_mov_b32 s39, 0x20000
    s_lshl_b32 s55, s{S_WAVE}, 6
    s_lshl_b32 s53, s{S_HG}, 2
    s_add_u32 s55, s55, s53
    v_lshl_add_u32 v{FV}, v{L16}, 1, s55
    v_mov_b32 v{ONE}, 0x10000
    v_cmp_gt_u32 vcc, 32, v{L16}
    s_nop 0
    s_nop 0
    v_cndmask_b32 v{FV}, v{ONE}, v{FV}, vcc
    v_mov_b32 v{ONE}, 1
    """.strip().split("\n")
    OF = lambda k4, qt: 128 + 16*k4 + 4*qt
    def ocvt(k4):
        r = []
        for qt in range(4):
            r += [cvt(OF(k4, qt)+2*u+e, 32*k4+16*u+4*qt+2*e) for u in range(2) for e in range(2)]
            r.append(f"ds_write_b128 v{OW}, {vr(OF(k4,qt),4)} offset:{(k4*4+qt)*1024}")
        return r
    weave(a, g3[:48], ad)
    weave(a, g3[48:], ocvt(0), per=lambda k: 2, start=4)
    for k4 in range(1, 4):
        for x in ocvt(k4): a(x)
    a("s_waitcnt lgkmcnt(0)")
    a("s_barrier")
    stamp(a, 5)
    ACCA, ACCB, WB, PK = 128, 144, 160, 192
    def wread(k4, ni):
        return [f"ds_read_b64_tr_b16 {vr((200 if opt.x_dbuf else WB)+8*k4+4*ni+2*j,2)}, v{AO+ni} offset:{k4*4096+j*2048}" for j in range(2)]
    for h in range(4):
        for k4 in range(4):
            for qi in range(2):
                a(f"ds_read_b128 {vr(32*h+8*k4+4*qi,4)}, v{OR0 if h < 2 else OR1} offset:{(h&1)*16384+(k4*4+qi)*1024}")
    for k4 in range(4):
        for ni in range(2):
            for r in wread(k4, ni)[:1 if (k4, ni) == (3, 1) else 2]: a(r)
    a(f"""
    s_mov_b32 s54, 0
    s_mov_b32 s55, {WO_RING+16384}
    v_add_u32 v{AO}, s55, v{AOB}
    s_mov_b32 s34, 0
    s_mov_b32 s58, 0
    s_lshl_b32 s59, s{S_ROT2}, 13
    s_mov_b32 s60, -512
    {"s_mov_b32 m0, 0" if opt.steps2 else ""}
    {"s_memrealtime s[96:97]" if opt.steps2 else ""}
    s_waitcnt lgkmcnt(0)
    L_p2_loop:
    """)
    def drain():
        d = []
        for qi in range(2):
            d += [cvt(PK+4*qi+2*ni+e, ACCB+8*qi+4*ni+2*e) for ni in range(2) for e in range(2)]
            d.append(f"buffer_store_dwordx4 {vr(PK+4*qi,4)}, v{PV}, s[32:35], s58 offen offset:{qi*1024} {opt.part_flags}".rstrip() if not opt.x_nostore else "s_nop 0")
        return d
    flagst = f"buffer_store_dword v{ONE}, v{FV}, s[36:39], s60 offen sc1" if opt.fused else "s_nop 0"
    for kq in range(4):
        if kq % 2 == 0:
            if opt.steps2: a("s_waitcnt lgkmcnt(0)\nv_writelane_b32 v250, s96, m0\ns_add_u32 m0, m0, 1")
            a("s_barrier")
            if opt.steps2: a("s_memrealtime s[96:97]")
        dr = drain()
        cv = [x for x in dr if x.startswith("v_cvt")]
        st = [x for x in dr if not x.startswith("v_cvt")]
        pos = [int(c) for c in opt.st_pos]
        ex = {0: [None]*2 + cv, 1: [None]*10, 2: [None]*10, 3: [None]*10}[kq]
        if kq == 2:
            ex[0:5] = ["s_mov_b32 s34, 73728", "s_mov_b32 s58, s59", "s_add_u32 s59, s59, 8192", "s_cmp_eq_u32 s59, 73728", "s_cselect_b32 s59, 0, s59"]
        if kq == 3:
            ex[0:3] = ["s_add_u32 s54, s54, 1", "s_cmp_ge_u32 s54, 3", "s_cselect_b32 s38, 4096, 0"]
            ex[8] = "s_waitcnt vmcnt(2)\n" + flagst
            ex[9] = "s_add_u32 s60, s60, 256"
        if kq == 1:
            ex[pos[0]] = st[0]; ex[pos[1]] = st[1]
        if kq == 0:
            slot = {10: "s_add_u32 s55, s55, 16384", 13: f"s_cmp_eq_u32 s55, {LDS_BYTES}\ns_cselect_b32 s55, 0, s55"}
        else:
            slot = {5: "s_add_u32 s55, s55, 16384", 6: f"s_cmp_eq_u32 s55, {LDS_BYTES}", 7: "s_cselect_b32 s55, 0, s55"}
        nfree = 0
        for k4 in range(4):
            for ni in range(2):
                for qi in range(2):
                    first = kq == 0 and k4 == 0
                    last = kq == 3 and k4 == 3
                    t = 8*qi + 4*ni
                    if last: mfma(a, ACCB+t, WB+8*k4+4*ni, 32*kq+8*k4+4*qi, ACCA+t)
                    else: mfma(a, ACCA+t, WB+8*k4+4*ni, 32*kq+8*k4+4*qi, "zero" if first else None)
                    g = 4*k4 + 2*ni + qi
                    if not opt.x_noread:
                        if qi == 1: a(wread(k4, ni)[0])
                        else:
                            pk4, pni = (k4, 0) if ni == 1 else ((k4 - 1) % 4, 1)
                            a(wread(pk4, pni)[1])
                    if g % 4 == 3:
                        a("s_waitcnt lgkmcnt(11)" if not opt.x_nowait else "s_nop 0")
                    elif g == 0:
                        a(f"v_add_u32 v{AO+1}, s55, v{AOB+1}")
                    elif g == 14:
                        a(f"v_add_u32 v{AO}, s55, v{AOB}")
                    else:
                        if nfree in slot and (kq == 0 and False): pass
                        x = None
                        if kq == 0:
                            x = ex.pop(0) if ex else None
                        else:
                            x = slot.pop(nfree, None)
                            y = ex.pop(0)
                            assert not (x and y)
                            x = x or y
                        if x: a(x)
                        nfree += 1
                    if kq == 0 and g in slot: a(slot.pop(g))
        assert not [x for x in ex if x] and not slot, (kq, ex, slot)
    a("""
    s_cmp_lg_u32 s54, 9
    s_cbranch_scc1 L_p2_loop
    s_nop 7
    """)
    if opt.steps2:
        a(f"""
        s_waitcnt lgkmcnt(0)
        v_writelane_b32 v250, s96, m0
        s_lshl_b32 s61, s2, 2
        s_add_u32 s61, s61, s{S_WAVE}
        s_lshl_b32 s61, s61, 8
        s_add_u32 s61, s61, {STAMP_OFF + (1 << 20)}
        s_add_u32 s40, s{S_WS}, s61
        s_addc_u32 s41, s{S_WS+1}, 0
        s_mov_b32 s42, 256
        s_mov_b32 s43, 0x20000
        v_lshrrev_b32 v251, 2, v{L16}
        buffer_store_dword v250, v251, s[40:43], 0 offen
        """)
    for d in drain(): a(d)
    if opt.fused:
        a("s_waitcnt vmcnt(2)\n" + flagst + "\ns_add_u32 s60, s60, 256\ns_waitcnt vmcnt(1)\n" + flagst)
    stamp(a, 6)
    if opt.stamps:
        a("s_waitcnt vmcnt(0)")
        stamp(a, 7)
        stamp_flush(a, 8)
    a("L_end:")
    a("s_endpgm")

def reduce_kernel(a):
    a(f"""
    s_cmp_ge_u32 s2, 256
    s_cbranch_scc1 L_rend
    s_load_dwordx2 s[4:5], s[0:1], 80
    s_load_dwordx2 s[6:7], s[0:1], 96
    v_lshrrev_b32 v1, 6, v0
    v_and_b32 v0, 63, v0
    v_readfirstlane_b32 s3, v1
    s_lshr_b32 s8, s2, 3
    s_and_b32 s9, s2, 7
    v_lshrrev_b32 v1, 3, v0
    v_and_b32 v2, 7, v0
    v_lshrrev_b32 v3, 2, v1
    v_and_b32 v5, 3, v1
    s_lshr_b32 s10, s9, 1
    s_and_b32 s11, s9, 1
    s_lshl_b32 s10, s10, 10
    s_lshl_b32 s11, s11, 7
    s_add_u32 s10, s10, s11
    s_lshl_b32 s11, s3, 13
    s_add_u32 s10, s10, s11
    v_lshlrev_b32 v6, 6, v3
    v_lshlrev_b32 v3, 12, v3
    v_lshl_add_u32 v3, v5, 8, v3
    v_lshl_add_u32 v3, v2, 4, v3
    v_add_u32 v3, s10, v3
    v_lshl_add_u32 v6, v5, 3, v6
    s_mul_i32 s12, s8, {8*73728}
    s_and_b32 s13, s8, 15
    s_lshr_b32 s14, s8, 4
    s_lshl_b32 s13, s13, 6
    s_lshl_b32 s15, s9, 3
    s_add_u32 s13, s13, s15
    s_mul_i32 s13, s13, 2304
    s_mul_i32 s14, s14, 1152
    s_add_u32 s13, s13, s14
    s_lshl_b32 s14, s3, 7
    s_add_u32 s13, s13, s14
    v_mul_u32_u24 v4, 2304, v2
    v_add_u32 v4, v6, v4
    s_waitcnt lgkmcnt(0)
    s_add_u32 s16, s6, s12
    s_addc_u32 s17, s7, 0
    s_mov_b32 s18, {8*73728}
    s_mov_b32 s19, 0x20000
    s_mov_b32 s20, s4
    s_mov_b32 s21, s5
    s_mov_b32 s22, {16*64*1152*2}
    s_mov_b32 s23, 0x20000
    """)
    for s in range(8):
        a(f"s_mov_b32 s24, {s*73728}")
        a(f"buffer_load_dwordx4 {vr(8+4*s,4)}, v3, s[16:19], s24 offen")
    for s in range(8):
        a(f"s_waitcnt vmcnt({7-s})")
        for e in range(4):
            x = 8+4*s+e
            if s == 0:
                a(f"v_lshlrev_b32 v{40+2*e}, 16, v{x}")
                a(f"v_and_b32 v{41+2*e}, 0xffff0000, v{x}")
            else:
                a(f"v_lshlrev_b32 v48, 16, v{x}")
                a(f"v_and_b32 v49, 0xffff0000, v{x}")
                a(f"v_pk_add_f32 {vr(40+2*e,2)}, {vr(40+2*e,2)}, v[48:49]")
    for e in range(4):
        a(f"v_cvt_pk_bf16_f32 v{8+e}, v{40+2*e}, v{41+2*e}")
    a("buffer_store_dwordx2 v[8:9], v4, s[20:23], s13 offen")
    a("buffer_store_dwordx2 v[10:11], v4, s[20:23], s13 offen offset:32")
    if opt.stamps:
        a(f"""
        s_waitcnt vmcnt(0)
        s_memrealtime s[24:25]
        s_cmp_ge_u32 s3, 4
        s_cbranch_scc1 L_rend
        s_lshl_b32 s26, s2, 3
        s_add_u32 s26, s26, s3
        s_lshl_b32 s26, s26, 7
        s_add_u32 s26, s26, {STAMP_OFF}
        s_add_u32 s16, s6, s26
        s_addc_u32 s17, s7, 0
        s_mov_b32 s18, 128
        s_waitcnt lgkmcnt(0)
        v_mov_b32 v8, s24
        v_mov_b32 v9, s25
        v_mov_b32 v10, 0
        buffer_store_dwordx2 v[8:9], v10, s[16:19], 0 offen offset:120
        """)
    a("L_rend:")
    a("s_endpgm")

def diag_kernel(a):
    a(f"""
    s_cmp_ge_u32 s2, 1
    s_cbranch_scc1 L_dend
    s_load_dwordx2 s[6:7], s[0:1], 96
    v_lshrrev_b32 v1, 2, v0
    v_and_b32 v2, 3, v0
    v_lshlrev_b32 v1, 10, v1
    v_lshl_add_u32 v1, v2, 7, v1
    s_waitcnt lgkmcnt(0)
    s_add_u32 s8, s6, {STAMP_OFF}
    s_addc_u32 s9, s7, 0
    s_mov_b32 s10, {256*1024}
    s_mov_b32 s11, 0x20000
    """)
    for i in range(16):
        a(f"s_mov_b32 s12, {i*16384}")
        a(f"buffer_load_dword v{8+i}, v1, s[8:11], s12 offen")
        a(f"buffer_load_dword v{24+i}, v1, s[8:11], s12 offen offset:{8*opt.diag}")
    a("s_waitcnt vmcnt(0)")
    a("v_readfirstlane_b32 s13, v8")
    a("s_sub_u32 s13, s13, 100000")
    a("s_nop 1")
    for i in range(32):
        a(f"v_subrev_u32 v{8+i}, s13, v{8+i}")
    for i in range(1, 16):
        a(f"v_min_u32 v8, v8, v{8+i}")
        a(f"v_max_u32 v24, v24, v{24+i}")
    a("s_mov_b32 s14, -1\ns_mov_b32 s15, 0\ns_nop 1")
    for l in range(64):
        a(f"v_readlane_b32 s16, v8, {l}")
        a(f"v_readlane_b32 s17, v24, {l}")
        a("s_nop 3")
        a("s_min_u32 s14, s14, s16")
        a("s_max_u32 s15, s15, s17")
    a("""
    s_sub_u32 s15, s15, s14
    s_min_u32 s15, s15, 20000
    s_mul_i32 s15, s15, 10
    s_memrealtime s[18:19]
    s_waitcnt lgkmcnt(0)
    L_dspin:
    s_memrealtime s[20:21]
    s_waitcnt lgkmcnt(0)
    s_sub_u32 s20, s20, s18
    s_cmp_lt_u32 s20, s15
    s_cbranch_scc1 L_dspin
    L_dend:
    s_endpgm
    """)

def kd(name, vgpr, sgpr):
    acc = (vgpr + 3)//4*4
    return f""".section .rodata,"a"
.p2align 6
.amdhsa_kernel {name}
  .amdhsa_next_free_vgpr {vgpr}
  .amdhsa_next_free_sgpr {sgpr}
  .amdhsa_accum_offset {acc}
  .amdhsa_group_segment_fixed_size 0
  .amdhsa_kernarg_size 104
  .amdhsa_user_sgpr_count 2
  .amdhsa_user_sgpr_kernarg_segment_ptr 1
  .amdhsa_system_sgpr_workgroup_id_x 1
.end_amdhsa_kernel
"""

def build():
    main = NAME + "_kernel"
    red = "mha_reduce_kernel"
    out = []
    single = opt.fused and opt.diag < 0 and not opt.extra_launch
    if single:
        out.append(f"; @launch grid=(256,1,1) block=(512,1,1) lds={LDS_BYTES}")
    else:
        out.append(f"; @launch kernel={main} grid=(256,1,1) block=(512,1,1) lds={LDS_BYTES}")
    if not opt.fused:
        out.append(f"; @launch kernel={red} grid=(256,1,1) block=(576,1,1) lds=0")
    if opt.diag >= 0:
        out.append(f"; @launch kernel=diag_kernel grid=(1,1,1) block=(64,1,1) lds=0")
    for _ in range(opt.extra_launch):
        out.append(f"; @launch kernel=nop_kernel grid=(1,1,1) block=(64,1,1) lds=0")
    out.append('.amdgcn_target "amdgcn-amd-amdhsa--gfx950"')
    out.append(".text")
    a = Asm()
    prologue(a); loader(a); compute(a)
    out.append(f".globl {main}\n.p2align 8\n.type {main},@function\n{main}:")
    out.append(a.text())
    if not opt.fused:
        a = Asm(); reduce_kernel(a)
        out.append(f".globl {red}\n.p2align 8\n.type {red},@function\n{red}:")
        out.append(a.text())
    if opt.diag >= 0:
        a = Asm(); diag_kernel(a)
        out.append(".globl diag_kernel\n.p2align 8\n.type diag_kernel,@function\ndiag_kernel:\n" + a.text())
        out.append(kd("diag_kernel", 48, 32))
        out.append(".text")
    if opt.extra_launch:
        out.append(".globl nop_kernel\n.p2align 8\n.type nop_kernel,@function\nnop_kernel:\n    s_endpgm\n")
        out.append(kd("nop_kernel", 8, 16))
        out.append(".text")
    out.append(kd(main, 256, 102))
    if not opt.fused: out.append(kd(red, 56, 32))
    return "\n".join(out)

if __name__ == "__main__":
    path = sys.argv[1]
    for kv in sys.argv[2:]:
        k, v = kv.split("=", 1)
        cur = getattr(opt, k)
        setattr(opt, k, type(cur)(int(v)) if isinstance(cur, (bool, int)) else v)
    open(path, "w").write(build())
```

```python
import sys, math, struct

NAME = "concat_heads__mha_block_cached__gqa_block_cached__near_ridge"

class Opt:
    kv_nt = True
    w_nt = False
    x_nt = False
    part_flags = "sc1"
    stamps = False
    pf_v = True
    pf_wo = True
    prio_load = 0
    extra_launch = 0
    ltime = 0
    pro = 0
    steps = 0
    x_nodma = 0
    x_noread = 0
    x_nowait = 0
    x_nochain = 0
    x_nostore = 0
    x_dbuf = 0
    st_pos = "1516"
    nmark = 2
    d18 = 0
    defer = 1
    xpose = 1
    steps2 = 0
    flag_pos = 1
    g0_at = 14
    g0_split = 4
    sleep = 8
    sleep8 = 2
    st_late = 0
    out_flags = ""
    x_nodsw = 0
    lead = 7
    pub_late = 0
    x_nopub = 0
    fused = 1
    prio_comp = 0
    sched = "0:x1|2:d0|1+:x2,x3,k0|7+:x4,x5,k1,k2,k3|15+:x6,x7,k4,k5,k6|23+:x8,k7,v0|31:v1,v2|32:v4|33:v5|35:v6,v7,v3"
    stagger = "0"
    p2quota = "222222222222222"
    diag = -1
opt = Opt()

class Asm:
    def __init__(self):
        self.l = []
    def __call__(self, s):
        for x in s.strip("\n").split("\n"):
            if not x.strip(): continue
            self.l.append("    " + x.strip() if not x.strip().endswith(":") else x.strip())
    def c(self, s):
        self.l.append("    ; " + s)
    def text(self):
        return "\n".join(self.l) + "\n"

def vr(a, n=1):
    return f"v{a}" if n == 1 else f"v[{a}:{a+n-1}]"
def sr(a, n=1):
    return f"s{a}" if n == 1 else f"s[{a}:{a+n-1}]"

KBASE = 65536
XBASE = 90112
VBASE01 = 131072
WO_RING = 32768
LDS_BYTES = 163840

S_WAVE, S_BR, S_B, S_HG, S_ROT, S_G, S_ROT2 = 3, 30, 31, 48, 49, 50, 14
S_X, S_K, S_V, S_WQ, S_WO, S_OUT, S_DBG, S_WS = 4, 6, 8, 10, 12, 24, 26, 28

FLAG_OFF = 24 << 20
STAGE = 0
STAMP_OFF = 32 << 20

def stamp(a, idx):
    if opt.stamps:
        a(f"s_memrealtime s[{64+2*idx}:{65+2*idx}]")
        a(f"s_memtime s[{80+2*idx}:{81+2*idx}]")

def stamp_flush(a, n):
    if not opt.stamps:
        return
    a(f"""
    s_waitcnt lgkmcnt(0)
    s_lshl_b32 s60, s2, 4
    s_add_u32 s60, s60, s{S_WAVE}
    s_lshl_b32 s60, s60, 7
    s_add_u32 s60, s60, {STAMP_OFF}
    s_add_u32 s56, s{S_WS}, s60
    s_addc_u32 s57, s{S_WS+1}, 0
    s_mov_b32 s58, 128
    s_mov_b32 s59, 0x20000
    v_mov_b32 v250, 0
    """)
    for i in range(2*n):
        a(f"v_mov_b32 v252, s{64+2*i}")
        a(f"v_mov_b32 v253, s{65+2*i}")
        a(f"buffer_store_dwordx2 v[252:253], v250, s[56:59], 0 offen offset:{8*i}")
        a("s_waitcnt vmcnt(0)")

def tbegin(a):
    if opt.stamps and opt.ltime:
        for i in range(16): a(f"s_mov_b64 s[{64+2*i}:{65+2*i}], 0")
        a("s_memtime s[96:97]\ns_waitcnt lgkmcnt(0)")
def tacc(a, idx):
    if opt.stamps and opt.ltime:
        a(f"""
        s_memtime s[98:99]
        s_waitcnt lgkmcnt(0)
        s_sub_u32 s97, s98, s96
        s_add_u32 s{64+2*idx}, s{64+2*idx}, s97
        s_mov_b32 s96, s98
        """)

def srd(a, d, base, off_expr_sreg, size):
    a(f"s_add_u32 s{d}, s{base}, s{off_expr_sreg}")
    a(f"s_addc_u32 s{d+1}, s{base+1}, 0")
    a(f"s_mov_b32 s{d+2}, {size}")
    a(f"s_mov_b32 s{d+3}, 0x20000")

class VM:
    def __init__(self, a):
        self.a = a; self.ops = []
    def issue(self, tag, n=1):
        self.ops += [tag] * n
    def wait(self, tag):
        last = max(i for i, t in enumerate(self.ops) if t == tag)
        n = len(self.ops) - 1 - last
        assert n <= 63, n
        self.a(f"s_waitcnt vmcnt({n})")
    def wait_all(self, tags):
        last = max(i for i, t in enumerate(self.ops) if t in tags)
        assert all(t in self.ops for t in tags), tags
        self.wait(self.ops[last])

def prologue(a):
    a(f"""
    s_cmp_ge_u32 s2, 256
    s_cbranch_scc1 L_end
    {"s_memrealtime s[92:93]" if opt.pro else ""}
    s_load_dwordx16 s[4:19], s[0:1], 0
    s_load_dwordx8 s[20:27], s[0:1], 64
    s_load_dwordx2 s[28:29], s[0:1], 96
    v_lshrrev_b32 v1, 6, v0
    v_and_b32 v0, 63, v0
    v_readfirstlane_b32 s{S_WAVE}, v1
    s_and_b32 s51, s2, 7
    s_lshr_b32 s52, s2, 3
    s_lshr_b32 s{S_BR}, s51, 2
    s_and_b32 s51, s51, 3
    s_lshr_b32 s{S_B}, s52, 1
    s_and_b32 s52, s52, 1
    s_lshl_b32 s51, s51, 1
    s_add_u32 s{S_HG}, s51, s52
    s_mul_i32 s53, s{S_B}, 9
    s_lshr_b32 s53, s53, 4
    s_lshl_b32 s52, s52, 2
    s_add_u32 s{S_ROT}, s53, s52
    s_cmp_ge_u32 s{S_ROT}, 9
    s_cselect_b32 s52, 9, 0
    s_sub_u32 s{S_ROT}, s{S_ROT}, s52
    s_lshl_b32 s{S_G}, s{S_BR}, 4
    s_add_u32 s{S_G}, s{S_G}, s{S_B}
    """)
    stamp(a, 0)
    a(f"""
    s_cmp_eq_u32 s{S_BR}, 0
    s_waitcnt lgkmcnt(0)
    s_cselect_b64 s[4:5], s[4:5], s[14:15]
    s_cselect_b64 s[6:7], s[6:7], s[16:17]
    s_cselect_b64 s[8:9], s[8:9], s[18:19]
    s_cselect_b64 s[10:11], s[10:11], s[20:21]
    s_cselect_b64 s[12:13], s[12:13], s[22:23]
    s_mov_b32 s{S_ROT2}, s53
    {"s_memrealtime s[66:67]" if opt.pro else ""}
    s_cmp_lt_u32 s{S_WAVE}, 4
    s_cbranch_scc1 L_compute
    """)

def dma4(a, vbase, srdr, soff, flags, same_v=False):
    for m in range(4):
        v = vbase if same_v else vbase + m
        a(f"buffer_load_dwordx4 v{v}, s[{srdr}:{srdr+3}], s{soff} offen offset:{m*1024}{flags} lds")

def reduce_setup(a, lane):
    SG, SO = 36, 40
    a(f"s_mul_i32 s52, s{S_G}, {8*73728}")
    srd(a, SG, S_WS, 52, 8*73728)
    a(f"""
    s_mov_b32 s{SO}, s{S_OUT}
    s_mov_b32 s{SO+1}, s{S_OUT+1}
    s_mov_b32 s{SO+2}, {16*64*1152*2}
    s_mov_b32 s{SO+3}, 0x20000
    v_lshrrev_b32 v26, 5, v{lane}
    v_bfe_u32 v27, v{lane}, 3, 2
    v_and_b32 v28, 7, v{lane}
    s_lshr_b32 s52, s{S_HG}, 1
    s_lshl_b32 s56, s52, 10
    s_and_b32 s57, s{S_HG}, 1
    s_lshl_b32 s57, s57, 7
    s_add_u32 s56, s56, s57
    v_lshlrev_b32 v22, 12, v26
    v_lshl_add_u32 v22, v27, 8, v22
    v_lshl_add_u32 v22, v28, 4, v22
    v_add_u32 v22, s56, v22
    {"v_lshrrev_b32 v21, 3, v%d" % lane if opt.xpose else ""}
    v_mul_u32_u24 v23, 2304, {"v21" if opt.xpose else "v28"}
    {"v_lshl_add_u32 v21, v28, 3, v21" if opt.xpose else ""}
    {"v_lshlrev_b32 v21, 2, v21" if opt.xpose else ""}
    {"v_bfe_u32 v26, v%d, 2, 1" % lane if opt.xpose else ""}
    {"v_and_b32 v27, 3, v%d" % lane if opt.xpose else ""}
    v_lshl_add_u32 v23, v26, 6, v23
    v_lshl_add_u32 v23, v27, 3, v23
    s_lshl_b32 s52, s52, 5
    v_lshl_add_u32 v24, v28, 2, s52
    v_bfe_u32 v29, v{lane}, 3, 1
    v_lshl_add_u32 v25, v29, 7, v24
    s_lshl_b32 s52, s{S_B}, 6
    s_lshl_b32 s56, s{S_HG}, 3
    s_add_u32 s52, s52, s56
    s_mul_i32 s52, s52, 2304
    s_mul_i32 s56, s{S_BR}, 1152
    s_add_u32 s15, s52, s56
    v_mul_u32_u24 v24, 0x12000, v28
    v_lshl_add_u32 v24, v29, 12, v24
    s_lshr_b32 s52, s{S_HG}, 1
    s_lshl_b32 s52, s52, 10
    s_and_b32 s56, s{S_HG}, 1
    s_lshl_b32 s56, s56, 7
    s_add_u32 s52, s52, s56
    v_add_u32 v24, s52, v24
    """)

def loader(a):
    vm = VM(a)
    flw = " nt" if opt.w_nt else ""
    flx = " nt" if opt.x_nt else ""
    flkv = " nt" if opt.kv_nt else ""
    SX, SWQ, SK, SV, SWO = 32, 36, 40, 44, 60
    a("L_load:")
    if opt.prio_load: a(f"s_setprio {opt.prio_load}")
    a(f"""
    s_sub_u32 s51, s{S_WAVE}, 4
    s_mul_i32 s52, s{S_B}, 73728
    """)
    srd(a, SX, S_X, 52, 73728)
    a(f"""
    v_lshrrev_b32 v12, 3, v0
    v_mul_u32_u24 v12, 1152, v12
    v_lshrrev_b32 v13, 4, v0
    v_and_b32 v14, 7, v0
    v_xor_b32 v14, v14, v13
    v_lshl_add_u32 v5, v14, 4, v12
    v_xor_b32 v14, 4, v14
    v_lshl_add_u32 v6, v14, 4, v12
    v_add_u32 v6, 8192, v6
    s_lshl_b32 s53, s51, 12
    s_lshl_b32 s59, s51, 11
    s_mul_i32 s54, s51, {16*1152}
    s_lshl_b32 s55, s{S_ROT}, 7
    s_add_u32 s54, s54, s55
    s_mov_b32 s55, s{S_ROT}
    """)
    def xblk(i):
        a(f"s_add_u32 m0, s59, {XBASE + i*8192}")
        a(f"s_add_u32 s55, s55, 1")
        for m in range(2):
            a(f"buffer_load_dwordx4 v{5+m}, s[{SX}:{SX+3}], s54 offen offset:{m*1024}{flx} lds")
        vm.issue(f"x{i}", 2)
        a(f"""
        s_add_u32 s54, s54, 128
        s_cmp_eq_u32 s55, 9
        s_cselect_b32 s55, 0, s55
        s_cselect_b32 s56, 1152, 0
        s_sub_u32 s54, s54, s56
        """)
    if opt.pro: a("s_memrealtime s[68:69]")
    xblk(0)
    a(f"""
    s_lshl_b32 s52, s{S_HG}, 10
    s_mov_b32 s56, {576*8192}
    s_sub_u32 s56, s56, s52
    s_add_u32 s{SWQ}, s{S_WQ}, s52
    s_addc_u32 s{SWQ+1}, s{S_WQ+1}, 0
    s_mov_b32 s{SWQ+2}, s56
    s_mov_b32 s{SWQ+3}, 0x20000
    s_lshl_b32 s57, s{S_ROT}, 19
    s_lshl_b32 s52, s51, 15
    s_add_u32 s57, s57, s52
    """)
    a("s_and_b32 s52, s51, 1")
    a("s_lshl_b32 s52, s52, 3")
    a("v_xor_b32 v10, s52, v0")
    for m in range(4):
        a(f"v_xor_b32 v{1+m}, {2*m}, v10")
        a(f"v_lshlrev_b32 v{1+m}, 4, v{1+m}")
        if m: a(f"v_add_u32 v{1+m}, {m*(8192-1024)}, v{1+m}")
    def wq(u):
        a(f"s_add_u32 m0, s53, {(u%4)*16384}")
        a("s_nop 0")
        dma4(a, 1, SWQ, 57, flw)
        vm.issue(f"w{u}", 4)
        a(f"s_add_u32 s57, s57, {16*8192}")
        if u % 4 == 3:
            a(f"s_cmp_ge_u32 s57, {576*8192}")
            a(f"s_cselect_b32 s56, {576*8192}, 0")
            a(f"s_sub_u32 s57, s57, s56")
    wq(0)
    if opt.pro: a("s_memrealtime s[70:71]")
    wq(1)
    a(f"""
    s_lshl_b32 s52, s{S_B}, 5
    s_lshl_b32 s56, s{S_HG}, 2
    s_add_u32 s52, s52, s56
    s_lshl_b32 s52, s52, 14
    """)
    srd(a, SK, S_K, 52, 65536)
    srd(a, SV, S_V, 52, 65536)
    a(f"""
    s_and_b32 s52, s51, 1
    s_lshl_b32 s52, s52, 3
    v_lshlrev_b32 v12, 8, v13
    v_and_b32 v14, 15, v0
    v_xor_b32 v15, v14, v13
    v_xor_b32 v15, s52, v15
    v_lshl_add_u32 v7, v15, 4, v12
    v_xor_b32 v15, 4, v15
    v_lshl_add_u32 v8, v15, 4, v12
    v_lshlrev_b32 v16, 1, v13
    v_xor_b32 v16, v16, v14
    v_lshl_add_u32 v9, v16, 4, v12
    v_xor_b32 v16, 8, v16
    v_lshl_add_u32 v10, v16, 4, v12
    s_mul_i32 s52, s{S_HG}, {512*1152}
    """)
    srd(a, SWO, S_WO, 52, 512*1152)
    a(f"""
    v_lshrrev_b32 v12, 3, v0
    v_mul_u32_u24 v12, 1152, v12
    v_lshlrev_b32 v14, 1, v13
    v_and_b32 v15, 7, v0
    v_xor_b32 v14, v14, v15
    v_lshl_add_u32 v16, v14, 4, v12
    v_add_u32 v17, 8192, v16
    v_add_u32 v18, 16384, v16
    v_add_u32 v19, 24576, v16
    """)
    def kblk(n):
        a(f"s_add_u32 m0, s59, {KBASE + n*8192}")
        a(f"s_add_u32 s56, s59, {n*8192}")
        for m in range(2):
            a(f"buffer_load_dwordx4 v{7+m}, s[{SK}:{SK+3}], s56 offen offset:{m*1024}{flkv} lds")
        vm.issue(f"k{n}", 2)
    def vblk(n):
        dst = VBASE01 + n*8192 if n < 4 else (n-4)*8192
        a(f"s_add_u32 m0, s59, {dst}")
        a(f"s_add_u32 s56, s59, {n*8192}")
        for m in range(2):
            a(f"buffer_load_dwordx4 v{9+m}, s[{SV}:{SV+3}], s56 offen offset:{m*1024}{flkv} lds")
        vm.issue(f"v{n}", 2)
    def wo_init():
        a(f"""
        s_mul_i32 s54, s51, {32*1152}
        s_lshl_b32 s52, s{S_ROT2}, 7
        s_add_u32 s54, s54, s52
        s_mov_b32 s55, s{S_ROT2}
        """)
    def wo(t):
        a(f"s_add_u32 m0, s53, {((t+2)%10)*16384}")
        if t % 4 == 3: a("s_add_u32 s55, s55, 1")
        else: a("s_nop 0")
        if not (opt.x_nodma and t >= 6): dma4(a, 16, SWO, 54, flw)
        vm.issue(f"o{t}", 4)
        if t % 4 != 3:
            a(f"s_add_u32 s54, s54, {128*1152}")
        else:
            a(f"""
            s_cmp_eq_u32 s55, 9
            s_cselect_b32 s55, 0, s55
            s_cselect_b32 s56, 1152, 0
            s_sub_u32 s54, s54, {3*128*1152-128}
            s_sub_u32 s54, s54, s56
            """)
    F = {"x": xblk, "k": kblk, "v": vblk}
    if opt.fused:
        a(f"""
        s_lshl_b32 s52, s{S_G}, 12
        s_add_u32 s52, s52, {FLAG_OFF}
        """)
        srd(a, 16, S_WS, 52, 4096)
        a(f"""
        s_mov_b32 s20, s{S_DBG}
        s_mov_b32 s21, s{S_DBG+1}
        s_mov_b32 s22, 256
        s_mov_b32 s23, 0x20000
        s_lshl_b32 s52, s{S_G}, 2
        v_mov_b32 v72, s52
        s_add_u32 s56, s{S_HG}, s51
        s_cmp_eq_u32 s56, 0
        s_cselect_b32 s98, 4096, 0
        s_mov_b32 s96, s16
        s_mov_b32 s97, s17
        s_mov_b32 s99, 0x20000
        v_mov_b32 v32, 0
        v_mov_b32 v33, 0
        v_mov_b32 v34, 0
        v_mov_b32 v35, 0
        v_lshlrev_b32 v36, 4, v0
        v_mov_b32 v31, 1
        buffer_store_dwordx4 v[32:35], v36, s[96:99], 0 offen sc1
        buffer_store_dwordx4 v[32:35], v36, s[96:99], 0 offen offset:1024 sc1
        buffer_store_dwordx4 v[32:35], v36, s[96:99], 0 offen offset:2048 sc1
        """)
        vm.issue("z", 3)
    def announce(_):
        if not opt.fused: return
        vm.wait("z")
        a("""
        s_mov_b32 s96, s20
        s_mov_b32 s97, s21
        s_lshr_b32 s98, s98, 4
        buffer_store_dword v31, v72, s[96:99], 0 offen sc1
        """)
        vm.issue("d")
    F["d"] = announce
    a(f"""
    s_lshl_b32 s52, s51, 11
    v_lshl_add_u32 v73, v0, 7, s52
    v_mov_b32 v74, 0x100000
    v_cmp_gt_u32 vcc, 16, v0
    s_nop 1
    v_cndmask_b32 v73, v74, v73, vcc
    """)
    def pfv(n):
        a(f"s_mov_b32 s56, {n*8192}")
        a(f"buffer_load_dword v75, v73, s[{SV}:{SV+3}], s56 offen")
        vm.issue("pf")
    F["p"] = pfv
    if opt.pro:
        a("s_memrealtime s[72:73]")
        vm.wait("x0")
        a("s_memrealtime s[74:75]")
    vm.wait("w0")
    if opt.pro: a("s_memrealtime s[76:77]")
    a("s_barrier")
    if opt.pro: a("s_memrealtime s[78:79]\ns_waitcnt lgkmcnt(0)\ns_mov_b64 s[64:65], s[92:93]")
    wq(2); wq(3)
    offs = [int(x) for x in opt.stagger.split(",")]
    if len(offs) > 1:
        a(f"s_and_b32 s52, s{S_B}, {len(offs)-1}")
        for g in range(1, len(offs)):
            a(f"s_cmp_eq_u32 s52, {g}")
            a(f"s_cbranch_scc1 L_var{g}")
    ops0 = list(vm.ops)
    for g, off in enumerate(offs):
        vm.ops = list(ops0)
        if g: a(f"L_var{g}:")
        ev = {s: [] for s in range(36)}
        for item in opt.sched.split("|"):
            st, names = item.split(":")
            st = int(st[:-1]) + off if st.endswith("+") else int(st[:-1]) + off//2 if st.endswith("h") else int(st)
            for nm in names.split(","):
                n = int(nm[1:])
                free = {"d": 1, "p": -1, "x": -1, "k": 4*(n-3)+3 if n >= 3 else -1, "v": 4*(n+5)+3 if n < 4 else 32+(n-4)//2}[nm[0]]
                assert st >= free, (nm, st, free)
                if nm[0] == "x": assert st < 4*n-1, (nm, st)
                ev[st].append(lambda nm=nm: F[nm[0]](int(nm[1:])))
        for s in range(36):
            need = [f"w{s+1}"] if s < 35 else [f"k{n}" for n in range(8)]
            if s % 4 == 3 and s < 35: need.append(f"x{(s+1)//4}")
            vm.wait_all(need)
            a("s_barrier")
            if s + 4 < 36: wq(s + 4)
            for f in ev[s]: f()
        if g == 0: ops1 = list(vm.ops)
        assert vm.ops[-12:] == ops1[-12:] and sorted(vm.ops) == sorted(ops1)
        if g < len(offs) - 1: a("s_branch L_att")
    a("L_att:")
    vm.ops = ops1
    wo_init()
    wo(0); wo(1)
    SG, SO, SF, SD = 36, 40, 16, 20
    reduce_setup(a, 0)
    if opt.fused:
        a(f"buffer_load_dword v29, v72, s[{SD}:{SD+3}], 0 offen sc1")
        vm.issue("dbg")
    vm.wait_all([f"v{n}" for n in range(8)])
    a("s_barrier")
    wo(2); wo(3)
    vm.wait("o0")
    a("s_barrier")
    wo(4); wo(5)
    def spin(tag, reg, load, label, nowait=False):
        if not nowait: vm.wait(tag)
        a(f"""
        s_mov_b32 s46, 0x8000
        {label}:
        v_cmp_ne_u32 vcc, 1, v{reg}
        s_sub_u32 s46, s46, 1
        s_cbranch_scc1 {label}_ok
        s_nop 3
        s_cbranch_vccz {label}_ok
        s_sleep {opt.sleep}
        {load}
        s_waitcnt vmcnt(0)
        s_branch {label}
        {label}_ok:
        """)
    def task_setup(t_add):
        a(f"""
        s_add_u32 s52, s51, {t_add}
        s_add_u32 s45, s52, s{S_ROT2}
        s_cmp_ge_u32 s45, 9
        s_cselect_b32 s57, 9, 0
        s_sub_u32 s45, s45, s57
        s_lshl_b32 s52, s52, 8
        """)
    def poll_ld(last):
        return f"buffer_load_dword v29, v25, s[{SF}:{SF+3}], s52 offen sc1"
    def gather(base, tag, lo=0, hi=8):
        if lo == 0: a("s_lshl_b32 s44, s45, 13")
        for src in range(lo, hi):
            a(f"buffer_load_dwordx4 {vr(base+4*src,4)}, v22, s[{SG}:{SG+3}], s44 offen sc1")
            if src < 7: a("s_add_u32 s44, s44, 73728")
        vm.issue(tag, hi - lo)
    def put(pk, sreg):
        a(f"s_lshl_b32 s57, s{sreg}, 7")
        a("s_add_u32 s57, s57, s15")
        a(f"buffer_store_dwordx2 {vr(pk,2)}, v23, s[{SO}:{SO+3}], s57 offen {opt.out_flags}")
        a(f"buffer_store_dwordx2 {vr(pk+2,2)}, v23, s[{SO}:{SO+3}], s57 offen offset:32 {opt.out_flags}")
        vm.issue("out", 2)
    def total(base, sreg, tag, later, pk=76, now=True):
        for src in range(8):
            a(f"s_waitcnt vmcnt({7-src+later})")
            for e in range(4):
                x = base + 4*src + e
                if src == 0:
                    a(f"v_lshlrev_b32 v{64+2*e}, 16, v{x}")
                    a(f"v_and_b32 v{65+2*e}, 0xffff0000, v{x}")
                else:
                    a(f"v_lshlrev_b32 v74, 16, v{x}")
                    a(f"v_and_b32 v75, 0xffff0000, v{x}")
                    a(f"v_pk_add_f32 {vr(64+2*e,2)}, {vr(64+2*e,2)}, v[74:75]")
        for e in range(4):
            a(cvt(pk+e, 64+2*e))
        if opt.xpose:
            for e in range(4): a(f"ds_bpermute_b32 v{pk+e}, v21, v{pk+e}")
            if now: a("s_waitcnt lgkmcnt(0)")
        if now: put(pk, sreg)
    nxt = 6
    assert opt.lead <= 7
    for i in range(18):
        vm.wait(f"o{min(2*i+2, 35)}")
        a("s_barrier")
        if i == 1 and opt.fused:
            spin("dbg", 29, f"buffer_load_dword v29, v72, s[{SD}:{SD+3}], 0 offen sc1", "L_dbg")
        for _ in range(opt.lead - 5 if i == 0 else 2):
            if nxt < 36:
                assert nxt <= 2*i + 9
                wo(nxt); nxt += 1
        if opt.fused and i == opt.g0_at - 1:
            task_setup(0); a(poll_ld(False)); vm.issue("poll0")
        if opt.fused and i == opt.g0_at:
            spin("poll0", 29, poll_ld(False), "L_poll0")
            gather(80, "g0", 0, opt.g0_split)
            a("s_mov_b32 s59, s45")
        if opt.fused and i == opt.g0_at + 1 and opt.g0_split < 8:
            gather(80, "g0", opt.g0_split, 8)
        if opt.fused and i == 17:
            task_setup(4)
    assert nxt == 36
    if opt.fused:
        later = len(vm.ops) - 1 - max(i for i, t in enumerate(vm.ops) if t == "g0")
        total(80, 59, "g0", later, pk=112, now=not opt.defer)
        stamp(a, 1)
        if opt.d18: a("s_barrier")
        a(f"""
        s_mov_b32 s46, 0x8000
        s_cmp_ge_u32 s51, {5 - opt.nmark}
        s_cselect_b32 s44, -1, 0
        L_again:
        s_lshl_b32 s57, s45, 13
        buffer_load_dword v31, v24, s[{SG}:{SG+3}], s57 offen sc1
        buffer_load_dword v29, v25, s[{SF}:{SF+3}], s52 offen sc1
        s_waitcnt vmcnt(0)
        v_cmp_ne_u32 s[56:57], 1, v29
        v_cmp_eq_u32 vcc, -1, v31
        s_sub_u32 s46, s46, 1
        s_cbranch_scc1 L_give
        s_cmp_eq_u64 s[56:57], 0
        s_cbranch_scc1 L_give
        s_mov_b32 s47, 0
        s_cmp_eq_u32 s44, 0
        s_cbranch_scc1 L_nap
        s_cbranch_vccz L_go
        L_nap:
        s_sleep {opt.sleep8}
        s_branch L_again
        L_give:
        s_mov_b32 s47, 1
        L_go:
        """)
        if opt.stamps: a("s_waitcnt lgkmcnt(0)")
        stamp(a, 2)
        a("s_lshl_b32 s57, s45, 13")
        for src in range(8):
            a(f"buffer_load_dwordx4 {vr(80+4*src,4)}, v22, s[{SG}:{SG+3}], s57 offen sc1")
            if src < 7: a("s_add_u32 s57, s57, 73728")
        a("s_cmp_eq_u32 s47, 1")
        a("s_cbranch_scc1 L_sum")
        a("s_waitcnt vmcnt(7)")
        a("v_max3_u32 v26, v80, v81, v82")
        a("v_max_u32 v26, v26, v83")
        for src in range(1, 8):
            a(f"s_waitcnt vmcnt({7-src})")
            a(f"v_max3_u32 v26, v26, v{80+4*src}, v{81+4*src}")
            a(f"v_max3_u32 v26, v26, v{82+4*src}, v{83+4*src}")
        a("""
        v_cmp_eq_u32 vcc, -1, v26
        s_nop 4
        s_cbranch_vccnz L_nap
        """)
        a("L_sum:")
        total(80, 45, "g1", 0)
        if opt.defer:
            a(f"s_cmp_lt_u32 s{S_WAVE}, 4" if not opt.stamps else f"s_cmp_eq_u32 s{S_WAVE}, 8")
            a("s_cbranch_scc1 L_load_end")
            put(112, 59)
        stamp(a, 3)
        a("L_load_end:")
        if opt.stamps and not (opt.ltime or opt.pro):
            a("s_waitcnt vmcnt(0)")
            stamp(a, 0)
            stamp_flush(a, 3)
    if opt.ltime or opt.pro: stamp_flush(a, 8)
    a("s_endpgm")

def mfma(a, d, A, B, C=None):
    c = "0" if C == "zero" else vr(d if C is None else C, 4)
    a(f"v_mfma_f32_16x16x32_bf16 {vr(d,4)}, {vr(A,4)}, {vr(B,4)}, {c}")

def weave(a, mf, fill, per=lambda k: 1, start=0):
    fill = list(fill)
    for k, m in enumerate(mf):
        m()
        if k >= start:
            for _ in range(per(k)):
                if fill: a(fill.pop(0))
    for f in fill: a(f)

def cvt(d, s0):
    return f"v_cvt_pk_bf16_f32 v{d}, v{s0}, v{s0+1}"

def xreduce(a, op, m, t, mid):
    a("s_nop 1")
    a(f"v_permlane16_swap_b32 v{m[0]}, v{m[1]}")
    a(f"v_permlane16_swap_b32 v{m[2]}, v{m[3]}")
    a("s_nop 0")
    a(f"{op} v{m[0]}, v{m[0]}, v{m[1]}")
    a(f"{op} v{m[2]}, v{m[2]}, v{m[3]}")
    a("s_nop 1")
    a(f"v_permlane32_swap_b32 v{m[0]}, v{m[2]}")
    a("s_nop 1")
    a(f"{op} v{m[0]}, v{m[0]}, v{m[2]}")
    mid(m[0])
    a(f"v_mov_b32 v{m[2]}, v{m[0]}")
    a("s_nop 1")
    a(f"v_permlane32_swap_b32 v{m[0]}, v{m[2]}")
    a("s_nop 1")
    a(f"v_mov_b32 v{m[1]}, v{m[0]}")
    a(f"v_mov_b32 v{m[3]}, v{m[2]}")
    a("s_nop 1")
    a(f"v_permlane16_swap_b32 v{m[0]}, v{m[1]}")
    a(f"v_permlane16_swap_b32 v{m[2]}, v{m[3]}")
    a("s_nop 1")

def compute(a):
    FB = [128, 176]
    AW, AX, L16, ROW4, C8, AK = 224, 232, 236, 237, 238, 240
    a("L_compute:")
    if opt.prio_comp: a(f"s_setprio {opt.prio_comp}")
    a(f"""
    v_lshrrev_b32 v1, 4, v0
    v_and_b32 v2, 15, v0
    v_lshrrev_b32 v{ROW4}, 2, v0
    v_and_b32 v3, 3, v0
    v_lshlrev_b32 v{C8}, 3, v3
    v_lshlrev_b32 v{L16}, 4, v0
    s_lshl_b32 s51, s{S_WAVE}, 8
    v_lshl_add_u32 v4, v{ROW4}, 10, v{C8}
    v_add_u32 v4, s51, v4
    v_and_b32 v5, 7, v{ROW4}
    """)
    for dt in range(8):
        a(f"v_xor_b32 v6, {dt}, v5")
        a(f"v_lshl_add_u32 v{AW+dt}, v6, 5, v4")
    a(f"""
    v_lshrrev_b32 v4, 3, v2
    v_lshlrev_b32 v4, 10, v4
    v_and_b32 v5, 7, v2
    v_lshl_add_u32 v4, v5, 7, v4
    v_and_b32 v5, 1, v1
    v_lshlrev_b32 v7, 3, v5
    v_add_u32 v4, v4, v7
    v_add_u32 v4, {XBASE}, v4
    v_lshrrev_b32 v8, 1, v1
    v_lshrrev_b32 v5, 1, v2
    v_xor_b32 v5, v5, v8
    """)
    for sp in range(4):
        a(f"v_xor_b32 v6, {2*sp}, v5")
        a(f"v_lshl_add_u32 v{AX+sp}, v6, 4, v4")
    a(f"""
    s_lshl_b32 s51, s{S_WAVE}, 14
    s_add_u32 s52, s51, {KBASE}
    v_lshl_add_u32 v4, v2, 8, v7
    v_add_u32 v4, s52, v4
    v_xor_b32 v5, v2, v8
    """)
    for i in range(8):
        a(f"v_xor_b32 v6, {2*i}, v5")
        a(f"v_lshl_add_u32 v{AK+i}, v6, 4, v4")
    a(f"""
    s_add_u32 s52, s51, {VBASE01}
    s_cmp_ge_u32 s{S_WAVE}, 2
    s_cselect_b32 s53, {LDS_BYTES}, 0
    s_sub_u32 s52, s52, s53
    s_lshl_b32 s53, s{S_G}, 3
    s_add_u32 s53, s53, s{S_HG}
    s_mul_i32 s53, s53, 73728
    """)
    srd(a, 32, S_WS, 53, 73728)
    for i in range(128):
        a(f"v_mov_b32 v{i}, 0")
    def reads(u):
        fb = FB[(u >> 1) & 1] + 2*(u & 1)
        r = [f"ds_read_b64_tr_b16 {vr(fb+4*dt,2)}, v{AW+dt} offset:{(u%4)*16384}" for dt in range(8)]
        x = [f"ds_read_b64 {vr(fb+32+4*qt,2)}, v{AX+u%4} offset:{qt*2048}" for qt in range(4)]
        return x + r
    def half(buf, hf):
        return [lambda dt=dt, qt=qt: mfma(a, 16*dt+4*qt, FB[buf]+4*dt, FB[buf]+32+4*qt) for dt in range(4*hf, 4*hf+4) for qt in range(4)]
    def interval(buf, hf, rd, pre=(), mark=True):
        mf = half(buf, hf)
        if opt.steps and mark: a("s_memrealtime s[96:97]")
        weave(a, mf[:15], list(pre) + rd)
        a("s_waitcnt lgkmcnt(0)")
        if opt.steps and mark: a("v_writelane_b32 v250, s96, m0\ns_add_u32 m0, m0, 1")
        mf[15]()
    a("s_barrier")
    stamp(a, 1)
    for r in reads(0): a(r)
    a("s_mov_b32 s54, 9")
    if opt.steps: a("s_mov_b32 m0, 0\nv_mov_b32 v250, 0")
    a("s_waitcnt lgkmcnt(0)")
    a("s_barrier")
    for r in reads(1): a(r)
    a("s_waitcnt lgkmcnt(0)")
    a("L_g1_loop:")
    a("s_barrier")
    interval(0, 0, reads(2))
    a("s_barrier")
    interval(0, 1, reads(3), pre=["s_sub_u32 s54, s54, 1"])
    a("""
    s_cmp_eq_u32 s54, 0
    s_cbranch_scc1 L_g1_last
    s_barrier
    """)
    interval(1, 0, reads(4), pre=[f"v_add_u32 v{AX}, 8192, v{AX}"])
    a("s_barrier")
    interval(1, 1, reads(5), pre=[f"v_add_u32 v{AX+i}, 8192, v{AX+i}" for i in range(1, 4)])
    a("s_branch L_g1_loop")
    a("L_g1_last:")
    a("s_barrier")
    if opt.steps:
        a(f"""
        s_lshl_b32 s60, s2, 2
        s_add_u32 s60, s60, s{S_WAVE}
        s_lshl_b32 s60, s60, 8
        s_add_u32 s60, s60, {STAMP_OFF + (1 << 20)}
        s_add_u32 s56, s{S_WS}, s60
        s_addc_u32 s57, s{S_WS+1}, 0
        s_mov_b32 s58, 256
        s_mov_b32 s59, 0x20000
        v_lshrrev_b32 v251, 2, v{L16}
        buffer_store_dword v250, v251, s[56:59], 0 offen
        """)
    KF = lambda kt, ds: 128 + 16*ds + 4*kt
    krd = lambda ds: [f"ds_read_b64 {vr(KF(kt,ds)+2*jj,2)}, v{AK+2*ds+jj} offset:{kt*4096}" for kt in range(4) for jj in range(2)]
    weave(a, half(1, 0), krd(0) + krd(1) + krd(2), per=lambda k: 2)
    QF = lambda ds, qt: 64*(ds >> 1) + 16*(ds & 1) + 4*qt
    def qcvt(ds):
        return [cvt(QF(ds, qt)+2*u+e, 32*ds+16*u+4*qt+2*e) for qt in range(4) for u in range(2) for e in range(2)]
    av = [f"v_lshl_add_u32 v248, v{ROW4}, 8, v{C8}", "v_add_u32 v248, s52, v248", f"v_and_b32 v249, 7, v{ROW4}"]
    for dt in range(8):
        av += [f"v_xor_b32 v239, {dt}, v249", f"v_lshl_add_u32 v{AW+dt}, v239, 5, v248"]
    weave(a, half(1, 1), krd(3) + qcvt(0) + qcvt(1)[:8], per=lambda k: 2)
    stamp(a, 2)
    for x in qcvt(1)[8:]: a(x)
    a("s_waitcnt lgkmcnt(8)")
    S = lambda kt, qt: (32 if kt < 2 else 192) + 16*(kt & 1) + 4*qt
    g2 = lambda ds, kt, qt: (lambda: mfma(a, S(kt, qt), KF(kt, ds), QF(ds, qt), "zero" if ds == 0 else None))
    cbits = struct.unpack("<I", struct.pack("<f", math.log2(math.e) / math.sqrt(128.0)))[0]
    vals = [[S(kt, qt) + e for kt in range(4) for e in range(4)] for qt in range(4)]
    M = [240, 242, 244, 246]; SUM = [232, 234, 248, 250]
    def rowmax(qt):
        v = vals[qt]
        return ([f"v_max3_f32 v{M[qt]}, v{v[0]}, v{v[1]}, v{v[2]}"] +
                [f"v_max3_f32 v{M[qt]}, v{M[qt]}, v{v[i]}, v{v[i+1]}" for i in range(3, 15, 2)] +
                [f"v_max_f32 v{M[qt]}, v{M[qt]}, v{v[15]}"])
    weave(a, [g2(ds, kt, qt) for ds in range(2) for kt in range(4) for qt in range(4)],
          qcvt(2) + qcvt(3) + av + [f"s_mov_b32 s56, {hex(cbits)}", f"s_mov_b32 s57, {hex(cbits)}", "s_waitcnt lgkmcnt(0)"], per=lambda k: 2)
    for qt in range(4):
        weave(a, [g2(ds, kt, qt) for ds in (2, 3) for kt in range(4)], rowmax(qt-1) if qt else [], per=lambda k: 2, start=4)
    stamp(a, 3)
    a("s_nop 3")
    m3 = rowmax(3)
    a(m3[0]); a(m3[1]); a("s_nop 1")
    for x in m3[2:]: a(x)
    VF = lambda dt, ks: 128 + 16*(dt >> 1) + 8*ks + 4*(dt & 1)
    vrd = [f"ds_read_b64_tr_b16 {vr(VF(dt,ks)+2*j,2)}, v{AW+dt} offset:{ks*8192+j*4096}" for dt in range(8) for ks in range(2) for j in range(2)]
    xreduce(a, "v_max_f32", M, None, lambda u: a(f"v_mul_f32 v{u}, s56, v{u}"))
    for i in range(0, 16, 2):
        for qt in range(4):
            x = vals[qt][i]
            a(f"v_pk_fma_f32 {vr(x,2)}, {vr(x,2)}, s[56:57], {vr(M[qt],2)} op_sel_hi:[1,1,0] neg_lo:[0,0,1] neg_hi:[0,0,1]")
    for i in range(16):
        for qt in range(4):
            a(f"v_exp_f32 v{vals[qt][i]}, v{vals[qt][i]}")
    for qt in range(4):
        a(f"v_pk_add_f32 {vr(SUM[qt],2)}, {vr(vals[qt][0],2)}, {vr(vals[qt][2],2)}")
    for i in range(4, 16, 2):
        for qt in range(4):
            a(f"v_pk_add_f32 {vr(SUM[qt],2)}, {vr(SUM[qt],2)}, {vr(vals[qt][i],2)}")
    for qt in range(4):
        a(f"v_add_f32 v{SUM[qt]}, v{SUM[qt]}, v{SUM[qt]+1}")
    xreduce(a, "v_add_f32", SUM, None, lambda u: a(f"v_rcp_f32 v{u}, v{u}\ns_nop 0"))
    a("s_barrier")
    PF = lambda ks, qt: 96 + 16*ks + 4*qt
    for i in range(0, 16, 2):
        for qt in range(4):
            x = vals[qt][i]
            a(f"v_pk_mul_f32 {vr(x,2)}, {vr(x,2)}, {vr(SUM[qt],2)} op_sel_hi:[1,0]")
            a(vrd.pop(0))
    for ks in range(2):
        for qt in range(4):
            for u in range(2):
                for e in range(2):
                    a(cvt(PF(ks, qt)+2*u+e, S(2*ks+u, qt)+2*e))
    a("s_waitcnt lgkmcnt(0)")
    a("s_nop 0")
    if not opt.fused: stamp(a, 4)
    OT = lambda dt, qt: (16*dt if dt < 6 else 192 + 16*(dt-6)) + 4*qt
    g3 = lambda p: [lambda ks=ks, dt=dt, qt=qt: mfma(a, OT(dt, qt), VF(dt, ks), PF(ks, qt), "zero" if ks == 0 else None)
                    for ks in range(2) for dt in (2*p, 2*p+1) for qt in range(4)]
    OW, OR0, OR1, PV, AOB, AO, FV, ONE = 242, 243, 244, 245, 246, 248, 252, 253
    ad = f"""
    s_lshr_b32 s53, s{S_WAVE}, 1
    s_and_b32 s55, s{S_WAVE}, 1
    v_add_u32 v{OW}, s52, v{L16}
    s_lshl_b32 s55, s55, 11
    v_add_u32 v{OR1}, s55, v{L16}
    v_add_u32 v{OR0}, {VBASE01}, v{OR1}
    s_lshl_b32 s55, s{S_WAVE}, 11
    v_add_u32 v{PV}, s55, v{L16}
    s_lshl_b32 s53, s53, 1
    v_lshl_add_u32 v239, v{ROW4}, 7, v{C8}
    v_bfe_u32 v240, v{ROW4}, 1, 2
    v_xor_b32 v240, s53, v240
    v_lshl_add_u32 v{AOB}, v240, 5, v239
    v_xor_b32 v240, 1, v240
    v_lshl_add_u32 v{AOB+1}, v240, 5, v239
    v_add_u32 v{AO}, {WO_RING}, v{AOB}
    v_add_u32 v{AO+1}, {WO_RING}, v{AOB+1}
    s_lshl_b32 s55, s{S_G}, 12
    s_add_u32 s55, s55, {FLAG_OFF}
    s_add_u32 s36, s{S_WS}, s55
    s_addc_u32 s37, s{S_WS+1}, 0
    s_mov_b32 s38, 0
    s_mov_b32 s39, 0x20000
    s_lshl_b32 s55, s{S_WAVE}, 6
    s_lshl_b32 s53, s{S_HG}, 2
    s_add_u32 s55, s55, s53
    v_lshl_add_u32 v{FV}, v{L16}, 1, s55
    v_mov_b32 v{ONE}, 0x10000
    v_cmp_gt_u32 vcc, 32, v{L16}
    s_nop 0
    s_nop 0
    v_cndmask_b32 v{FV}, v{ONE}, v{FV}, vcc
    v_mov_b32 v{ONE}, 1
    """.strip().split("\n")
    OF = lambda k4, qt: 128 + 16*k4 + 4*qt
    def ocvt(k4):
        r = []
        for qt in range(4):
            r += [cvt(OF(k4, qt)+2*u+e, OT(2*k4+u, qt)+2*e) for u in range(2) for e in range(2)]
            r.append(f"ds_write_b128 v{OW}, {vr(OF(k4,qt),4)} offset:{(k4*4+qt)*1024}")
        return r
    weave(a, g3(0), ad[:30], per=lambda k: 2)
    weave(a, g3(1), ad[30:] + ocvt(0), per=lambda k: 2, start=2)
    weave(a, g3(2), ocvt(1), per=lambda k: 2, start=4)
    weave(a, g3(3), ocvt(2), per=lambda k: 2, start=4)
    a("s_nop 4")
    for x in ocvt(3): a(x)
    a("s_waitcnt lgkmcnt(0)")
    a("s_barrier")
    stamp(a, 5)
    ACCA, ACCB, WB, PKA, PKB = 128, 144, 160, 192, 200
    def wread(k4, ni):
        return [f"ds_read_b64_tr_b16 {vr(WB+8*k4+4*ni+2*j,2)}, v{AO+ni} offset:{k4*4096+j*2048}" for j in range(2)]
    def oread(h):
        return [f"ds_read_b128 {vr(32*h+8*k4+4*qi,4)}, v{OR0 if h < 2 else OR1} offset:{(h&1)*16384+(k4*4+qi)*1024}" for k4 in range(4) for qi in range(2)]
    for h in range(2):
        for r in oread(h): a(r)
    for k4 in range(4):
        for ni in range(2):
            for r in wread(k4, ni)[:1 if (k4, ni) == (3, 1) else 2]: a(r)
    a(f"""
    s_mov_b32 s54, 0
    s_mov_b32 s55, {WO_RING+16384}
    v_add_u32 v{AO}, s55, v{AOB}
    s_lshl_b32 s58, s{S_ROT2}, 13
    s_sub_u32 s61, s58, 8192
    s_cselect_b32 s61, 65536, s61
    s_sub_u32 s62, s61, 8192
    s_cselect_b32 s62, 65536, s62
    s_sub_u32 s63, s62, 8192
    s_cselect_b32 s63, 65536, s63
    s_mov_b32 s60, -256
    """)
    for i in range(4): a(f"v_mov_b32 v{PKA+i}, -1")
    if opt.steps2: a("s_mov_b32 m0, 0\ns_memrealtime s[96:97]")
    a("s_waitcnt lgkmcnt(0)")
    def cvts(pk):
        return [cvt(pk+4*qi+2*ni+e, ACCB+8*qi+4*ni+2*e) for qi in range(2) for ni in range(2) for e in range(2)]
    def store(pk, qi, soff):
        if opt.x_nostore: return "s_nop 0"
        return f"buffer_store_dwordx4 {vr(pk,4)}, v{PV}, s[32:35], s{soff} offen offset:{qi*1024} {opt.part_flags}".rstrip()
    flagst = f"buffer_store_dword v{ONE}, v{FV}, s[36:39], s60 offen sc1" if opt.fused else "s_nop 0"
    def adv(r):
        return [f"s_add_u32 s{r}, s{r}, 16384", f"s_cmp_ge_u32 s{r}, 73728", f"s_cselect_b32 s53, 73728, 0", f"s_sub_u32 s{r}, s{r}, s53"]
    def block(extra):
        for kq in range(4):
            if kq % 2 == 0:
                if opt.steps2: a("s_waitcnt lgkmcnt(0)\nv_writelane_b32 v250, s96, m0\ns_add_u32 m0, m0, 1")
                a("s_barrier")
                if opt.steps2: a("s_memrealtime s[96:97]")
            ex = list(extra[kq])
            sl = ["s_add_u32 s55, s55, 16384", f"s_cmp_eq_u32 s55, {LDS_BYTES}", "s_cselect_b32 s55, 0, s55"]
            if len(ex) <= 7:
                ex = ex[:5] + [None]*(5 - len(ex[:5])) + sl + ex[5:]
            else:
                ex = ex[:8] + [sl[0] + "\n" + sl[1], sl[2]] if len(ex) == 8 else None
            for k4 in range(4):
                for ni in range(2):
                    for qi in range(2):
                        first = kq == 0 and k4 == 0
                        last = kq == 3 and k4 == 3
                        t = 8*qi + 4*ni
                        if last: mfma(a, ACCB+t, WB+8*k4+4*ni, 32*kq+8*k4+4*qi, ACCA+t)
                        else: mfma(a, ACCA+t, WB+8*k4+4*ni, 32*kq+8*k4+4*qi, "zero" if first else None)
                        g = 4*k4 + 2*ni + qi
                        if not opt.x_noread:
                            if qi == 1: a(wread(k4, ni)[0])
                            else:
                                pk4, pni = (k4, 0) if ni == 1 else ((k4 - 1) % 4, 1)
                                a(wread(pk4, pni)[1])
                        if g % 4 == 3: a("s_waitcnt lgkmcnt(11)")
                        elif g == 0: a(f"v_add_u32 v{AO+1}, s55, v{AOB+1}")
                        elif g == 14: a(f"v_add_u32 v{AO}, s55, v{AOB}")
                        elif ex:
                            x = ex.pop(0)
                            if x: a(x)
            assert not ex, (kq, ex)
    o2, o3 = oread(2), oread(3)
    mark = lambda n, r: [None]*5 + [store(PKA, 0, r), store(PKA, 1, r)] if opt.fused and opt.nmark >= n else []
    block([[x + "\n" + y for x, y in zip(o2, o3)], mark(1, 61), mark(2, 62), mark(3, 63)])
    a("L_p2_loop:")
    ex = [cvts(PKA), [None]*7, [None]*7, [None]*7]
    p = [int(c) for c in opt.st_pos]
    ex[p[0]][p[1]] = store(PKA, 0, 58)
    ex[p[2]][p[3]] = store(PKA+4, 1, 58) + "\ns_waitcnt vmcnt(2)\n" + flagst
    assert p[2] < 3 or p[3] < 2
    ex[3][2:7] = ["s_add_u32 s58, s58, 8192\ns_add_u32 s60, s60, 256", "s_cmp_eq_u32 s58, 73728", "s_cselect_b32 s58, 0, s58", "s_mov_b32 s38, 4096", "s_add_u32 s54, s54, 1"]
    block(ex)
    a("""
    s_cmp_lg_u32 s54, 8
    s_cbranch_scc1 L_p2_loop
    s_nop 7
    """)
    if opt.steps2:
        a(f"""
        s_waitcnt lgkmcnt(0)
        v_writelane_b32 v250, s96, m0
        s_lshl_b32 s53, s2, 2
        s_add_u32 s53, s53, s{S_WAVE}
        s_lshl_b32 s53, s53, 8
        s_add_u32 s53, s53, {STAMP_OFF + (1 << 20)}
        s_add_u32 s40, s{S_WS}, s53
        s_addc_u32 s41, s{S_WS+1}, 0
        s_mov_b32 s42, 256
        s_mov_b32 s43, 0x20000
        v_lshrrev_b32 v251, 2, v{L16}
        buffer_store_dword v250, v251, s[40:43], 0 offen
        """)
    stamp(a, 6)
    cv = cvts(PKA)
    for x in cv[:4] + [store(PKA, 0, 61)] + cv[4:] + [store(PKA+4, 1, 61)]: a(x)
    if opt.fused:
        if opt.d18: a("s_barrier")
        a("s_waitcnt vmcnt(2)\n" + flagst + "\ns_add_u32 s60, s60, 256")
        a(f"""
        s_mov_b32 s16, s36
        s_mov_b32 s17, s37
        s_mov_b32 s18, 4096
        s_mov_b32 s19, 0x20000
        s_cmp_eq_u32 s{S_WAVE}, 0
        s_cbranch_scc1 L_last
        s_waitcnt vmcnt(1)
        """)
        a(flagst)
        if opt.stamps:
            a("s_waitcnt lgkmcnt(0)"); stamp(a, 4)
            a("s_waitcnt vmcnt(0)"); stamp(a, 7); stamp_flush(a, 8)
        a("s_endpgm")
        a("L_last:")
        a(f"v_lshrrev_b32 v30, 4, v{L16}")
        reduce_setup(a, 30)
        a(f"""
        s_lshr_b32 s45, s61, 13
        s_mov_b32 s52, 2048
        s_waitcnt vmcnt(1)
        """)
        a(flagst.replace("s[36:39]", "s[16:19]"))
        if opt.stamps: a(f"s_mov_b32 s{S_WAVE}, 8"); stamp(a, 1)
        a("s_mov_b32 s46, 0x8000\ns_mov_b32 s47, 0\ns_mov_b32 s44, -1\ns_branch L_go")
    if opt.stamps and not opt.fused:
        a("s_waitcnt vmcnt(0)")
        stamp(a, 7)
        stamp_flush(a, 8)
    a("L_end:")
    a("s_endpgm")

def reduce_kernel(a):
    a(f"""
    s_cmp_ge_u32 s2, 256
    s_cbranch_scc1 L_rend
    s_load_dwordx2 s[4:5], s[0:1], 80
    s_load_dwordx2 s[6:7], s[0:1], 96
    v_lshrrev_b32 v1, 6, v0
    v_and_b32 v0, 63, v0
    v_readfirstlane_b32 s3, v1
    s_lshr_b32 s8, s2, 3
    s_and_b32 s9, s2, 7
    v_lshrrev_b32 v1, 3, v0
    v_and_b32 v2, 7, v0
    v_lshrrev_b32 v3, 2, v1
    v_and_b32 v5, 3, v1
    s_lshr_b32 s10, s9, 1
    s_and_b32 s11, s9, 1
    s_lshl_b32 s10, s10, 10
    s_lshl_b32 s11, s11, 7
    s_add_u32 s10, s10, s11
    s_lshl_b32 s11, s3, 13
    s_add_u32 s10, s10, s11
    v_lshlrev_b32 v6, 6, v3
    v_lshlrev_b32 v3, 12, v3
    v_lshl_add_u32 v3, v5, 8, v3
    v_lshl_add_u32 v3, v2, 4, v3
    v_add_u32 v3, s10, v3
    v_lshl_add_u32 v6, v5, 3, v6
    s_mul_i32 s12, s8, {8*73728}
    s_and_b32 s13, s8, 15
    s_lshr_b32 s14, s8, 4
    s_lshl_b32 s13, s13, 6
    s_lshl_b32 s15, s9, 3
    s_add_u32 s13, s13, s15
    s_mul_i32 s13, s13, 2304
    s_mul_i32 s14, s14, 1152
    s_add_u32 s13, s13, s14
    s_lshl_b32 s14, s3, 7
    s_add_u32 s13, s13, s14
    v_mul_u32_u24 v4, 2304, v2
    v_add_u32 v4, v6, v4
    s_waitcnt lgkmcnt(0)
    s_add_u32 s16, s6, s12
    s_addc_u32 s17, s7, 0
    s_mov_b32 s18, {8*73728}
    s_mov_b32 s19, 0x20000
    s_mov_b32 s20, s4
    s_mov_b32 s21, s5
    s_mov_b32 s22, {16*64*1152*2}
    s_mov_b32 s23, 0x20000
    """)
    for s in range(8):
        a(f"s_mov_b32 s24, {s*73728}")
        a(f"buffer_load_dwordx4 {vr(8+4*s,4)}, v3, s[16:19], s24 offen")
    for s in range(8):
        a(f"s_waitcnt vmcnt({7-s})")
        for e in range(4):
            x = 8+4*s+e
            if s == 0:
                a(f"v_lshlrev_b32 v{40+2*e}, 16, v{x}")
                a(f"v_and_b32 v{41+2*e}, 0xffff0000, v{x}")
            else:
                a(f"v_lshlrev_b32 v48, 16, v{x}")
                a(f"v_and_b32 v49, 0xffff0000, v{x}")
                a(f"v_pk_add_f32 {vr(40+2*e,2)}, {vr(40+2*e,2)}, v[48:49]")
    for e in range(4):
        a(f"v_cvt_pk_bf16_f32 v{8+e}, v{40+2*e}, v{41+2*e}")
    a("buffer_store_dwordx2 v[8:9], v4, s[20:23], s13 offen")
    a("buffer_store_dwordx2 v[10:11], v4, s[20:23], s13 offen offset:32")
    if opt.stamps:
        a(f"""
        s_waitcnt vmcnt(0)
        s_memrealtime s[24:25]
        s_cmp_ge_u32 s3, 4
        s_cbranch_scc1 L_rend
        s_lshl_b32 s26, s2, 4
        s_add_u32 s26, s26, s3
        s_lshl_b32 s26, s26, 7
        s_add_u32 s26, s26, {STAMP_OFF}
        s_add_u32 s16, s6, s26
        s_addc_u32 s17, s7, 0
        s_mov_b32 s18, 128
        s_waitcnt lgkmcnt(0)
        v_mov_b32 v8, s24
        v_mov_b32 v9, s25
        v_mov_b32 v10, 0
        buffer_store_dwordx2 v[8:9], v10, s[16:19], 0 offen offset:120
        """)
    a("L_rend:")
    a("s_endpgm")

def diag_kernel(a):
    a(f"""
    s_cmp_ge_u32 s2, 1
    s_cbranch_scc1 L_dend
    s_load_dwordx2 s[6:7], s[0:1], 96
    v_lshrrev_b32 v1, 2, v0
    v_and_b32 v2, 3, v0
    v_lshlrev_b32 v1, 11, v1
    v_lshl_add_u32 v1, v2, 7, v1
    s_waitcnt lgkmcnt(0)
    s_add_u32 s8, s6, {STAMP_OFF}
    s_addc_u32 s9, s7, 0
    s_mov_b32 s10, {512*1024}
    s_mov_b32 s11, 0x20000
    """)
    for i in range(16):
        a(f"s_mov_b32 s12, {i*32768}")
        a(f"buffer_load_dword v{8+i}, v1, s[8:11], s12 offen")
        a(f"buffer_load_dword v{24+i}, v1, s[8:11], s12 offen offset:{8*opt.diag}")
    a("s_waitcnt vmcnt(0)")
    a("v_readfirstlane_b32 s13, v8")
    a("s_sub_u32 s13, s13, 100000")
    a("s_nop 1")
    for i in range(32):
        a(f"v_subrev_u32 v{8+i}, s13, v{8+i}")
    for i in range(1, 16):
        a(f"v_min_u32 v8, v8, v{8+i}")
        a(f"v_max_u32 v24, v24, v{24+i}")
    a("s_mov_b32 s14, -1\ns_mov_b32 s15, 0\ns_nop 1")
    for l in range(64):
        a(f"v_readlane_b32 s16, v8, {l}")
        a(f"v_readlane_b32 s17, v24, {l}")
        a("s_nop 3")
        a("s_min_u32 s14, s14, s16")
        a("s_max_u32 s15, s15, s17")
    a("""
    s_sub_u32 s15, s15, s14
    s_min_u32 s15, s15, 20000
    s_mul_i32 s15, s15, 10
    s_memrealtime s[18:19]
    s_waitcnt lgkmcnt(0)
    L_dspin:
    s_memrealtime s[20:21]
    s_waitcnt lgkmcnt(0)
    s_sub_u32 s20, s20, s18
    s_cmp_lt_u32 s20, s15
    s_cbranch_scc1 L_dspin
    L_dend:
    s_endpgm
    """)

def kd(name, vgpr, sgpr):
    acc = (vgpr + 3)//4*4
    return f""".section .rodata,"a"
.p2align 6
.amdhsa_kernel {name}
  .amdhsa_next_free_vgpr {vgpr}
  .amdhsa_next_free_sgpr {sgpr}
  .amdhsa_accum_offset {acc}
  .amdhsa_group_segment_fixed_size 0
  .amdhsa_kernarg_size 104
  .amdhsa_user_sgpr_count 2
  .amdhsa_user_sgpr_kernarg_segment_ptr 1
  .amdhsa_system_sgpr_workgroup_id_x 1
.end_amdhsa_kernel
"""

def build():
    main = NAME + "_kernel"
    red = "mha_reduce_kernel"
    out = []
    single = opt.fused and opt.diag < 0 and not opt.extra_launch
    if single:
        out.append(f"; @launch grid=(256,1,1) block=(512,1,1) lds={LDS_BYTES}")
    else:
        out.append(f"; @launch kernel={main} grid=(256,1,1) block=(512,1,1) lds={LDS_BYTES}")
    if not opt.fused:
        out.append(f"; @launch kernel={red} grid=(256,1,1) block=(576,1,1) lds=0")
    if opt.diag >= 0:
        out.append(f"; @launch kernel=diag_kernel grid=(1,1,1) block=(64,1,1) lds=0")
    for _ in range(opt.extra_launch):
        out.append(f"; @launch kernel=nop_kernel grid=(1,1,1) block=(64,1,1) lds=0")
    out.append('.amdgcn_target "amdgcn-amd-amdhsa--gfx950"')
    out.append(".text")
    a = Asm()
    prologue(a); loader(a); compute(a)
    out.append(f".globl {main}\n.p2align 8\n.type {main},@function\n{main}:")
    out.append(a.text())
    if not opt.fused:
        a = Asm(); reduce_kernel(a)
        out.append(f".globl {red}\n.p2align 8\n.type {red},@function\n{red}:")
        out.append(a.text())
    if opt.diag >= 0:
        a = Asm(); diag_kernel(a)
        out.append(".globl diag_kernel\n.p2align 8\n.type diag_kernel,@function\ndiag_kernel:\n" + a.text())
        out.append(kd("diag_kernel", 48, 32))
        out.append(".text")
    if opt.extra_launch:
        out.append(".globl nop_kernel\n.p2align 8\n.type nop_kernel,@function\nnop_kernel:\n    s_endpgm\n")
        out.append(kd("nop_kernel", 8, 16))
        out.append(".text")
    out.append(kd(main, 256, 102))
    if not opt.fused: out.append(kd(red, 56, 32))
    return "\n".join(out)

if __name__ == "__main__":
    path = sys.argv[1]
    for kv in sys.argv[2:]:
        k, v = kv.split("=", 1)
        cur = getattr(opt, k)
        setattr(opt, k, type(cur)(int(v)) if isinstance(cur, (bool, int)) else v)
    open(path, "w").write(build())
```

```python
import sys, math, struct

NAME = "concat_heads__mha_block_cached__gqa_block_cached__near_ridge"

class Opt:
    kv_nt = True
    w_nt = False
    x_nt = False
    part_flags = "sc1"
    stamps = False
    pf_v = True
    pf_wo = True
    prio_load = 0
    extra_launch = 0
    ltime = 0
    pro = 0
    steps = 0
    x_nodma = 0
    x_noread = 0
    x_nowait = 0
    x_nochain = 0
    x_nostore = 0
    x_dbuf = 0
    st_pos = "1516"
    nmark = 2
    d18 = 0
    defer = 1
    xpose = 1
    steps2 = 0
    flag_pos = 1
    g0_at = 14
    g0_split = 4
    sleep = 8
    sleep8 = 2
    st_late = 0
    out_flags = ""
    x_nodsw = 0
    lead = 7
    pub_late = 0
    x_nopub = 0
    fused = 1
    prio_comp = 0
    sched = "0:x1|2:d0|1+:x2,x3,k0|7+:x4,x5,k1,k2,k3|15+:x6,x7,k4,k5,k6|23+:x8,k7,v0|31:v1,v2|32:v4|33:v5|35:v6,v7,v3"
    stagger = "0"
    p2quota = "222222222222222"
    diag = -1
opt = Opt()

class Asm:
    def __init__(self):
        self.l = []
    def __call__(self, s):
        for x in s.strip("\n").split("\n"):
            if not x.strip(): continue
            self.l.append("    " + x.strip() if not x.strip().endswith(":") else x.strip())
    def c(self, s):
        self.l.append("    ; " + s)
    def text(self):
        return "\n".join(self.l) + "\n"

def vr(a, n=1):
    return f"v{a}" if n == 1 else f"v[{a}:{a+n-1}]"
def sr(a, n=1):
    return f"s{a}" if n == 1 else f"s[{a}:{a+n-1}]"

KBASE = 65536
XBASE = 90112
VBASE01 = 131072
WO_RING = 32768
LDS_BYTES = 163840

S_WAVE, S_BR, S_B, S_HG, S_ROT, S_G, S_ROT2 = 3, 30, 31, 48, 49, 50, 14
S_X, S_K, S_V, S_WQ, S_WO, S_OUT, S_DBG, S_WS = 4, 6, 8, 10, 12, 24, 26, 28

FLAG_OFF = 24 << 20
STAGE = 0
STAMP_OFF = 32 << 20

def stamp(a, idx):
    if opt.stamps:
        a(f"s_memrealtime s[{64+2*idx}:{65+2*idx}]")
        a(f"s_memtime s[{80+2*idx}:{81+2*idx}]")

def stamp_flush(a, n):
    if not opt.stamps:
        return
    a(f"""
    s_waitcnt lgkmcnt(0)
    s_lshl_b32 s60, s2, 4
    s_add_u32 s60, s60, s{S_WAVE}
    s_lshl_b32 s60, s60, 7
    s_add_u32 s60, s60, {STAMP_OFF}
    s_add_u32 s56, s{S_WS}, s60
    s_addc_u32 s57, s{S_WS+1}, 0
    s_mov_b32 s58, 128
    s_mov_b32 s59, 0x20000
    v_mov_b32 v250, 0
    """)
    for i in range(2*n):
        a(f"v_mov_b32 v252, s{64+2*i}")
        a(f"v_mov_b32 v253, s{65+2*i}")
        a(f"buffer_store_dwordx2 v[252:253], v250, s[56:59], 0 offen offset:{8*i}")
        a("s_waitcnt vmcnt(0)")

def tbegin(a):
    if opt.stamps and opt.ltime:
        for i in range(16): a(f"s_mov_b64 s[{64+2*i}:{65+2*i}], 0")
        a("s_memtime s[96:97]\ns_waitcnt lgkmcnt(0)")
def tacc(a, idx):
    if opt.stamps and opt.ltime:
        a(f"""
        s_memtime s[98:99]
        s_waitcnt lgkmcnt(0)
        s_sub_u32 s97, s98, s96
        s_add_u32 s{64+2*idx}, s{64+2*idx}, s97
        s_mov_b32 s96, s98
        """)

def srd(a, d, base, off_expr_sreg, size):
    a(f"s_add_u32 s{d}, s{base}, s{off_expr_sreg}")
    a(f"s_addc_u32 s{d+1}, s{base+1}, 0")
    a(f"s_mov_b32 s{d+2}, {size}")
    a(f"s_mov_b32 s{d+3}, 0x20000")

class VM:
    def __init__(self, a):
        self.a = a; self.ops = []
    def issue(self, tag, n=1):
        self.ops += [tag] * n
    def wait(self, tag):
        last = max(i for i, t in enumerate(self.ops) if t == tag)
        n = len(self.ops) - 1 - last
        assert n <= 63, n
        self.a(f"s_waitcnt vmcnt({n})")
    def wait_all(self, tags):
        last = max(i for i, t in enumerate(self.ops) if t in tags)
        assert all(t in self.ops for t in tags), tags
        self.wait(self.ops[last])

def prologue(a):
    a(f"""
    s_cmp_ge_u32 s2, 256
    s_cbranch_scc1 L_end
    {"s_memrealtime s[92:93]" if opt.pro else ""}
    s_load_dwordx16 s[4:19], s[0:1], 0
    s_load_dwordx8 s[20:27], s[0:1], 64
    s_load_dwordx2 s[28:29], s[0:1], 96
    v_lshrrev_b32 v1, 6, v0
    v_and_b32 v0, 63, v0
    v_readfirstlane_b32 s{S_WAVE}, v1
    s_and_b32 s51, s2, 7
    s_lshr_b32 s52, s2, 3
    s_lshr_b32 s{S_BR}, s51, 2
    s_and_b32 s51, s51, 3
    s_lshr_b32 s{S_B}, s52, 1
    s_and_b32 s52, s52, 1
    s_lshl_b32 s51, s51, 1
    s_add_u32 s{S_HG}, s51, s52
    s_mul_i32 s53, s{S_B}, 9
    s_lshr_b32 s53, s53, 4
    s_lshl_b32 s52, s52, 2
    s_add_u32 s{S_ROT}, s53, s52
    s_cmp_ge_u32 s{S_ROT}, 9
    s_cselect_b32 s52, 9, 0
    s_sub_u32 s{S_ROT}, s{S_ROT}, s52
    s_lshl_b32 s{S_G}, s{S_BR}, 4
    s_add_u32 s{S_G}, s{S_G}, s{S_B}
    """)
    stamp(a, 0)
    a(f"""
    s_cmp_eq_u32 s{S_BR}, 0
    s_waitcnt lgkmcnt(0)
    s_cselect_b64 s[4:5], s[4:5], s[14:15]
    s_cselect_b64 s[6:7], s[6:7], s[16:17]
    s_cselect_b64 s[8:9], s[8:9], s[18:19]
    s_cselect_b64 s[10:11], s[10:11], s[20:21]
    s_cselect_b64 s[12:13], s[12:13], s[22:23]
    s_mov_b32 s{S_ROT2}, s53
    {"s_memrealtime s[66:67]" if opt.pro else ""}
    s_cmp_lt_u32 s{S_WAVE}, 4
    s_cbranch_scc1 L_compute
    """)

def dma4(a, vbase, srdr, soff, flags, same_v=False):
    for m in range(4):
        v = vbase if same_v else vbase + m
        a(f"buffer_load_dwordx4 v{v}, s[{srdr}:{srdr+3}], s{soff} offen offset:{m*1024}{flags} lds")

def reduce_setup(a, lane):
    SG, SO = 36, 40
    a(f"s_mul_i32 s52, s{S_G}, {8*73728}")
    srd(a, SG, S_WS, 52, 8*73728)
    a(f"""
    s_mov_b32 s{SO}, s{S_OUT}
    s_mov_b32 s{SO+1}, s{S_OUT+1}
    s_mov_b32 s{SO+2}, {16*64*1152*2}
    s_mov_b32 s{SO+3}, 0x20000
    v_lshrrev_b32 v26, 5, v{lane}
    v_bfe_u32 v27, v{lane}, 3, 2
    v_and_b32 v28, 7, v{lane}
    s_lshr_b32 s52, s{S_HG}, 1
    s_lshl_b32 s56, s52, 10
    s_and_b32 s57, s{S_HG}, 1
    s_lshl_b32 s57, s57, 7
    s_add_u32 s56, s56, s57
    v_lshlrev_b32 v22, 12, v26
    v_lshl_add_u32 v22, v27, 8, v22
    v_lshl_add_u32 v22, v28, 4, v22
    v_add_u32 v22, s56, v22
    {"v_lshrrev_b32 v21, 3, v%d" % lane if opt.xpose else ""}
    v_mul_u32_u24 v23, 2304, {"v21" if opt.xpose else "v28"}
    {"v_lshl_add_u32 v21, v28, 3, v21" if opt.xpose else ""}
    {"v_lshlrev_b32 v21, 2, v21" if opt.xpose else ""}
    {"v_bfe_u32 v26, v%d, 2, 1" % lane if opt.xpose else ""}
    {"v_and_b32 v27, 3, v%d" % lane if opt.xpose else ""}
    v_lshl_add_u32 v23, v26, 6, v23
    v_lshl_add_u32 v23, v27, 3, v23
    s_lshl_b32 s52, s52, 5
    v_lshl_add_u32 v24, v28, 2, s52
    v_bfe_u32 v29, v{lane}, 3, 1
    v_lshl_add_u32 v25, v29, 7, v24
    s_lshl_b32 s52, s{S_B}, 6
    s_lshl_b32 s56, s{S_HG}, 3
    s_add_u32 s52, s52, s56
    s_mul_i32 s52, s52, 2304
    s_mul_i32 s56, s{S_BR}, 1152
    s_add_u32 s15, s52, s56
    v_mul_u32_u24 v24, 0x12000, v28
    v_lshl_add_u32 v24, v29, 12, v24
    s_lshr_b32 s52, s{S_HG}, 1
    s_lshl_b32 s52, s52, 10
    s_and_b32 s56, s{S_HG}, 1
    s_lshl_b32 s56, s56, 7
    s_add_u32 s52, s52, s56
    v_add_u32 v24, s52, v24
    """)

def loader(a):
    vm = VM(a)
    flw = " nt" if opt.w_nt else ""
    flx = " nt" if opt.x_nt else ""
    flkv = " nt" if opt.kv_nt else ""
    SX, SWQ, SK, SV, SWO = 32, 36, 40, 44, 60
    a("L_load:")
    if opt.prio_load: a(f"s_setprio {opt.prio_load}")
    a(f"""
    s_sub_u32 s51, s{S_WAVE}, 4
    s_mul_i32 s52, s{S_B}, 73728
    """)
    srd(a, SX, S_X, 52, 73728)
    a(f"""
    v_lshrrev_b32 v12, 3, v0
    v_mul_u32_u24 v12, 1152, v12
    v_lshrrev_b32 v13, 4, v0
    v_and_b32 v14, 7, v0
    v_xor_b32 v14, v14, v13
    v_lshl_add_u32 v5, v14, 4, v12
    v_xor_b32 v14, 4, v14
    v_lshl_add_u32 v6, v14, 4, v12
    v_add_u32 v6, 8192, v6
    s_lshl_b32 s53, s51, 12
    s_lshl_b32 s59, s51, 11
    s_mul_i32 s54, s51, {16*1152}
    s_lshl_b32 s55, s{S_ROT}, 7
    s_add_u32 s54, s54, s55
    s_mov_b32 s55, s{S_ROT}
    """)
    def xblk(i):
        a(f"s_add_u32 m0, s59, {XBASE + i*8192}")
        a(f"s_add_u32 s55, s55, 1")
        for m in range(2):
            a(f"buffer_load_dwordx4 v{5+m}, s[{SX}:{SX+3}], s54 offen offset:{m*1024}{flx} lds")
        vm.issue(f"x{i}", 2)
        a(f"""
        s_add_u32 s54, s54, 128
        s_cmp_eq_u32 s55, 9
        s_cselect_b32 s55, 0, s55
        s_cselect_b32 s56, 1152, 0
        s_sub_u32 s54, s54, s56
        """)
    if opt.pro: a("s_memrealtime s[68:69]")
    xblk(0)
    a(f"""
    s_lshl_b32 s52, s{S_HG}, 10
    s_mov_b32 s56, {576*8192}
    s_sub_u32 s56, s56, s52
    s_add_u32 s{SWQ}, s{S_WQ}, s52
    s_addc_u32 s{SWQ+1}, s{S_WQ+1}, 0
    s_mov_b32 s{SWQ+2}, s56
    s_mov_b32 s{SWQ+3}, 0x20000
    s_lshl_b32 s57, s{S_ROT}, 19
    s_lshl_b32 s52, s51, 15
    s_add_u32 s57, s57, s52
    """)
    a("s_and_b32 s52, s51, 1")
    a("s_lshl_b32 s52, s52, 3")
    a("v_xor_b32 v10, s52, v0")
    for m in range(4):
        a(f"v_xor_b32 v{1+m}, {2*m}, v10")
        a(f"v_lshlrev_b32 v{1+m}, 4, v{1+m}")
        if m: a(f"v_add_u32 v{1+m}, {m*(8192-1024)}, v{1+m}")
    def wq(u):
        a(f"s_add_u32 m0, s53, {(u%4)*16384}")
        a("s_nop 0")
        dma4(a, 1, SWQ, 57, flw)
        vm.issue(f"w{u}", 4)
        a(f"s_add_u32 s57, s57, {16*8192}")
        if u % 4 == 3:
            a(f"s_cmp_ge_u32 s57, {576*8192}")
            a(f"s_cselect_b32 s56, {576*8192}, 0")
            a(f"s_sub_u32 s57, s57, s56")
    wq(0)
    if opt.pro: a("s_memrealtime s[70:71]")
    wq(1)
    a(f"""
    s_lshl_b32 s52, s{S_B}, 5
    s_lshl_b32 s56, s{S_HG}, 2
    s_add_u32 s52, s52, s56
    s_lshl_b32 s52, s52, 14
    """)
    srd(a, SK, S_K, 52, 65536)
    srd(a, SV, S_V, 52, 65536)
    a(f"""
    s_and_b32 s52, s51, 1
    s_lshl_b32 s52, s52, 3
    v_lshlrev_b32 v12, 8, v13
    v_and_b32 v14, 15, v0
    v_xor_b32 v15, v14, v13
    v_xor_b32 v15, s52, v15
    v_lshl_add_u32 v7, v15, 4, v12
    v_xor_b32 v15, 4, v15
    v_lshl_add_u32 v8, v15, 4, v12
    v_lshlrev_b32 v16, 1, v13
    v_xor_b32 v16, v16, v14
    v_lshl_add_u32 v9, v16, 4, v12
    v_xor_b32 v16, 8, v16
    v_lshl_add_u32 v10, v16, 4, v12
    s_mul_i32 s52, s{S_HG}, {512*1152}
    """)
    srd(a, SWO, S_WO, 52, 512*1152)
    a(f"""
    v_lshrrev_b32 v12, 3, v0
    v_mul_u32_u24 v12, 1152, v12
    v_lshlrev_b32 v14, 1, v13
    v_and_b32 v15, 7, v0
    v_xor_b32 v14, v14, v15
    v_lshl_add_u32 v16, v14, 4, v12
    v_add_u32 v17, 8192, v16
    v_add_u32 v18, 16384, v16
    v_add_u32 v19, 24576, v16
    """)
    def kblk(n):
        a(f"s_add_u32 m0, s59, {KBASE + n*8192}")
        a(f"s_add_u32 s56, s59, {n*8192}")
        for m in range(2):
            a(f"buffer_load_dwordx4 v{7+m}, s[{SK}:{SK+3}], s56 offen offset:{m*1024}{flkv} lds")
        vm.issue(f"k{n}", 2)
    def vblk(n):
        dst = VBASE01 + n*8192 if n < 4 else (n-4)*8192
        a(f"s_add_u32 m0, s59, {dst}")
        a(f"s_add_u32 s56, s59, {n*8192}")
        for m in range(2):
            a(f"buffer_load_dwordx4 v{9+m}, s[{SV}:{SV+3}], s56 offen offset:{m*1024}{flkv} lds")
        vm.issue(f"v{n}", 2)
    def wo_init():
        a(f"""
        s_mul_i32 s54, s51, {32*1152}
        s_lshl_b32 s52, s{S_ROT2}, 7
        s_add_u32 s54, s54, s52
        s_mov_b32 s55, s{S_ROT2}
        """)
    def wo(t):
        a(f"s_add_u32 m0, s53, {((t+2)%10)*16384}")
        if t % 4 == 3: a("s_add_u32 s55, s55, 1")
        else: a("s_nop 0")
        if not (opt.x_nodma and t >= 6): dma4(a, 16, SWO, 54, flw)
        vm.issue(f"o{t}", 4)
        if t % 4 != 3:
            a(f"s_add_u32 s54, s54, {128*1152}")
        else:
            a(f"""
            s_cmp_eq_u32 s55, 9
            s_cselect_b32 s55, 0, s55
            s_cselect_b32 s56, 1152, 0
            s_sub_u32 s54, s54, {3*128*1152-128}
            s_sub_u32 s54, s54, s56
            """)
    F = {"x": xblk, "k": kblk, "v": vblk}
    if opt.fused:
        a(f"""
        s_lshl_b32 s52, s{S_G}, 12
        s_add_u32 s52, s52, {FLAG_OFF}
        """)
        srd(a, 16, S_WS, 52, 4096)
        a(f"""
        s_mov_b32 s20, s{S_DBG}
        s_mov_b32 s21, s{S_DBG+1}
        s_mov_b32 s22, 256
        s_mov_b32 s23, 0x20000
        s_lshl_b32 s52, s{S_G}, 2
        v_mov_b32 v72, s52
        s_add_u32 s56, s{S_HG}, s51
        s_cmp_eq_u32 s56, 0
        s_cselect_b32 s98, 4096, 0
        s_mov_b32 s96, s16
        s_mov_b32 s97, s17
        s_mov_b32 s99, 0x20000
        v_mov_b32 v32, 0
        v_mov_b32 v33, 0
        v_mov_b32 v34, 0
        v_mov_b32 v35, 0
        v_lshlrev_b32 v36, 4, v0
        v_mov_b32 v31, 1
        buffer_store_dwordx4 v[32:35], v36, s[96:99], 0 offen sc1
        buffer_store_dwordx4 v[32:35], v36, s[96:99], 0 offen offset:1024 sc1
        buffer_store_dwordx4 v[32:35], v36, s[96:99], 0 offen offset:2048 sc1
        """)
        vm.issue("z", 3)
    def announce(_):
        if not opt.fused: return
        vm.wait("z")
        a("""
        s_mov_b32 s96, s20
        s_mov_b32 s97, s21
        s_lshr_b32 s98, s98, 4
        buffer_store_dword v31, v72, s[96:99], 0 offen sc1
        """)
        vm.issue("d")
    F["d"] = announce
    a(f"""
    s_lshl_b32 s52, s51, 11
    v_lshl_add_u32 v73, v0, 7, s52
    v_mov_b32 v74, 0x100000
    v_cmp_gt_u32 vcc, 16, v0
    s_nop 1
    v_cndmask_b32 v73, v74, v73, vcc
    """)
    def pfv(n):
        a(f"s_mov_b32 s56, {n*8192}")
        a(f"buffer_load_dword v75, v73, s[{SV}:{SV+3}], s56 offen")
        vm.issue("pf")
    F["p"] = pfv
    if opt.pro:
        a("s_memrealtime s[72:73]")
        vm.wait("x0")
        a("s_memrealtime s[74:75]")
    vm.wait("w0")
    if opt.pro: a("s_memrealtime s[76:77]")
    a("s_barrier")
    if opt.pro: a("s_memrealtime s[78:79]\ns_waitcnt lgkmcnt(0)\ns_mov_b64 s[64:65], s[92:93]")
    wq(2); wq(3)
    offs = [int(x) for x in opt.stagger.split(",")]
    if len(offs) > 1:
        a(f"s_and_b32 s52, s{S_B}, {len(offs)-1}")
        for g in range(1, len(offs)):
            a(f"s_cmp_eq_u32 s52, {g}")
            a(f"s_cbranch_scc1 L_var{g}")
    ops0 = list(vm.ops)
    for g, off in enumerate(offs):
        vm.ops = list(ops0)
        if g: a(f"L_var{g}:")
        ev = {s: [] for s in range(36)}
        for item in opt.sched.split("|"):
            st, names = item.split(":")
            st = int(st[:-1]) + off if st.endswith("+") else int(st[:-1]) + off//2 if st.endswith("h") else int(st)
            for nm in names.split(","):
                n = int(nm[1:])
                free = {"d": 1, "p": -1, "x": -1, "k": 4*(n-3)+3 if n >= 3 else -1, "v": 4*(n+5)+3 if n < 4 else 32+(n-4)//2}[nm[0]]
                assert st >= free, (nm, st, free)
                if nm[0] == "x": assert st < 4*n-1, (nm, st)
                ev[st].append(lambda nm=nm: F[nm[0]](int(nm[1:])))
        for s in range(36):
            need = [f"w{s+1}"] if s < 35 else [f"k{n}" for n in range(8)]
            if s % 4 == 3 and s < 35: need.append(f"x{(s+1)//4}")
            vm.wait_all(need)
            a("s_barrier")
            if s + 4 < 36: wq(s + 4)
            for f in ev[s]: f()
        if g == 0: ops1 = list(vm.ops)
        assert vm.ops[-12:] == ops1[-12:] and sorted(vm.ops) == sorted(ops1)
        if g < len(offs) - 1: a("s_branch L_att")
    a("L_att:")
    vm.ops = ops1
    wo_init()
    wo(0); wo(1)
    SG, SO, SF, SD = 36, 40, 16, 20
    reduce_setup(a, 0)
    if opt.fused:
        a(f"buffer_load_dword v29, v72, s[{SD}:{SD+3}], 0 offen sc1")
        vm.issue("dbg")
    vm.wait_all([f"v{n}" for n in range(8)])
    a("s_barrier")
    wo(2); wo(3)
    vm.wait("o0")
    a("s_barrier")
    wo(4); wo(5)
    def spin(tag, reg, load, label, nowait=False):
        if not nowait: vm.wait(tag)
        a(f"""
        s_mov_b32 s46, 0x8000
        {label}:
        v_cmp_ne_u32 vcc, 1, v{reg}
        s_sub_u32 s46, s46, 1
        s_cbranch_scc1 {label}_ok
        s_nop 3
        s_cbranch_vccz {label}_ok
        s_sleep {opt.sleep}
        {load}
        s_waitcnt vmcnt(0)
        s_branch {label}
        {label}_ok:
        """)
    def task_setup(t_add):
        a(f"""
        s_add_u32 s52, s51, {t_add}
        s_add_u32 s45, s52, s{S_ROT2}
        s_cmp_ge_u32 s45, 9
        s_cselect_b32 s57, 9, 0
        s_sub_u32 s45, s45, s57
        s_lshl_b32 s52, s52, 8
        """)
    def poll_ld(last):
        return f"buffer_load_dword v29, v25, s[{SF}:{SF+3}], s52 offen sc1"
    def gather(base, tag, lo=0, hi=8):
        if lo == 0: a("s_lshl_b32 s44, s45, 13")
        for src in range(lo, hi):
            a(f"buffer_load_dwordx4 {vr(base+4*src,4)}, v22, s[{SG}:{SG+3}], s44 offen sc1")
            if src < 7: a("s_add_u32 s44, s44, 73728")
        vm.issue(tag, hi - lo)
    def put(pk, sreg):
        a(f"s_lshl_b32 s57, s{sreg}, 7")
        a("s_add_u32 s57, s57, s15")
        a(f"buffer_store_dwordx2 {vr(pk,2)}, v23, s[{SO}:{SO+3}], s57 offen {opt.out_flags}")
        a(f"buffer_store_dwordx2 {vr(pk+2,2)}, v23, s[{SO}:{SO+3}], s57 offen offset:32 {opt.out_flags}")
        vm.issue("out", 2)
    def total(base, sreg, tag, later, pk=76, now=True):
        for src in range(8):
            a(f"s_waitcnt vmcnt({7-src+later})")
            for e in range(4):
                x = base + 4*src + e
                if src == 0:
                    a(f"v_lshlrev_b32 v{64+2*e}, 16, v{x}")
                    a(f"v_and_b32 v{65+2*e}, 0xffff0000, v{x}")
                else:
                    a(f"v_lshlrev_b32 v74, 16, v{x}")
                    a(f"v_and_b32 v75, 0xffff0000, v{x}")
                    a(f"v_pk_add_f32 {vr(64+2*e,2)}, {vr(64+2*e,2)}, v[74:75]")
        for e in range(4):
            a(cvt(pk+e, 64+2*e))
        if opt.xpose:
            for e in range(4): a(f"ds_bpermute_b32 v{pk+e}, v21, v{pk+e}")
            if now: a("s_waitcnt lgkmcnt(0)")
        if now: put(pk, sreg)
    nxt = 6
    assert opt.lead <= 7
    for i in range(18):
        vm.wait(f"o{min(2*i+2, 35)}")
        a("s_barrier")
        if i == 1 and opt.fused:
            spin("dbg", 29, f"buffer_load_dword v29, v72, s[{SD}:{SD+3}], 0 offen sc1", "L_dbg")
        for _ in range(opt.lead - 5 if i == 0 else 2):
            if nxt < 36:
                assert nxt <= 2*i + 9
                wo(nxt); nxt += 1
        if opt.fused and i == opt.g0_at - 1:
            task_setup(0); a(poll_ld(False)); vm.issue("poll0")
        if opt.fused and i == opt.g0_at:
            spin("poll0", 29, poll_ld(False), "L_poll0")
            gather(80, "g0", 0, opt.g0_split)
            a("s_mov_b32 s59, s45")
        if opt.fused and i == opt.g0_at + 1 and opt.g0_split < 8:
            gather(80, "g0", opt.g0_split, 8)
        if opt.fused and i == 17:
            task_setup(4)
    assert nxt == 36
    if opt.fused:
        later = len(vm.ops) - 1 - max(i for i, t in enumerate(vm.ops) if t == "g0")
        total(80, 59, "g0", later, pk=112, now=not opt.defer)
        stamp(a, 1)
        if opt.d18: a("s_barrier")
        a(f"""
        s_mov_b32 s46, 0x8000
        s_cmp_ge_u32 s51, {5 - opt.nmark}
        s_cselect_b32 s44, -1, 0
        L_again:
        s_lshl_b32 s57, s45, 13
        buffer_load_dword v31, v24, s[{SG}:{SG+3}], s57 offen sc1
        buffer_load_dword v29, v25, s[{SF}:{SF+3}], s52 offen sc1
        s_waitcnt vmcnt(0)
        v_cmp_ne_u32 s[56:57], 1, v29
        v_cmp_eq_u32 vcc, -1, v31
        s_sub_u32 s46, s46, 1
        s_cbranch_scc1 L_give
        s_cmp_eq_u64 s[56:57], 0
        s_cbranch_scc1 L_give
        s_mov_b32 s47, 0
        s_cmp_eq_u32 s44, 0
        s_cbranch_scc1 L_nap
        s_cbranch_vccz L_go
        L_nap:
        s_sleep {opt.sleep8}
        s_branch L_again
        L_give:
        s_mov_b32 s47, 1
        L_go:
        """)
        if opt.stamps: a("s_waitcnt lgkmcnt(0)")
        stamp(a, 2)
        a("s_lshl_b32 s57, s45, 13")
        for src in range(8):
            a(f"buffer_load_dwordx4 {vr(80+4*src,4)}, v22, s[{SG}:{SG+3}], s57 offen sc1")
            if src < 7: a("s_add_u32 s57, s57, 73728")
        a("s_cmp_eq_u32 s47, 1")
        a("s_cbranch_scc1 L_sum")
        a("s_waitcnt vmcnt(7)")
        a("v_max3_u32 v26, v80, v81, v82")
        a("v_max_u32 v26, v26, v83")
        for src in range(1, 8):
            a(f"s_waitcnt vmcnt({7-src})")
            a(f"v_max3_u32 v26, v26, v{80+4*src}, v{81+4*src}")
            a(f"v_max3_u32 v26, v26, v{82+4*src}, v{83+4*src}")
        a("""
        v_cmp_eq_u32 vcc, -1, v26
        s_nop 4
        s_cbranch_vccnz L_nap
        """)
        a("L_sum:")
        total(80, 45, "g1", 0)
        if opt.defer:
            a(f"s_cmp_lt_u32 s{S_WAVE}, 4" if not opt.stamps else f"s_cmp_eq_u32 s{S_WAVE}, 8")
            a("s_cbranch_scc1 L_load_end")
            put(112, 59)
        stamp(a, 3)
        a("L_load_end:")
        if opt.stamps and not (opt.ltime or opt.pro):
            a("s_waitcnt vmcnt(0)")
            stamp(a, 0)
            stamp_flush(a, 3)
    if opt.ltime or opt.pro: stamp_flush(a, 8)
    a("s_endpgm")

def mfma(a, d, A, B, C=None):
    c = "0" if C == "zero" else vr(d if C is None else C, 4)
    a(f"v_mfma_f32_16x16x32_bf16 {vr(d,4)}, {vr(A,4)}, {vr(B,4)}, {c}")

def weave(a, mf, fill, per=lambda k: 1, start=0):
    fill = list(fill)
    for k, m in enumerate(mf):
        m()
        if k >= start:
            for _ in range(per(k)):
                if fill: a(fill.pop(0))
    for f in fill: a(f)

def cvt(d, s0):
    return f"v_cvt_pk_bf16_f32 v{d}, v{s0}, v{s0+1}"

def xreduce(a, op, m, t, mid):
    a("s_nop 1")
    a(f"v_permlane16_swap_b32 v{m[0]}, v{m[1]}")
    a(f"v_permlane16_swap_b32 v{m[2]}, v{m[3]}")
    a("s_nop 0")
    a(f"{op} v{m[0]}, v{m[0]}, v{m[1]}")
    a(f"{op} v{m[2]}, v{m[2]}, v{m[3]}")
    a("s_nop 1")
    a(f"v_permlane32_swap_b32 v{m[0]}, v{m[2]}")
    a("s_nop 1")
    a(f"{op} v{m[0]}, v{m[0]}, v{m[2]}")
    mid(m[0])
    a(f"v_mov_b32 v{m[2]}, v{m[0]}")
    a("s_nop 1")
    a(f"v_permlane32_swap_b32 v{m[0]}, v{m[2]}")
    a("s_nop 1")
    a(f"v_mov_b32 v{m[1]}, v{m[0]}")
    a(f"v_mov_b32 v{m[3]}, v{m[2]}")
    a("s_nop 1")
    a(f"v_permlane16_swap_b32 v{m[0]}, v{m[1]}")
    a(f"v_permlane16_swap_b32 v{m[2]}, v{m[3]}")
    a("s_nop 1")

def compute(a):
    FB = [128, 176]
    AW, AX, L16, ROW4, C8, AK = 224, 232, 236, 237, 238, 240
    a("L_compute:")
    if opt.prio_comp: a(f"s_setprio {opt.prio_comp}")
    a(f"""
    v_lshrrev_b32 v1, 4, v0
    v_and_b32 v2, 15, v0
    v_lshrrev_b32 v{ROW4}, 2, v0
    v_and_b32 v3, 3, v0
    v_lshlrev_b32 v{C8}, 3, v3
    v_lshlrev_b32 v{L16}, 4, v0
    s_lshl_b32 s51, s{S_WAVE}, 8
    v_lshl_add_u32 v4, v{ROW4}, 10, v{C8}
    v_add_u32 v4, s51, v4
    v_and_b32 v5, 7, v{ROW4}
    """)
    for dt in range(8):
        a(f"v_xor_b32 v6, {dt}, v5")
        a(f"v_lshl_add_u32 v{AW+dt}, v6, 5, v4")
    a(f"""
    v_lshrrev_b32 v4, 3, v2
    v_lshlrev_b32 v4, 10, v4
    v_and_b32 v5, 7, v2
    v_lshl_add_u32 v4, v5, 7, v4
    v_and_b32 v5, 1, v1
    v_lshlrev_b32 v7, 3, v5
    v_add_u32 v4, v4, v7
    v_add_u32 v4, {XBASE}, v4
    v_lshrrev_b32 v8, 1, v1
    v_lshrrev_b32 v5, 1, v2
    v_xor_b32 v5, v5, v8
    """)
    for sp in range(4):
        a(f"v_xor_b32 v6, {2*sp}, v5")
        a(f"v_lshl_add_u32 v{AX+sp}, v6, 4, v4")
    a(f"""
    s_lshl_b32 s51, s{S_WAVE}, 14
    s_add_u32 s52, s51, {KBASE}
    v_lshl_add_u32 v4, v2, 8, v7
    v_add_u32 v4, s52, v4
    v_xor_b32 v5, v2, v8
    """)
    for i in range(8):
        a(f"v_xor_b32 v6, {2*i}, v5")
        a(f"v_lshl_add_u32 v{AK+i}, v6, 4, v4")
    a(f"""
    s_add_u32 s52, s51, {VBASE01}
    s_cmp_ge_u32 s{S_WAVE}, 2
    s_cselect_b32 s53, {LDS_BYTES}, 0
    s_sub_u32 s52, s52, s53
    s_lshl_b32 s53, s{S_G}, 3
    s_add_u32 s53, s53, s{S_HG}
    s_mul_i32 s53, s53, 73728
    """)
    srd(a, 32, S_WS, 53, 73728)
    for i in range(128):
        a(f"v_mov_b32 v{i}, 0")
    def reads(u):
        fb = FB[(u >> 1) & 1] + 2*(u & 1)
        r = [f"ds_read_b64_tr_b16 {vr(fb+4*dt,2)}, v{AW+dt} offset:{(u%4)*16384}" for dt in range(8)]
        x = [f"ds_read_b64 {vr(fb+32+4*qt,2)}, v{AX+u%4} offset:{qt*2048}" for qt in range(4)]
        return x + r
    def half(buf, hf):
        return [lambda dt=dt, qt=qt: mfma(a, 16*dt+4*qt, FB[buf]+4*dt, FB[buf]+32+4*qt) for dt in range(4*hf, 4*hf+4) for qt in range(4)]
    def interval(buf, hf, rd, pre=(), mark=True):
        mf = half(buf, hf)
        if opt.steps and mark: a("s_memrealtime s[96:97]")
        weave(a, mf[:15], list(pre) + rd)
        a("s_waitcnt lgkmcnt(0)")
        if opt.steps and mark: a("v_writelane_b32 v250, s96, m0\ns_add_u32 m0, m0, 1")
        mf[15]()
    a("s_barrier")
    stamp(a, 1)
    for r in reads(0): a(r)
    a("s_mov_b32 s54, 9")
    if opt.steps: a("s_mov_b32 m0, 0\nv_mov_b32 v250, 0")
    a("s_waitcnt lgkmcnt(0)")
    a("s_barrier")
    for r in reads(1): a(r)
    a("s_waitcnt lgkmcnt(0)")
    a("L_g1_loop:")
    a("s_barrier")
    interval(0, 0, reads(2))
    a("s_barrier")
    interval(0, 1, reads(3), pre=["s_sub_u32 s54, s54, 1"])
    a("""
    s_cmp_eq_u32 s54, 0
    s_cbranch_scc1 L_g1_last
    s_barrier
    """)
    interval(1, 0, reads(4), pre=[f"v_add_u32 v{AX}, 8192, v{AX}"])
    a("s_barrier")
    interval(1, 1, reads(5), pre=[f"v_add_u32 v{AX+i}, 8192, v{AX+i}" for i in range(1, 4)])
    a("s_branch L_g1_loop")
    a("L_g1_last:")
    a("s_barrier")
    if opt.steps:
        a(f"""
        s_lshl_b32 s60, s2, 2
        s_add_u32 s60, s60, s{S_WAVE}
        s_lshl_b32 s60, s60, 8
        s_add_u32 s60, s60, {STAMP_OFF + (1 << 20)}
        s_add_u32 s56, s{S_WS}, s60
        s_addc_u32 s57, s{S_WS+1}, 0
        s_mov_b32 s58, 256
        s_mov_b32 s59, 0x20000
        v_lshrrev_b32 v251, 2, v{L16}
        buffer_store_dword v250, v251, s[56:59], 0 offen
        """)
    KF = lambda kt, ds: 128 + 16*ds + 4*kt
    krd = lambda ds: [f"ds_read_b64 {vr(KF(kt,ds)+2*jj,2)}, v{AK+2*ds+jj} offset:{kt*4096}" for kt in range(4) for jj in range(2)]
    weave(a, half(1, 0), krd(0) + krd(1) + krd(2), per=lambda k: 2)
    QF = lambda ds, qt: 64*(ds >> 1) + 16*(ds & 1) + 4*qt
    def qcvt(ds):
        return [cvt(QF(ds, qt)+2*u+e, 32*ds+16*u+4*qt+2*e) for qt in range(4) for u in range(2) for e in range(2)]
    av = [f"v_lshl_add_u32 v248, v{ROW4}, 8, v{C8}", "v_add_u32 v248, s52, v248", f"v_and_b32 v249, 7, v{ROW4}"]
    for dt in range(8):
        av += [f"v_xor_b32 v239, {dt}, v249", f"v_lshl_add_u32 v{AW+dt}, v239, 5, v248"]
    weave(a, half(1, 1), krd(3) + qcvt(0) + qcvt(1)[:8], per=lambda k: 2)
    stamp(a, 2)
    for x in qcvt(1)[8:]: a(x)
    a("s_waitcnt lgkmcnt(8)")
    S = lambda kt, qt: (32 if kt < 2 else 192) + 16*(kt & 1) + 4*qt
    g2 = lambda ds, kt, qt: (lambda: mfma(a, S(kt, qt), KF(kt, ds), QF(ds, qt), "zero" if ds == 0 else None))
    cbits = struct.unpack("<I", struct.pack("<f", math.log2(math.e) / math.sqrt(128.0)))[0]
    vals = [[S(kt, qt) + e for kt in range(4) for e in range(4)] for qt in range(4)]
    M = [240, 242, 244, 246]; SUM = [232, 234, 248, 250]
    def rowmax(qt):
        v = vals[qt]
        return ([f"v_max3_f32 v{M[qt]}, v{v[0]}, v{v[1]}, v{v[2]}"] +
                [f"v_max3_f32 v{M[qt]}, v{M[qt]}, v{v[i]}, v{v[i+1]}" for i in range(3, 15, 2)] +
                [f"v_max_f32 v{M[qt]}, v{M[qt]}, v{v[15]}"])
    weave(a, [g2(ds, kt, qt) for ds in range(2) for kt in range(4) for qt in range(4)],
          qcvt(2) + qcvt(3) + av + [f"s_mov_b32 s56, {hex(cbits)}", f"s_mov_b32 s57, {hex(cbits)}", "s_waitcnt lgkmcnt(0)"], per=lambda k: 2)
    for qt in range(4):
        weave(a, [g2(ds, kt, qt) for ds in (2, 3) for kt in range(4)], rowmax(qt-1) if qt else [], per=lambda k: 2, start=4)
    stamp(a, 3)
    a("s_nop 3")
    m3 = rowmax(3)
    a(m3[0]); a(m3[1]); a("s_nop 1")
    for x in m3[2:]: a(x)
    VF = lambda dt, ks: 128 + 16*(dt >> 1) + 8*ks + 4*(dt & 1)
    vrd = [f"ds_read_b64_tr_b16 {vr(VF(dt,ks)+2*j,2)}, v{AW+dt} offset:{ks*8192+j*4096}" for dt in range(8) for ks in range(2) for j in range(2)]
    xreduce(a, "v_max_f32", M, None, lambda u: a(f"v_mul_f32 v{u}, s56, v{u}"))
    for i in range(0, 16, 2):
        for qt in range(4):
            x = vals[qt][i]
            a(f"v_pk_fma_f32 {vr(x,2)}, {vr(x,2)}, s[56:57], {vr(M[qt],2)} op_sel_hi:[1,1,0] neg_lo:[0,0,1] neg_hi:[0,0,1]")
    for i in range(16):
        for qt in range(4):
            a(f"v_exp_f32 v{vals[qt][i]}, v{vals[qt][i]}")
    for qt in range(4):
        a(f"v_pk_add_f32 {vr(SUM[qt],2)}, {vr(vals[qt][0],2)}, {vr(vals[qt][2],2)}")
    for i in range(4, 16, 2):
        for qt in range(4):
            a(f"v_pk_add_f32 {vr(SUM[qt],2)}, {vr(SUM[qt],2)}, {vr(vals[qt][i],2)}")
    for qt in range(4):
        a(f"v_add_f32 v{SUM[qt]}, v{SUM[qt]}, v{SUM[qt]+1}")
    xreduce(a, "v_add_f32", SUM, None, lambda u: a(f"v_rcp_f32 v{u}, v{u}\ns_nop 0"))
    a("s_barrier")
    PF = lambda ks, qt: 96 + 16*ks + 4*qt
    for i in range(0, 16, 2):
        for qt in range(4):
            x = vals[qt][i]
            a(f"v_pk_mul_f32 {vr(x,2)}, {vr(x,2)}, {vr(SUM[qt],2)} op_sel_hi:[1,0]")
            a(vrd.pop(0))
    for ks in range(2):
        for qt in range(4):
            for u in range(2):
                for e in range(2):
                    a(cvt(PF(ks, qt)+2*u+e, S(2*ks+u, qt)+2*e))
    a("s_waitcnt lgkmcnt(0)")
    a("s_nop 0")
    if not opt.fused: stamp(a, 4)
    OT = lambda dt, qt: (16*dt if dt < 6 else 192 + 16*(dt-6)) + 4*qt
    g3 = lambda p: [lambda ks=ks, dt=dt, qt=qt: mfma(a, OT(dt, qt), VF(dt, ks), PF(ks, qt), "zero" if ks == 0 else None)
                    for ks in range(2) for dt in (2*p, 2*p+1) for qt in range(4)]
    OW, OR0, OR1, PV, AOB, AO, FV, ONE = 242, 243, 244, 245, 246, 248, 252, 253
    ad = f"""
    s_lshr_b32 s53, s{S_WAVE}, 1
    s_and_b32 s55, s{S_WAVE}, 1
    v_add_u32 v{OW}, s52, v{L16}
    s_lshl_b32 s55, s55, 11
    v_add_u32 v{OR1}, s55, v{L16}
    v_add_u32 v{OR0}, {VBASE01}, v{OR1}
    s_lshl_b32 s55, s{S_WAVE}, 11
    v_add_u32 v{PV}, s55, v{L16}
    s_lshl_b32 s53, s53, 1
    v_lshl_add_u32 v239, v{ROW4}, 7, v{C8}
    v_bfe_u32 v240, v{ROW4}, 1, 2
    v_xor_b32 v240, s53, v240
    v_lshl_add_u32 v{AOB}, v240, 5, v239
    v_xor_b32 v240, 1, v240
    v_lshl_add_u32 v{AOB+1}, v240, 5, v239
    v_add_u32 v{AO}, {WO_RING}, v{AOB}
    v_add_u32 v{AO+1}, {WO_RING}, v{AOB+1}
    s_lshl_b32 s55, s{S_G}, 12
    s_add_u32 s55, s55, {FLAG_OFF}
    s_add_u32 s36, s{S_WS}, s55
    s_addc_u32 s37, s{S_WS+1}, 0
    s_mov_b32 s38, 0
    s_mov_b32 s39, 0x20000
    s_lshl_b32 s55, s{S_WAVE}, 6
    s_lshl_b32 s53, s{S_HG}, 2
    s_add_u32 s55, s55, s53
    v_lshl_add_u32 v{FV}, v{L16}, 1, s55
    v_mov_b32 v{ONE}, 0x10000
    v_cmp_gt_u32 vcc, 32, v{L16}
    s_nop 0
    s_nop 0
    v_cndmask_b32 v{FV}, v{ONE}, v{FV}, vcc
    v_mov_b32 v{ONE}, 1
    """.strip().split("\n")
    OF = lambda k4, qt: 128 + 16*k4 + 4*qt
    def ocvt(k4):
        r = []
        for qt in range(4):
            r += [cvt(OF(k4, qt)+2*u+e, OT(2*k4+u, qt)+2*e) for u in range(2) for e in range(2)]
            r.append(f"ds_write_b128 v{OW}, {vr(OF(k4,qt),4)} offset:{(k4*4+qt)*1024}")
        return r
    weave(a, g3(0), ad[:30], per=lambda k: 2)
    weave(a, g3(1), ad[30:] + ocvt(0), per=lambda k: 2, start=2)
    weave(a, g3(2), ocvt(1), per=lambda k: 2, start=4)
    weave(a, g3(3), ocvt(2), per=lambda k: 2, start=4)
    a("s_nop 4")
    for x in ocvt(3): a(x)
    a("s_waitcnt lgkmcnt(0)")
    a("s_barrier")
    stamp(a, 5)
    ACCA, ACCB, WB, PKA, PKB = 128, 144, 160, 192, 200
    def wread(k4, ni):
        return [f"ds_read_b64_tr_b16 {vr(WB+8*k4+4*ni+2*j,2)}, v{AO+ni} offset:{k4*4096+j*2048}" for j in range(2)]
    def oread(h):
        return [f"ds_read_b128 {vr(32*h+8*k4+4*qi,4)}, v{OR0 if h < 2 else OR1} offset:{(h&1)*16384+(k4*4+qi)*1024}" for k4 in range(4) for qi in range(2)]
    for h in range(2):
        for r in oread(h): a(r)
    for k4 in range(4):
        for ni in range(2):
            for r in wread(k4, ni)[:1 if (k4, ni) == (3, 1) else 2]: a(r)
    a(f"""
    s_mov_b32 s54, 0
    s_mov_b32 s55, {WO_RING+16384}
    v_add_u32 v{AO}, s55, v{AOB}
    s_lshl_b32 s58, s{S_ROT2}, 13
    s_sub_u32 s61, s58, 8192
    s_cselect_b32 s61, 65536, s61
    s_sub_u32 s62, s61, 8192
    s_cselect_b32 s62, 65536, s62
    s_sub_u32 s63, s62, 8192
    s_cselect_b32 s63, 65536, s63
    s_mov_b32 s60, -256
    """)
    for i in range(4): a(f"v_mov_b32 v{PKA+i}, -1")
    if opt.steps2: a("s_mov_b32 m0, 0\ns_memrealtime s[96:97]")
    a("s_waitcnt lgkmcnt(0)")
    def cvts(pk):
        return [cvt(pk+4*qi+2*ni+e, ACCB+8*qi+4*ni+2*e) for qi in range(2) for ni in range(2) for e in range(2)]
    def store(pk, qi, soff):
        if opt.x_nostore: return "s_nop 0"
        return f"buffer_store_dwordx4 {vr(pk,4)}, v{PV}, s[32:35], s{soff} offen offset:{qi*1024} {opt.part_flags}".rstrip()
    flagst = f"buffer_store_dword v{ONE}, v{FV}, s[36:39], s60 offen sc1" if opt.fused else "s_nop 0"
    def adv(r):
        return [f"s_add_u32 s{r}, s{r}, 16384", f"s_cmp_ge_u32 s{r}, 73728", f"s_cselect_b32 s53, 73728, 0", f"s_sub_u32 s{r}, s{r}, s53"]
    def block(extra):
        for kq in range(4):
            if kq % 2 == 0:
                if opt.steps2: a("s_waitcnt lgkmcnt(0)\nv_writelane_b32 v250, s96, m0\ns_add_u32 m0, m0, 1")
                a("s_barrier")
                if opt.steps2: a("s_memrealtime s[96:97]")
            ex = list(extra[kq])
            sl = ["s_add_u32 s55, s55, 16384", f"s_cmp_eq_u32 s55, {LDS_BYTES}", "s_cselect_b32 s55, 0, s55"]
            if len(ex) <= 7:
                ex = ex[:5] + [None]*(5 - len(ex[:5])) + sl + ex[5:]
            else:
                ex = ex[:8] + [sl[0] + "\n" + sl[1], sl[2]] if len(ex) == 8 else None
            for k4 in range(4):
                for ni in range(2):
                    for qi in range(2):
                        first = kq == 0 and k4 == 0
                        last = kq == 3 and k4 == 3
                        t = 8*qi + 4*ni
                        if last: mfma(a, ACCB+t, WB+8*k4+4*ni, 32*kq+8*k4+4*qi, ACCA+t)
                        else: mfma(a, ACCA+t, WB+8*k4+4*ni, 32*kq+8*k4+4*qi, "zero" if first else None)
                        g = 4*k4 + 2*ni + qi
                        if not opt.x_noread:
                            if qi == 1: a(wread(k4, ni)[0])
                            else:
                                pk4, pni = (k4, 0) if ni == 1 else ((k4 - 1) % 4, 1)
                                a(wread(pk4, pni)[1])
                        if g % 4 == 3: a("s_waitcnt lgkmcnt(11)")
                        elif g == 0: a(f"v_add_u32 v{AO+1}, s55, v{AOB+1}")
                        elif g == 14: a(f"v_add_u32 v{AO}, s55, v{AOB}")
                        elif ex:
                            x = ex.pop(0)
                            if x: a(x)
            assert not ex, (kq, ex)
    o2, o3 = oread(2), oread(3)
    mark = lambda n, r: [None]*5 + [store(PKA, 0, r), store(PKA, 1, r)] if opt.fused and opt.nmark >= n else []
    block([[x + "\n" + y for x, y in zip(o2, o3)], mark(1, 61), mark(2, 62), mark(3, 63)])
    a("L_p2_loop:")
    ex = [cvts(PKA), [None]*7, [None]*7, [None]*7]
    p = [int(c) for c in opt.st_pos]
    ex[p[0]][p[1]] = store(PKA, 0, 58)
    ex[p[2]][p[3]] = store(PKA+4, 1, 58) + "\ns_waitcnt vmcnt(2)\n" + flagst
    assert p[2] < 3 or p[3] < 2
    ex[3][2:7] = ["s_add_u32 s58, s58, 8192\ns_add_u32 s60, s60, 256", "s_cmp_eq_u32 s58, 73728", "s_cselect_b32 s58, 0, s58", "s_mov_b32 s38, 4096", "s_add_u32 s54, s54, 1"]
    block(ex)
    a("""
    s_cmp_lg_u32 s54, 8
    s_cbranch_scc1 L_p2_loop
    s_nop 7
    """)
    if opt.steps2:
        a(f"""
        s_waitcnt lgkmcnt(0)
        v_writelane_b32 v250, s96, m0
        s_lshl_b32 s53, s2, 2
        s_add_u32 s53, s53, s{S_WAVE}
        s_lshl_b32 s53, s53, 8
        s_add_u32 s53, s53, {STAMP_OFF + (1 << 20)}
        s_add_u32 s40, s{S_WS}, s53
        s_addc_u32 s41, s{S_WS+1}, 0
        s_mov_b32 s42, 256
        s_mov_b32 s43, 0x20000
        v_lshrrev_b32 v251, 2, v{L16}
        buffer_store_dword v250, v251, s[40:43], 0 offen
        """)
    stamp(a, 6)
    cv = cvts(PKA)
    for x in cv[:4] + [store(PKA, 0, 61)] + cv[4:] + [store(PKA+4, 1, 61)]: a(x)
    if opt.fused:
        if opt.d18: a("s_barrier")
        a("s_waitcnt vmcnt(2)\n" + flagst + "\ns_add_u32 s60, s60, 256")
        a(f"""
        s_mov_b32 s16, s36
        s_mov_b32 s17, s37
        s_mov_b32 s18, 4096
        s_mov_b32 s19, 0x20000
        s_cmp_eq_u32 s{S_WAVE}, 0
        s_cbranch_scc1 L_last
        s_waitcnt vmcnt(1)
        """)
        a(flagst)
        if opt.stamps:
            a("s_waitcnt lgkmcnt(0)"); stamp(a, 4)
            a("s_waitcnt vmcnt(0)"); stamp(a, 7); stamp_flush(a, 8)
        a("s_endpgm")
        a("L_last:")
        a(f"v_lshrrev_b32 v30, 4, v{L16}")
        reduce_setup(a, 30)
        a(f"""
        s_lshr_b32 s45, s61, 13
        s_mov_b32 s52, 2048
        s_waitcnt vmcnt(1)
        """)
        a(flagst.replace("s[36:39]", "s[16:19]"))
        if opt.stamps: a(f"s_mov_b32 s{S_WAVE}, 8"); stamp(a, 1)
        a("s_mov_b32 s46, 0x8000\ns_mov_b32 s47, 0\ns_mov_b32 s44, -1\ns_branch L_go")
    if opt.stamps and not opt.fused:
        a("s_waitcnt vmcnt(0)")
        stamp(a, 7)
        stamp_flush(a, 8)
    a("L_end:")
    a("s_endpgm")

def reduce_kernel(a):
    a(f"""
    s_cmp_ge_u32 s2, 256
    s_cbranch_scc1 L_rend
    s_load_dwordx2 s[4:5], s[0:1], 80
    s_load_dwordx2 s[6:7], s[0:1], 96
    v_lshrrev_b32 v1, 6, v0
    v_and_b32 v0, 63, v0
    v_readfirstlane_b32 s3, v1
    s_lshr_b32 s8, s2, 3
    s_and_b32 s9, s2, 7
    v_lshrrev_b32 v1, 3, v0
    v_and_b32 v2, 7, v0
    v_lshrrev_b32 v3, 2, v1
    v_and_b32 v5, 3, v1
    s_lshr_b32 s10, s9, 1
    s_and_b32 s11, s9, 1
    s_lshl_b32 s10, s10, 10
    s_lshl_b32 s11, s11, 7
    s_add_u32 s10, s10, s11
    s_lshl_b32 s11, s3, 13
    s_add_u32 s10, s10, s11
    v_lshlrev_b32 v6, 6, v3
    v_lshlrev_b32 v3, 12, v3
    v_lshl_add_u32 v3, v5, 8, v3
    v_lshl_add_u32 v3, v2, 4, v3
    v_add_u32 v3, s10, v3
    v_lshl_add_u32 v6, v5, 3, v6
    s_mul_i32 s12, s8, {8*73728}
    s_and_b32 s13, s8, 15
    s_lshr_b32 s14, s8, 4
    s_lshl_b32 s13, s13, 6
    s_lshl_b32 s15, s9, 3
    s_add_u32 s13, s13, s15
    s_mul_i32 s13, s13, 2304
    s_mul_i32 s14, s14, 1152
    s_add_u32 s13, s13, s14
    s_lshl_b32 s14, s3, 7
    s_add_u32 s13, s13, s14
    v_mul_u32_u24 v4, 2304, v2
    v_add_u32 v4, v6, v4
    s_waitcnt lgkmcnt(0)
    s_add_u32 s16, s6, s12
    s_addc_u32 s17, s7, 0
    s_mov_b32 s18, {8*73728}
    s_mov_b32 s19, 0x20000
    s_mov_b32 s20, s4
    s_mov_b32 s21, s5
    s_mov_b32 s22, {16*64*1152*2}
    s_mov_b32 s23, 0x20000
    """)
    for s in range(8):
        a(f"s_mov_b32 s24, {s*73728}")
        a(f"buffer_load_dwordx4 {vr(8+4*s,4)}, v3, s[16:19], s24 offen")
    for s in range(8):
        a(f"s_waitcnt vmcnt({7-s})")
        for e in range(4):
            x = 8+4*s+e
            if s == 0:
                a(f"v_lshlrev_b32 v{40+2*e}, 16, v{x}")
                a(f"v_and_b32 v{41+2*e}, 0xffff0000, v{x}")
            else:
                a(f"v_lshlrev_b32 v48, 16, v{x}")
                a(f"v_and_b32 v49, 0xffff0000, v{x}")
                a(f"v_pk_add_f32 {vr(40+2*e,2)}, {vr(40+2*e,2)}, v[48:49]")
    for e in range(4):
        a(f"v_cvt_pk_bf16_f32 v{8+e}, v{40+2*e}, v{41+2*e}")
    a("buffer_store_dwordx2 v[8:9], v4, s[20:23], s13 offen")
    a("buffer_store_dwordx2 v[10:11], v4, s[20:23], s13 offen offset:32")
    if opt.stamps:
        a(f"""
        s_waitcnt vmcnt(0)
        s_memrealtime s[24:25]
        s_cmp_ge_u32 s3, 4
        s_cbranch_scc1 L_rend
        s_lshl_b32 s26, s2, 4
        s_add_u32 s26, s26, s3
        s_lshl_b32 s26, s26, 7
        s_add_u32 s26, s26, {STAMP_OFF}
        s_add_u32 s16, s6, s26
        s_addc_u32 s17, s7, 0
        s_mov_b32 s18, 128
        s_waitcnt lgkmcnt(0)
        v_mov_b32 v8, s24
        v_mov_b32 v9, s25
        v_mov_b32 v10, 0
        buffer_store_dwordx2 v[8:9], v10, s[16:19], 0 offen offset:120
        """)
    a("L_rend:")
    a("s_endpgm")

def diag_kernel(a):
    a(f"""
    s_cmp_ge_u32 s2, 1
    s_cbranch_scc1 L_dend
    s_load_dwordx2 s[6:7], s[0:1], 96
    v_lshrrev_b32 v1, 2, v0
    v_and_b32 v2, 3, v0
    v_lshlrev_b32 v1, 11, v1
    v_add_u32 v4, 5, v2
    v_lshl_add_u32 v4, v4, 7, v1
    v_max_u32 v2, 1, v2
    v_lshl_add_u32 v1, v2, 7, v1
    s_waitcnt lgkmcnt(0)
    s_add_u32 s8, s6, {STAMP_OFF}
    s_addc_u32 s9, s7, 0
    s_mov_b32 s10, {512*1024}
    s_mov_b32 s11, 0x20000
    """)
    for i in range(16):
        a(f"s_mov_b32 s12, {i*32768}")
        a(f"buffer_load_dword v{8+i}, v1, s[8:11], s12 offen")
        a(f"buffer_load_dword v{24+i}, v1, s[8:11], s12 offen offset:{8*opt.diag}" if opt.diag < 20 else f"buffer_load_dword v{24+i}, v4, s[8:11], s12 offen")
    a("s_waitcnt vmcnt(0)")
    a("v_readfirstlane_b32 s13, v8")
    a("s_sub_u32 s13, s13, 100000")
    a("s_nop 1")
    for i in range(32):
        a(f"v_subrev_u32 v{8+i}, s13, v{8+i}")
    for i in range(1, 16):
        a(f"v_min_u32 v8, v8, v{8+i}")
        a(f"v_max_u32 v24, v24, v{24+i}")
    a("s_mov_b32 s14, -1\ns_mov_b32 s15, 0\ns_nop 1")
    for l in range(64):
        a(f"v_readlane_b32 s16, v8, {l}")
        a(f"v_readlane_b32 s17, v24, {l}")
        a("s_nop 3")
        a("s_min_u32 s14, s14, s16")
        a("s_max_u32 s15, s15, s17")
    a("""
    s_sub_u32 s15, s15, s14
    s_min_u32 s15, s15, 20000
    s_mul_i32 s15, s15, 10
    s_memrealtime s[18:19]
    s_waitcnt lgkmcnt(0)
    L_dspin:
    s_memrealtime s[20:21]
    s_waitcnt lgkmcnt(0)
    s_sub_u32 s20, s20, s18
    s_cmp_lt_u32 s20, s15
    s_cbranch_scc1 L_dspin
    L_dend:
    s_endpgm
    """)

def kd(name, vgpr, sgpr):
    acc = (vgpr + 3)//4*4
    return f""".section .rodata,"a"
.p2align 6
.amdhsa_kernel {name}
  .amdhsa_next_free_vgpr {vgpr}
  .amdhsa_next_free_sgpr {sgpr}
  .amdhsa_accum_offset {acc}
  .amdhsa_group_segment_fixed_size 0
  .amdhsa_kernarg_size 104
  .amdhsa_user_sgpr_count 2
  .amdhsa_user_sgpr_kernarg_segment_ptr 1
  .amdhsa_system_sgpr_workgroup_id_x 1
.end_amdhsa_kernel
"""

def build():
    main = NAME + "_kernel"
    red = "mha_reduce_kernel"
    out = []
    single = opt.fused and opt.diag < 0 and not opt.extra_launch
    if single:
        out.append(f"; @launch grid=(256,1,1) block=(512,1,1) lds={LDS_BYTES}")
    else:
        out.append(f"; @launch kernel={main} grid=(256,1,1) block=(512,1,1) lds={LDS_BYTES}")
    if not opt.fused:
        out.append(f"; @launch kernel={red} grid=(256,1,1) block=(576,1,1) lds=0")
    if opt.diag >= 0:
        out.append(f"; @launch kernel=diag_kernel grid=(1,1,1) block=(64,1,1) lds=0")
    for _ in range(opt.extra_launch):
        out.append(f"; @launch kernel=nop_kernel grid=(1,1,1) block=(64,1,1) lds=0")
    out.append('.amdgcn_target "amdgcn-amd-amdhsa--gfx950"')
    out.append(".text")
    a = Asm()
    prologue(a); loader(a); compute(a)
    out.append(f".globl {main}\n.p2align 8\n.type {main},@function\n{main}:")
    out.append(a.text())
    if not opt.fused:
        a = Asm(); reduce_kernel(a)
        out.append(f".globl {red}\n.p2align 8\n.type {red},@function\n{red}:")
        out.append(a.text())
    if opt.diag >= 0:
        a = Asm(); diag_kernel(a)
        out.append(".globl diag_kernel\n.p2align 8\n.type diag_kernel,@function\ndiag_kernel:\n" + a.text())
        out.append(kd("diag_kernel", 48, 32))
        out.append(".text")
    if opt.extra_launch:
        out.append(".globl nop_kernel\n.p2align 8\n.type nop_kernel,@function\nnop_kernel:\n    s_endpgm\n")
        out.append(kd("nop_kernel", 8, 16))
        out.append(".text")
    out.append(kd(main, 256, 102))
    if not opt.fused: out.append(kd(red, 56, 32))
    return "\n".join(out)

if __name__ == "__main__":
    path = sys.argv[1]
    for kv in sys.argv[2:]:
        k, v = kv.split("=", 1)
        cur = getattr(opt, k)
        setattr(opt, k, type(cur)(int(v)) if isinstance(cur, (bool, int)) else v)
    open(path, "w").write(build())
```

```python
import sys, math, struct

NAME = "concat_heads__mha_block_cached__gqa_block_cached__near_ridge"

class Opt:
    kv_nt = True
    w_nt = False
    x_nt = False
    part_flags = "sc1"
    stamps = False
    pf_v = True
    pf_wo = True
    prio_load = 0
    extra_launch = 0
    ltime = 0
    pro = 0
    steps = 0
    x_nodma = 0
    x_noread = 0
    x_nowait = 0
    x_nochain = 0
    x_nostore = 0
    x_dbuf = 0
    st_pos = "1516"
    nmark = 2
    d18 = 1
    mark_at = 2
    snake = 1
    codepf = 1
    pair = 0
    defer = 1
    xpose = 1
    steps2 = 0
    flag_pos = 1
    g0_at = 14
    g0_split = 4
    sleep = 8
    sleep8 = 6
    sleep9 = 6
    nod17 = 0
    st_late = 0
    out_flags = ""
    x_nodsw = 0
    lead = 7
    pub_late = 0
    x_nopub = 0
    fused = 1
    prio_comp = 0
    sched = "0:x1|2:d0|1+:x2,x3,k0|7+:x4,x5,k1,k2,k3|15+:x6,x7,k4,k5,k6|23+:x8,k7,v0|31:v1,v2|32:v4|33:v5|35:v6,v7,v3"
    stagger = "0,1,2,3"
    p2quota = "222222222222222"
    diag = -1
opt = Opt()

class Asm:
    def __init__(self):
        self.l = []
    def __call__(self, s):
        for x in s.strip("\n").split("\n"):
            if not x.strip(): continue
            self.l.append("    " + x.strip() if not x.strip().endswith(":") else x.strip())
    def c(self, s):
        self.l.append("    ; " + s)
    def text(self):
        return "\n".join(self.l) + "\n"

def vr(a, n=1):
    return f"v{a}" if n == 1 else f"v[{a}:{a+n-1}]"
def sr(a, n=1):
    return f"s{a}" if n == 1 else f"s[{a}:{a+n-1}]"

KBASE = 65536
XBASE = 90112
VBASE01 = 131072
WO_RING = 32768
LDS_BYTES = 163840

S_WAVE, S_BR, S_B, S_HG, S_ROT, S_G, S_ROT2 = 3, 30, 31, 48, 49, 50, 14
S_X, S_K, S_V, S_WQ, S_WO, S_OUT, S_DBG, S_WS = 4, 6, 8, 10, 12, 24, 26, 28

FLAG_OFF = 24 << 20
STAGE = 0
STAMP_OFF = 32 << 20

def stamp(a, idx):
    if opt.stamps:
        a(f"s_memrealtime s[{64+2*idx}:{65+2*idx}]")
        a(f"s_memtime s[{80+2*idx}:{81+2*idx}]")

def stamp_flush(a, n):
    if not opt.stamps:
        return
    a(f"""
    s_waitcnt lgkmcnt(0)
    s_lshl_b32 s60, s2, 4
    s_add_u32 s60, s60, s{S_WAVE}
    s_lshl_b32 s60, s60, 7
    s_add_u32 s60, s60, {STAMP_OFF}
    s_add_u32 s56, s{S_WS}, s60
    s_addc_u32 s57, s{S_WS+1}, 0
    s_mov_b32 s58, 128
    s_mov_b32 s59, 0x20000
    v_mov_b32 v250, 0
    """)
    for i in range(2*n):
        a(f"v_mov_b32 v252, s{64+2*i}")
        a(f"v_mov_b32 v253, s{65+2*i}")
        a(f"buffer_store_dwordx2 v[252:253], v250, s[56:59], 0 offen offset:{8*i}")
        a("s_waitcnt vmcnt(0)")

def tbegin(a):
    if opt.stamps and opt.ltime:
        for i in range(16): a(f"s_mov_b64 s[{64+2*i}:{65+2*i}], 0")
        a("s_memtime s[96:97]\ns_waitcnt lgkmcnt(0)")
def tacc(a, idx):
    if opt.stamps and opt.ltime:
        a(f"""
        s_memtime s[98:99]
        s_waitcnt lgkmcnt(0)
        s_sub_u32 s97, s98, s96
        s_add_u32 s{64+2*idx}, s{64+2*idx}, s97
        s_mov_b32 s96, s98
        """)

def srd(a, d, base, off_expr_sreg, size):
    a(f"s_add_u32 s{d}, s{base}, s{off_expr_sreg}")
    a(f"s_addc_u32 s{d+1}, s{base+1}, 0")
    a(f"s_mov_b32 s{d+2}, {size}")
    a(f"s_mov_b32 s{d+3}, 0x20000")

class VM:
    def __init__(self, a):
        self.a = a; self.ops = []
    def issue(self, tag, n=1):
        self.ops += [tag] * n
    def wait(self, tag):
        last = max(i for i, t in enumerate(self.ops) if t == tag)
        n = len(self.ops) - 1 - last
        assert n <= 63, n
        self.a(f"s_waitcnt vmcnt({n})")
    def wait_all(self, tags):
        last = max(i for i, t in enumerate(self.ops) if t in tags)
        assert all(t in self.ops for t in tags), tags
        self.wait(self.ops[last])

def prologue(a):
    a(f"""
    s_cmp_ge_u32 s2, 256
    s_cbranch_scc1 L_end
    {"s_memrealtime s[92:93]" if opt.pro else ""}
    s_bfe_u32 s{S_BR}, s2, 0x10002
    s_mul_i32 s52, s{S_BR}, 40
    s_load_dwordx8 s[4:11], s[0:1], s52
    s_add_u32 s53, s52, 32
    s_load_dwordx2 s[12:13], s[0:1], s53
    s_load_dwordx4 s[24:27], s[0:1], 80
    s_load_dwordx2 s[28:29], s[0:1], 96
    v_lshrrev_b32 v1, 6, v0
    v_and_b32 v0, 63, v0
    v_readfirstlane_b32 s{S_WAVE}, v1
    s_and_b32 s51, s2, 3
    s_lshr_b32 s{S_B}, s2, 4
    s_bfe_u32 s54, s2, 0x10003
    {"s_lshl_b32 s51, s51, 1" if not opt.pair else "s_lshl_b32 s55, s54, 2"}
    s_add_u32 s{S_HG}, s51, {"s54" if not opt.pair else "s55"}
    s_mul_i32 s55, s{S_B}, 9
    s_lshr_b32 s{S_ROT2}, s55, 4
    s_lshl_b32 s54, s54, 2
    s_add_u32 s{S_ROT}, s{S_ROT2}, s54
    s_cmp_ge_u32 s{S_ROT}, 9
    s_cselect_b32 s54, 9, 0
    s_sub_u32 s{S_ROT}, s{S_ROT}, s54
    s_lshl_b32 s{S_G}, s{S_BR}, 4
    s_add_u32 s{S_G}, s{S_G}, s{S_B}
    """)
    stamp(a, 0)
    a(f"""
    s_cmp_lt_u32 s{S_WAVE}, 4
    s_cbranch_scc1 L_compute
    """)

def dma4(a, vbase, srdr, soff, flags, same_v=False):
    for m in range(4):
        v = vbase if same_v else vbase + m
        a(f"buffer_load_dwordx4 v{v}, s[{srdr}:{srdr+3}], s{soff} offen offset:{m*1024}{flags} lds")

def reduce_setup(a, lane):
    SG, SO = 36, 40
    a(f"s_mul_i32 s52, s{S_G}, {8*73728}")
    srd(a, SG, S_WS, 52, 8*73728)
    a(f"""
    s_mov_b32 s{SO}, s{S_OUT}
    s_mov_b32 s{SO+1}, s{S_OUT+1}
    s_mov_b32 s{SO+2}, {16*64*1152*2}
    s_mov_b32 s{SO+3}, 0x20000
    v_lshrrev_b32 v26, 5, v{lane}
    v_bfe_u32 v27, v{lane}, 3, 2
    v_and_b32 v28, 7, v{lane}
    s_lshr_b32 s52, s{S_HG}, 1
    s_lshl_b32 s56, s52, 10
    s_and_b32 s57, s{S_HG}, 1
    s_lshl_b32 s57, s57, 7
    s_add_u32 s56, s56, s57
    v_lshlrev_b32 v22, 12, v26
    v_lshl_add_u32 v22, v27, 8, v22
    v_lshl_add_u32 v22, v28, 4, v22
    v_add_u32 v22, s56, v22
    {"v_lshrrev_b32 v21, 3, v%d" % lane if opt.xpose else ""}
    v_mul_u32_u24 v23, 2304, {"v21" if opt.xpose else "v28"}
    {"v_lshl_add_u32 v21, v28, 3, v21" if opt.xpose else ""}
    {"v_lshlrev_b32 v21, 2, v21" if opt.xpose else ""}
    {"v_bfe_u32 v26, v%d, 2, 1" % lane if opt.xpose else ""}
    {"v_and_b32 v27, 3, v%d" % lane if opt.xpose else ""}
    v_lshl_add_u32 v23, v26, 6, v23
    v_lshl_add_u32 v23, v27, 3, v23
    s_lshl_b32 s52, s52, 5
    v_lshl_add_u32 v24, v28, 2, s52
    v_bfe_u32 v29, v{lane}, 3, 1
    v_lshl_add_u32 v25, v29, 7, v24
    s_lshl_b32 s52, s{S_B}, 6
    s_lshl_b32 s56, s{S_HG}, 3
    s_add_u32 s52, s52, s56
    s_mul_i32 s52, s52, 2304
    s_mul_i32 s56, s{S_BR}, 1152
    s_add_u32 s15, s52, s56
    v_mul_u32_u24 v24, 0x12000, v28
    v_lshl_add_u32 v24, v29, 12, v24
    s_lshr_b32 s52, s{S_HG}, 1
    s_lshl_b32 s52, s52, 10
    s_and_b32 s56, s{S_HG}, 1
    s_lshl_b32 s56, s56, 7
    s_add_u32 s52, s52, s56
    v_add_u32 v24, s52, v24
    """)

def loader(a):
    vm = VM(a)
    flw = " nt" if opt.w_nt else ""
    flx = " nt" if opt.x_nt else ""
    flkv = " nt" if opt.kv_nt else ""
    SX, SWQ, SK, SV, SWO = 32, 36, 40, 44, 60
    a("L_load:")
    if opt.prio_load: a(f"s_setprio {opt.prio_load}")
    a(f"""
    s_sub_u32 s51, s{S_WAVE}, 4
    v_lshrrev_b32 v12, 3, v0
    v_mul_u32_u24 v12, 1152, v12
    v_lshrrev_b32 v13, 4, v0
    v_and_b32 v14, 7, v0
    v_xor_b32 v14, v14, v13
    v_lshl_add_u32 v5, v14, 4, v12
    v_xor_b32 v14, 4, v14
    v_lshl_add_u32 v6, v14, 4, v12
    v_add_u32 v6, 8192, v6
    s_lshl_b32 s53, s51, 12
    s_lshl_b32 s59, s51, 11
    s_mul_i32 s54, s51, {16*1152}
    s_lshl_b32 s55, s{S_ROT}, 7
    s_add_u32 s54, s54, s55
    s_mov_b32 s55, s{S_ROT}
    s_lshl_b32 s57, s{S_ROT}, 19
    s_lshl_b32 s56, s51, 15
    s_add_u32 s57, s57, s56
    s_and_b32 s56, s51, 1
    s_lshl_b32 s56, s56, 3
    v_xor_b32 v10, s56, v0
    """)
    for m in range(4):
        a(f"v_xor_b32 v{1+m}, {2*m}, v10")
        a(f"v_lshlrev_b32 v{1+m}, 4, v{1+m}")
        if m: a(f"v_add_u32 v{1+m}, {m*(8192-1024)}, v{1+m}")
    a(f"""
    s_mul_i32 s44, s{S_B}, 73728
    s_lshl_b32 s45, s{S_HG}, 10
    s_sub_u32 s{SWQ+2}, {576*8192}, s45
    s_mov_b32 s{SWQ+3}, 0x20000
    s_mov_b32 s{SX+2}, 73728
    s_mov_b32 s{SX+3}, 0x20000
    s_waitcnt lgkmcnt(0)
    {"s_memrealtime s[66:67]" if opt.pro else ""}
    s_add_u32 s{SX}, s{S_X}, s44
    s_addc_u32 s{SX+1}, s{S_X+1}, 0
    s_add_u32 s{SWQ}, s{S_WQ}, s45
    s_addc_u32 s{SWQ+1}, s{S_WQ+1}, 0
    """)
    def xblk(i):
        a(f"s_add_u32 m0, s59, {XBASE + i*8192}")
        a(f"s_add_u32 s55, s55, 1")
        for m in range(2):
            a(f"buffer_load_dwordx4 v{5+m}, s[{SX}:{SX+3}], s54 offen offset:{m*1024}{flx} lds")
        vm.issue(f"x{i}", 2)
        a(f"""
        s_add_u32 s54, s54, 128
        s_cmp_eq_u32 s55, 9
        s_cselect_b32 s55, 0, s55
        s_cselect_b32 s56, 1152, 0
        s_sub_u32 s54, s54, s56
        """)
    if opt.pro: a("s_memrealtime s[68:69]")
    xblk(0)
    def wq(u):
        a(f"s_add_u32 m0, s53, {(u%4)*16384}")
        a("s_nop 0")
        dma4(a, 1, SWQ, 57, flw)
        vm.issue(f"w{u}", 4)
        a(f"s_add_u32 s57, s57, {16*8192}")
        if u % 4 == 3:
            a(f"s_cmp_ge_u32 s57, {576*8192}")
            a(f"s_cselect_b32 s56, {576*8192}, 0")
            a(f"s_sub_u32 s57, s57, s56")
    wq(0)
    if opt.pro: a("s_memrealtime s[70:71]")
    wq(1)
    if opt.codepf:
        a(f"""
        s_getpc_b64 s[62:63]
        L_pc:
        s_lshr_b32 s52, s2, 3
        s_lshl_b32 s52, s52, 2
        s_add_u32 s52, s52, s51
        s_mul_i32 s52, s52, 192
        s_min_u32 s52, s52, L_end - L_att - 192
        s_add_u32 s52, s52, L_att - L_pc
        s_add_u32 s62, s62, s52
        s_addc_u32 s63, s63, 0
        s_load_dword s100, s[62:63], 0
        s_load_dword s101, s[62:63], 64
        s_load_dword s100, s[62:63], 128
        """)
    a(f"""
    s_lshl_b32 s52, s{S_B}, 5
    s_lshl_b32 s56, s{S_HG}, 2
    s_add_u32 s52, s52, s56
    s_lshl_b32 s52, s52, 14
    """)
    srd(a, SK, S_K, 52, 65536)
    srd(a, SV, S_V, 52, 65536)
    a(f"""
    s_and_b32 s52, s51, 1
    s_lshl_b32 s52, s52, 3
    v_lshlrev_b32 v12, 8, v13
    v_and_b32 v14, 15, v0
    v_xor_b32 v15, v14, v13
    v_xor_b32 v15, s52, v15
    v_lshl_add_u32 v7, v15, 4, v12
    v_xor_b32 v15, 4, v15
    v_lshl_add_u32 v8, v15, 4, v12
    v_lshlrev_b32 v16, 1, v13
    v_xor_b32 v16, v16, v14
    v_lshl_add_u32 v9, v16, 4, v12
    v_xor_b32 v16, 8, v16
    v_lshl_add_u32 v10, v16, 4, v12
    s_mul_i32 s52, s{S_HG}, {512*1152}
    """)
    srd(a, SWO, S_WO, 52, 512*1152)
    a(f"""
    v_lshrrev_b32 v12, 3, v0
    v_mul_u32_u24 v12, 1152, v12
    v_lshlrev_b32 v14, 1, v13
    v_and_b32 v15, 7, v0
    v_xor_b32 v14, v14, v15
    v_lshl_add_u32 v16, v14, 4, v12
    v_add_u32 v17, 8192, v16
    v_add_u32 v18, 16384, v16
    v_add_u32 v19, 24576, v16
    """)
    def kblk(n):
        a(f"s_add_u32 m0, s59, {KBASE + n*8192}")
        a(f"s_add_u32 s56, s59, {n*8192}")
        for m in range(2):
            a(f"buffer_load_dwordx4 v{7+m}, s[{SK}:{SK+3}], s56 offen offset:{m*1024}{flkv} lds")
        vm.issue(f"k{n}", 2)
    def vblk(n):
        dst = VBASE01 + n*8192 if n < 4 else (n-4)*8192
        a(f"s_add_u32 m0, s59, {dst}")
        a(f"s_add_u32 s56, s59, {n*8192}")
        for m in range(2):
            a(f"buffer_load_dwordx4 v{9+m}, s[{SV}:{SV+3}], s56 offen offset:{m*1024}{flkv} lds")
        vm.issue(f"v{n}", 2)
    def wo_init():
        a(f"""
        s_mul_i32 s54, s51, {32*1152}
        s_lshl_b32 s52, s{S_ROT2}, 7
        s_add_u32 s54, s54, s52
        s_mov_b32 s55, s{S_ROT2}
        """)
    def wo(t):
        a(f"s_add_u32 m0, s53, {((t+2)%10)*16384}")
        if t % 4 == 3: a("s_add_u32 s55, s55, 1")
        else: a("s_nop 0")
        if not (opt.x_nodma and t >= 6): dma4(a, 16, SWO, 54, flw)
        vm.issue(f"o{t}", 4)
        if t % 4 != 3:
            a(f"s_add_u32 s54, s54, {128*1152}")
        else:
            a(f"""
            s_cmp_eq_u32 s55, 9
            s_cselect_b32 s55, 0, s55
            s_cselect_b32 s56, 1152, 0
            s_sub_u32 s54, s54, {3*128*1152-128}
            s_sub_u32 s54, s54, s56
            """)
    F = {"x": xblk, "k": kblk, "v": vblk}
    if opt.fused:
        a(f"""
        s_lshl_b32 s52, s{S_G}, 12
        s_add_u32 s52, s52, {FLAG_OFF}
        """)
        srd(a, 16, S_WS, 52, 4096)
        a(f"""
        s_mov_b32 s20, s{S_DBG}
        s_mov_b32 s21, s{S_DBG+1}
        s_mov_b32 s22, 256
        s_mov_b32 s23, 0x20000
        s_lshl_b32 s52, s{S_G}, 2
        v_mov_b32 v72, s52
        s_add_u32 s56, s{S_HG}, s51
        s_cmp_eq_u32 s56, 0
        s_cselect_b32 s98, 4096, 0
        s_mov_b32 s96, s16
        s_mov_b32 s97, s17
        s_mov_b32 s99, 0x20000
        v_mov_b32 v32, 0
        v_mov_b32 v33, 0
        v_mov_b32 v34, 0
        v_mov_b32 v35, 0
        v_lshlrev_b32 v36, 4, v0
        v_mov_b32 v31, 1
        buffer_store_dwordx4 v[32:35], v36, s[96:99], 0 offen sc1
        buffer_store_dwordx4 v[32:35], v36, s[96:99], 0 offen offset:1024 sc1
        buffer_store_dwordx4 v[32:35], v36, s[96:99], 0 offen offset:2048 sc1
        """)
        vm.issue("z", 3)
    def announce(_):
        if not opt.fused: return
        vm.wait("z")
        a("""
        s_mov_b32 s96, s20
        s_mov_b32 s97, s21
        s_lshr_b32 s98, s98, 4
        buffer_store_dword v31, v72, s[96:99], 0 offen sc1
        """)
        vm.issue("d")
    F["d"] = announce
    a(f"""
    s_lshl_b32 s52, s51, 11
    v_lshl_add_u32 v73, v0, 7, s52
    v_mov_b32 v74, 0x100000
    v_cmp_gt_u32 vcc, 16, v0
    s_nop 1
    v_cndmask_b32 v73, v74, v73, vcc
    """)
    def pfv(n):
        a(f"s_mov_b32 s56, {n*8192}")
        a(f"buffer_load_dword v75, v73, s[{SV}:{SV+3}], s56 offen")
        vm.issue("pf")
    F["p"] = pfv
    if opt.pro:
        a("s_memrealtime s[72:73]")
        vm.wait("x0")
        a("s_memrealtime s[74:75]")
    vm.wait("w0")
    if opt.pro: a("s_memrealtime s[76:77]")
    a("s_barrier")
    if opt.pro: a("s_memrealtime s[78:79]\ns_waitcnt lgkmcnt(0)\ns_mov_b64 s[64:65], s[92:93]")
    wq(2); wq(3)
    offs = [int(x) for x in opt.stagger.split(",")]
    if len(offs) > 1:
        a(f"s_and_b32 s52, s{S_B}, {len(offs)-1}")
        for g in range(1, len(offs)):
            a(f"s_cmp_eq_u32 s52, {g}")
            a(f"s_cbranch_scc1 L_var{g}")
    ops0 = list(vm.ops)
    for g, off in enumerate(offs):
        vm.ops = list(ops0)
        if g: a(f"L_var{g}:")
        ev = {s: [] for s in range(36)}
        for item in opt.sched.split("|"):
            st, names = item.split(":")
            st = int(st[:-1]) + off if st.endswith("+") else int(st[:-1]) + off//2 if st.endswith("h") else int(st)
            for nm in names.split(","):
                n = int(nm[1:])
                free = {"d": 1, "p": -1, "x": -1, "k": 4*(n-3)+3 if n >= 3 else -1, "v": 4*(n+5)+3 if n < 4 else 32+(n-4)//2}[nm[0]]
                assert st >= free, (nm, st, free)
                if nm[0] == "x": assert st < 4*n-1, (nm, st)
                ev[st].append(lambda nm=nm: F[nm[0]](int(nm[1:])))
        for s in range(36):
            need = [f"w{s+1}"] if s < 35 else [f"k{n}" for n in range(8)]
            if s % 4 == 3 and s < 35: need.append(f"x{(s+1)//4}")
            vm.wait_all(need)
            a("s_barrier")
            if s + 4 < 36: wq(s + 4)
            for f in ev[s]: f()
        if g == 0: ops1 = list(vm.ops)
        assert vm.ops[-12:] == ops1[-12:] and sorted(vm.ops) == sorted(ops1)
        if g < len(offs) - 1: a("s_branch L_att")
    a("L_att:")
    vm.ops = ops1
    wo_init()
    wo(0); wo(1)
    SG, SO, SF, SD = 36, 40, 16, 20
    reduce_setup(a, 0)
    def marks(at):
        if not (opt.fused and opt.mark_at == at): return
        a(f"""
        s_lshl_b32 s52, s{S_G}, 3
        s_add_u32 s52, s52, s{S_HG}
        s_mul_i32 s52, s52, 73728
        """)
        srd(a, 32, S_WS, 52, 73728)
        a(f"""
        v_lshl_add_u32 v20, v0, 4, s59
        v_mov_b32 v32, -1
        v_mov_b32 v33, -1
        v_mov_b32 v34, -1
        v_mov_b32 v35, -1
        s_lshl_b32 s52, s{S_ROT2}, 13
        """)
        for n in range(opt.nmark):
            a("s_sub_u32 s52, s52, 8192\ns_cselect_b32 s52, 65536, s52")
            for m in range(2):
                a(f"buffer_store_dwordx4 v[32:35], v20, s[32:35], s52 offen offset:{m*1024} sc1")
            vm.issue("mark", 2)
    marks(1)
    if opt.fused:
        a(f"buffer_load_dword v29, v72, s[{SD}:{SD+3}], 0 offen sc1")
        vm.issue("dbg")
    vm.wait_all([f"v{n}" for n in range(8)])
    a("s_barrier")
    marks(2)
    wo(2); wo(3)
    vm.wait("o0")
    a("s_barrier")
    marks(3)
    wo(4); wo(5)
    def spin(tag, reg, load, label, nowait=False):
        if not nowait: vm.wait(tag)
        a(f"""
        s_mov_b32 s46, 0x8000
        {label}:
        v_cmp_ne_u32 vcc, 1, v{reg}
        s_sub_u32 s46, s46, 1
        s_cbranch_scc1 {label}_ok
        s_nop 3
        s_cbranch_vccz {label}_ok
        s_sleep {opt.sleep}
        {load}
        s_waitcnt vmcnt(0)
        s_branch {label}
        {label}_ok:
        """)
    def task_setup(t_add):
        a(f"""
        s_add_u32 s52, s51, {t_add}
        s_add_u32 s45, s52, s{S_ROT2}
        s_cmp_ge_u32 s45, 9
        s_cselect_b32 s57, 9, 0
        s_sub_u32 s45, s45, s57
        s_lshl_b32 s52, s52, 8
        """)
    def poll_ld(last):
        return f"buffer_load_dword v29, v25, s[{SF}:{SF+3}], s52 offen sc1"
    def gather(base, tag, lo=0, hi=8):
        if lo == 0: a("s_lshl_b32 s44, s45, 13")
        for src in range(lo, hi):
            a(f"buffer_load_dwordx4 {vr(base+4*src,4)}, v22, s[{SG}:{SG+3}], s44 offen sc1")
            if src < 7: a("s_add_u32 s44, s44, 73728")
        vm.issue(tag, hi - lo)
    def put(pk, sreg):
        a(f"s_lshl_b32 s57, s{sreg}, 7")
        a("s_add_u32 s57, s57, s15")
        a(f"buffer_store_dwordx2 {vr(pk,2)}, v23, s[{SO}:{SO+3}], s57 offen {opt.out_flags}")
        a(f"buffer_store_dwordx2 {vr(pk+2,2)}, v23, s[{SO}:{SO+3}], s57 offen offset:32 {opt.out_flags}")
        vm.issue("out", 2)
    def total(base, sreg, tag, later, pk=76, now=True):
        for src in range(8):
            a(f"s_waitcnt vmcnt({7-src+later})")
            for e in range(4):
                x = base + 4*src + e
                if src == 0:
                    a(f"v_lshlrev_b32 v{64+2*e}, 16, v{x}")
                    a(f"v_and_b32 v{65+2*e}, 0xffff0000, v{x}")
                else:
                    a(f"v_lshlrev_b32 v74, 16, v{x}")
                    a(f"v_and_b32 v75, 0xffff0000, v{x}")
                    a(f"v_pk_add_f32 {vr(64+2*e,2)}, {vr(64+2*e,2)}, v[74:75]")
        for e in range(4):
            a(cvt(pk+e, 64+2*e))
        if opt.xpose:
            for e in range(4): a(f"ds_bpermute_b32 v{pk+e}, v21, v{pk+e}")
            if now: a("s_waitcnt lgkmcnt(0)")
        if now: put(pk, sreg)
    nxt = 6
    assert opt.lead <= 7
    nbar = 17 if opt.fused and opt.nod17 else 18
    for i in range(nbar):
        vm.wait_all([f"o{min(2*i+2, 35) if i < nbar-1 else 35}"] + (["mark"] if "mark" in vm.ops and i == 2 else []))
        a("s_barrier")
        if i == 1 and opt.fused:
            spin("dbg", 29, f"buffer_load_dword v29, v72, s[{SD}:{SD+3}], 0 offen sc1", "L_dbg")
        for _ in range(opt.lead - 5 if i == 0 else 2):
            if nxt < 36:
                assert nxt <= 2*i + 9
                wo(nxt); nxt += 1
        if opt.fused and i == opt.g0_at - 1:
            task_setup(0); a(poll_ld(False)); vm.issue("poll0")
        if opt.fused and i == opt.g0_at:
            spin("poll0", 29, poll_ld(False), "L_poll0")
            gather(80, "g0", 0, opt.g0_split)
            a("s_mov_b32 s59, s45")
        if opt.fused and i == opt.g0_at + 1 and opt.g0_split < 8:
            gather(80, "g0", opt.g0_split, 8)
        if opt.fused and i == nbar-1:
            task_setup(4)
    assert nxt == 36
    if opt.fused:
        later = len(vm.ops) - 1 - max(i for i, t in enumerate(vm.ops) if t == "g0")
        total(80, 59, "g0", later, pk=112, now=not opt.defer)
        stamp(a, 1)
        if opt.d18: a("s_barrier")
        a(f"""
        s_mov_b32 s46, 0x8000
        s_mov_b32 s44, 0xff
        s_mov_b32 s47, 0
        s_cmp_ge_u32 s51, {5 - opt.nmark}
        s_cbranch_scc1 L_go
        L_again:
        buffer_load_dword v29, v25, s[{SF}:{SF+3}], s52 offen sc1
        s_waitcnt vmcnt(0)
        v_cmp_ne_u32 vcc, 1, v29
        s_sub_u32 s46, s46, 1
        s_cbranch_scc1 L_give
        s_nop 3
        s_cbranch_vccz L_give
        s_sleep {opt.sleep8}
        s_branch L_again
        L_give:
        s_mov_b32 s47, 1
        s_mov_b32 s44, 0xff
        L_go:
        """)
        if opt.stamps: a("s_waitcnt lgkmcnt(0)")
        stamp(a, 2)
        a("s_lshl_b32 s57, s45, 13")
        for src in range(8):
            a(f"s_bitcmp0_b32 s44, {src}")
            a(f"s_cbranch_scc1 L_skip{src}")
            a(f"buffer_load_dwordx4 {vr(80+4*src,4)}, v22, s[{SG}:{SG+3}], s57 offen sc1")
            a(f"L_skip{src}:")
            if src < 7: a("s_add_u32 s57, s57, 73728")
        a(f"""
        s_cmp_eq_u32 s47, 1
        s_cbranch_scc1 L_sum
        buffer_load_dword v29, v25, s[{SF}:{SF+3}], s52 offen sc1
        s_mov_b32 s44, 0
        s_waitcnt vmcnt(1)
        """)
        for src in range(8):
            a(f"v_max3_u32 v{112+8+src}, v{80+4*src}, v{81+4*src}, v{82+4*src}")
        for src in range(8):
            a(f"v_max_u32 v{112+8+src}, v{112+8+src}, v{83+4*src}")
        for src in range(8):
            a(f"v_cmp_eq_u32 s[{64+2*src}:{65+2*src}], -1, v{112+8+src}" if not opt.stamps else f"v_cmp_eq_u32 vcc, -1, v{112+8+src}\ns_nop 3\ns_cmp_lg_u64 vcc, 0\ns_cselect_b32 s56, {1 << src}, 0\ns_or_b32 s44, s44, s56")
        if not opt.stamps:
            for src in range(8):
                a(f"s_cmp_lg_u64 s[{64+2*src}:{65+2*src}], 0")
                a(f"s_cselect_b32 s56, {1 << src}, 0")
                a("s_or_b32 s44, s44, s56")
        a(f"""
        s_cmp_eq_u32 s44, 0
        s_cbranch_scc1 L_sum
        s_waitcnt vmcnt(0)
        v_cmp_ne_u32 vcc, 1, v29
        s_sub_u32 s46, s46, 1
        s_cbranch_scc1 L_give
        s_nop 3
        s_cbranch_vccz L_give
        s_sleep {opt.sleep9}
        s_branch L_go
        """)
        a("L_sum:")
        total(80, 45, "g1", 0)
        if opt.defer:
            a(f"s_cmp_lt_u32 s{S_WAVE}, 4" if not opt.stamps else f"s_cmp_eq_u32 s{S_WAVE}, 8")
            a("s_cbranch_scc1 L_load_end")
            put(112, 59)
        stamp(a, 3)
        a("L_load_end:")
        if opt.stamps and not (opt.ltime or opt.pro):
            a("s_waitcnt vmcnt(0)")
            stamp(a, 0)
            stamp_flush(a, 3)
    if opt.ltime or opt.pro: stamp_flush(a, 8)
    a("s_endpgm")

def mfma(a, d, A, B, C=None):
    c = "0" if C == "zero" else vr(d if C is None else C, 4)
    a(f"v_mfma_f32_16x16x32_bf16 {vr(d,4)}, {vr(A,4)}, {vr(B,4)}, {c}")

def weave(a, mf, fill, per=lambda k: 1, start=0):
    fill = list(fill)
    for k, m in enumerate(mf):
        m()
        if k >= start:
            for _ in range(per(k)):
                if fill: a(fill.pop(0))
    for f in fill: a(f)

def cvt(d, s0):
    return f"v_cvt_pk_bf16_f32 v{d}, v{s0}, v{s0+1}"

def xreduce(a, op, m, t, mid):
    a("s_nop 1")
    a(f"v_permlane16_swap_b32 v{m[0]}, v{m[1]}")
    a(f"v_permlane16_swap_b32 v{m[2]}, v{m[3]}")
    a("s_nop 0")
    a(f"{op} v{m[0]}, v{m[0]}, v{m[1]}")
    a(f"{op} v{m[2]}, v{m[2]}, v{m[3]}")
    a("s_nop 1")
    a(f"v_permlane32_swap_b32 v{m[0]}, v{m[2]}")
    a("s_nop 1")
    a(f"{op} v{m[0]}, v{m[0]}, v{m[2]}")
    mid(m[0])
    a(f"v_mov_b32 v{m[2]}, v{m[0]}")
    a("s_nop 1")
    a(f"v_permlane32_swap_b32 v{m[0]}, v{m[2]}")
    a("s_nop 1")
    a(f"v_mov_b32 v{m[1]}, v{m[0]}")
    a(f"v_mov_b32 v{m[3]}, v{m[2]}")
    a("s_nop 1")
    a(f"v_permlane16_swap_b32 v{m[0]}, v{m[1]}")
    a(f"v_permlane16_swap_b32 v{m[2]}, v{m[3]}")
    a("s_nop 1")

def sn(i):
    return range(3, -1, -1) if opt.snake and i & 1 else range(4)

def compute(a):
    FB = [128, 176]
    AW, AX, L16, ROW4, C8, AK = 224, 232, 236, 237, 238, 240
    a("L_compute:")
    if opt.prio_comp: a(f"s_setprio {opt.prio_comp}")
    a(f"""
    v_lshrrev_b32 v1, 4, v0
    v_and_b32 v2, 15, v0
    v_lshrrev_b32 v{ROW4}, 2, v0
    v_and_b32 v3, 3, v0
    v_lshlrev_b32 v{C8}, 3, v3
    v_lshlrev_b32 v{L16}, 4, v0
    s_lshl_b32 s51, s{S_WAVE}, 8
    v_lshl_add_u32 v4, v{ROW4}, 10, v{C8}
    v_add_u32 v4, s51, v4
    v_and_b32 v5, 7, v{ROW4}
    """)
    for dt in range(8):
        a(f"v_xor_b32 v6, {dt}, v5")
        a(f"v_lshl_add_u32 v{AW+dt}, v6, 5, v4")
    a(f"""
    v_lshrrev_b32 v4, 3, v2
    v_lshlrev_b32 v4, 10, v4
    v_and_b32 v5, 7, v2
    v_lshl_add_u32 v4, v5, 7, v4
    v_and_b32 v5, 1, v1
    v_lshlrev_b32 v7, 3, v5
    v_add_u32 v4, v4, v7
    v_add_u32 v4, {XBASE}, v4
    v_lshrrev_b32 v8, 1, v1
    v_lshrrev_b32 v5, 1, v2
    v_xor_b32 v5, v5, v8
    """)
    for sp in range(4):
        a(f"v_xor_b32 v6, {2*sp}, v5")
        a(f"v_lshl_add_u32 v{AX+sp}, v6, 4, v4")
    a(f"""
    s_lshl_b32 s51, s{S_WAVE}, 14
    s_add_u32 s52, s51, {KBASE}
    v_lshl_add_u32 v4, v2, 8, v7
    v_add_u32 v4, s52, v4
    v_xor_b32 v5, v2, v8
    """)
    for i in range(8):
        a(f"v_xor_b32 v6, {2*i}, v5")
        a(f"v_lshl_add_u32 v{AK+i}, v6, 4, v4")
    a(f"""
    s_add_u32 s52, s51, {VBASE01}
    s_cmp_ge_u32 s{S_WAVE}, 2
    s_cselect_b32 s53, {LDS_BYTES}, 0
    s_sub_u32 s52, s52, s53
    s_lshl_b32 s53, s{S_G}, 3
    s_add_u32 s53, s53, s{S_HG}
    s_mul_i32 s53, s53, 73728
    s_waitcnt lgkmcnt(0)
    """)
    srd(a, 32, S_WS, 53, 73728)
    for i in range(128):
        a(f"v_mov_b32 v{i}, 0")
    def reads(u):
        fb = FB[(u >> 1) & 1] + 2*(u & 1)
        r = [f"ds_read_b64_tr_b16 {vr(fb+4*dt,2)}, v{AW+dt} offset:{(u%4)*16384}" for dt in range(8)]
        x = [f"ds_read_b64 {vr(fb+32+4*qt,2)}, v{AX+u%4} offset:{qt*2048}" for qt in range(4)]
        return x + r
    def half(buf, hf):
        return [lambda dt=dt, qt=qt: mfma(a, 16*dt+4*qt, FB[buf]+4*dt, FB[buf]+32+4*qt) for dt in range(4*hf, 4*hf+4) for qt in sn(dt)]
    def interval(buf, hf, rd, pre=(), mark=True):
        mf = half(buf, hf)
        if opt.steps and mark: a("s_memrealtime s[96:97]")
        weave(a, mf[:15], list(pre) + rd)
        a("s_waitcnt lgkmcnt(0)")
        if opt.steps and mark: a("v_writelane_b32 v250, s96, m0\ns_add_u32 m0, m0, 1")
        mf[15]()
    a("s_barrier")
    stamp(a, 1)
    for r in reads(0): a(r)
    a("s_mov_b32 s54, 9")
    if opt.steps: a("s_mov_b32 m0, 0\nv_mov_b32 v250, 0")
    a("s_waitcnt lgkmcnt(0)")
    a("s_barrier")
    for r in reads(1): a(r)
    a("s_waitcnt lgkmcnt(0)")
    a("L_g1_loop:")
    a("s_barrier")
    interval(0, 0, reads(2))
    a("s_barrier")
    interval(0, 1, reads(3), pre=["s_sub_u32 s54, s54, 1"])
    a("""
    s_cmp_eq_u32 s54, 0
    s_cbranch_scc1 L_g1_last
    s_barrier
    """)
    interval(1, 0, reads(4), pre=[f"v_add_u32 v{AX}, 8192, v{AX}"])
    a("s_barrier")
    interval(1, 1, reads(5), pre=[f"v_add_u32 v{AX+i}, 8192, v{AX+i}" for i in range(1, 4)])
    a("s_branch L_g1_loop")
    a("L_g1_last:")
    a("s_barrier")
    if opt.steps:
        a(f"""
        s_lshl_b32 s60, s2, 2
        s_add_u32 s60, s60, s{S_WAVE}
        s_lshl_b32 s60, s60, 8
        s_add_u32 s60, s60, {STAMP_OFF + (1 << 20)}
        s_add_u32 s56, s{S_WS}, s60
        s_addc_u32 s57, s{S_WS+1}, 0
        s_mov_b32 s58, 256
        s_mov_b32 s59, 0x20000
        v_lshrrev_b32 v251, 2, v{L16}
        buffer_store_dword v250, v251, s[56:59], 0 offen
        """)
    KF = lambda kt, ds: 128 + 16*ds + 4*kt
    krd = lambda ds: [f"ds_read_b64 {vr(KF(kt,ds)+2*jj,2)}, v{AK+2*ds+jj} offset:{kt*4096}" for kt in range(4) for jj in range(2)]
    weave(a, half(1, 0), krd(0) + krd(1) + krd(2), per=lambda k: 2)
    QF = lambda ds, qt: 64*(ds >> 1) + 16*(ds & 1) + 4*qt
    def qcvt(ds):
        return [cvt(QF(ds, qt)+2*u+e, 32*ds+16*u+4*qt+2*e) for qt in range(4) for u in range(2) for e in range(2)]
    av = [f"v_lshl_add_u32 v248, v{ROW4}, 8, v{C8}", "v_add_u32 v248, s52, v248", f"v_and_b32 v249, 7, v{ROW4}"]
    for dt in range(8):
        av += [f"v_xor_b32 v239, {dt}, v249", f"v_lshl_add_u32 v{AW+dt}, v239, 5, v248"]
    weave(a, half(1, 1), krd(3) + qcvt(0) + qcvt(1)[:8], per=lambda k: 2)
    stamp(a, 2)
    for x in qcvt(1)[8:]: a(x)
    a("s_waitcnt lgkmcnt(8)")
    S = lambda kt, qt: (32 if kt < 2 else 192) + 16*(kt & 1) + 4*qt
    g2 = lambda ds, kt, qt: (lambda: mfma(a, S(kt, qt), KF(kt, ds), QF(ds, qt), "zero" if ds == 0 else None))
    cbits = struct.unpack("<I", struct.pack("<f", math.log2(math.e) / math.sqrt(128.0)))[0]
    vals = [[S(kt, qt) + e for kt in range(4) for e in range(4)] for qt in range(4)]
    M = [240, 242, 244, 246]; SUM = [232, 234, 248, 250]
    def rowmax(qt):
        v = vals[qt]
        return ([f"v_max3_f32 v{M[qt]}, v{v[0]}, v{v[1]}, v{v[2]}"] +
                [f"v_max3_f32 v{M[qt]}, v{M[qt]}, v{v[i]}, v{v[i+1]}" for i in range(3, 15, 2)] +
                [f"v_max_f32 v{M[qt]}, v{M[qt]}, v{v[15]}"])
    weave(a, [g2(ds, kt, qt) for ds in range(2) for kt in range(4) for qt in sn(kt)],
          qcvt(2) + qcvt(3) + av + [f"s_mov_b32 s56, {hex(cbits)}", f"s_mov_b32 s57, {hex(cbits)}", "s_waitcnt lgkmcnt(0)"], per=lambda k: 2)
    for qt in range(4):
        weave(a, [g2(ds, kt, qt) for ds in (2, 3) for kt in range(4)], rowmax(qt-1) if qt else [], per=lambda k: 2, start=4)
    stamp(a, 3)
    a("s_nop 3")
    m3 = rowmax(3)
    a(m3[0]); a(m3[1]); a("s_nop 1")
    for x in m3[2:]: a(x)
    VF = lambda dt, ks: 128 + 16*(dt >> 1) + 8*ks + 4*(dt & 1)
    vrd = [f"ds_read_b64_tr_b16 {vr(VF(dt,ks)+2*j,2)}, v{AW+dt} offset:{ks*8192+j*4096}" for dt in range(8) for ks in range(2) for j in range(2)]
    xreduce(a, "v_max_f32", M, None, lambda u: a(f"v_mul_f32 v{u}, s56, v{u}"))
    for i in range(0, 16, 2):
        for qt in range(4):
            x = vals[qt][i]
            a(f"v_pk_fma_f32 {vr(x,2)}, {vr(x,2)}, s[56:57], {vr(M[qt],2)} op_sel_hi:[1,1,0] neg_lo:[0,0,1] neg_hi:[0,0,1]")
    for i in range(16):
        for qt in range(4):
            a(f"v_exp_f32 v{vals[qt][i]}, v{vals[qt][i]}")
    for qt in range(4):
        a(f"v_pk_add_f32 {vr(SUM[qt],2)}, {vr(vals[qt][0],2)}, {vr(vals[qt][2],2)}")
    for i in range(4, 16, 2):
        for qt in range(4):
            a(f"v_pk_add_f32 {vr(SUM[qt],2)}, {vr(SUM[qt],2)}, {vr(vals[qt][i],2)}")
    for qt in range(4):
        a(f"v_add_f32 v{SUM[qt]}, v{SUM[qt]}, v{SUM[qt]+1}")
    xreduce(a, "v_add_f32", SUM, None, lambda u: a(f"v_rcp_f32 v{u}, v{u}\ns_nop 0"))
    a("s_barrier")
    PF = lambda ks, qt: 96 + 16*ks + 4*qt
    for i in range(0, 16, 2):
        for qt in range(4):
            x = vals[qt][i]
            a(f"v_pk_mul_f32 {vr(x,2)}, {vr(x,2)}, {vr(SUM[qt],2)} op_sel_hi:[1,0]")
            a(vrd.pop(0))
    for ks in range(2):
        for qt in range(4):
            for u in range(2):
                for e in range(2):
                    a(cvt(PF(ks, qt)+2*u+e, S(2*ks+u, qt)+2*e))
    a("s_waitcnt lgkmcnt(0)")
    a("s_nop 0")
    if not opt.fused: stamp(a, 4)
    OT = lambda dt, qt: (16*dt if dt < 6 else 192 + 16*(dt-6)) + 4*qt
    g3 = lambda p: [lambda ks=ks, dt=dt, qt=qt: mfma(a, OT(dt, qt), VF(dt, ks), PF(ks, qt), "zero" if ks == 0 else None)
                    for ks in range(2) for dt in (2*p, 2*p+1) for qt in sn(dt)]
    OW, OR0, OR1, PV, AOB, AO, FV, ONE = 242, 243, 244, 245, 246, 248, 252, 253
    ad = f"""
    s_lshr_b32 s53, s{S_WAVE}, 1
    s_and_b32 s55, s{S_WAVE}, 1
    v_add_u32 v{OW}, s52, v{L16}
    s_lshl_b32 s55, s55, 11
    v_add_u32 v{OR1}, s55, v{L16}
    v_add_u32 v{OR0}, {VBASE01}, v{OR1}
    s_lshl_b32 s55, s{S_WAVE}, 11
    v_add_u32 v{PV}, s55, v{L16}
    s_lshl_b32 s53, s53, 1
    v_lshl_add_u32 v239, v{ROW4}, 7, v{C8}
    v_bfe_u32 v240, v{ROW4}, 1, 2
    v_xor_b32 v240, s53, v240
    v_lshl_add_u32 v{AOB}, v240, 5, v239
    v_xor_b32 v240, 1, v240
    v_lshl_add_u32 v{AOB+1}, v240, 5, v239
    v_add_u32 v{AO}, {WO_RING}, v{AOB}
    v_add_u32 v{AO+1}, {WO_RING}, v{AOB+1}
    s_lshl_b32 s55, s{S_G}, 12
    s_add_u32 s55, s55, {FLAG_OFF}
    s_add_u32 s36, s{S_WS}, s55
    s_addc_u32 s37, s{S_WS+1}, 0
    s_mov_b32 s38, 0
    s_mov_b32 s39, 0x20000
    s_lshl_b32 s55, s{S_WAVE}, 6
    s_lshl_b32 s53, s{S_HG}, 2
    s_add_u32 s55, s55, s53
    v_lshl_add_u32 v{FV}, v{L16}, 1, s55
    v_mov_b32 v{ONE}, 0x10000
    v_cmp_gt_u32 vcc, 32, v{L16}
    s_nop 0
    s_nop 0
    v_cndmask_b32 v{FV}, v{ONE}, v{FV}, vcc
    v_mov_b32 v{ONE}, 1
    """.strip().split("\n")
    OF = lambda k4, qt: 128 + 16*k4 + 4*qt
    def ocvt(k4):
        r = []
        for qt in range(4):
            r += [cvt(OF(k4, qt)+2*u+e, OT(2*k4+u, qt)+2*e) for u in range(2) for e in range(2)]
            r.append(f"ds_write_b128 v{OW}, {vr(OF(k4,qt),4)} offset:{(k4*4+qt)*1024}")
        return r
    weave(a, g3(0), ad[:30], per=lambda k: 2)
    weave(a, g3(1), ad[30:] + ocvt(0), per=lambda k: 2, start=2)
    weave(a, g3(2), ocvt(1), per=lambda k: 2, start=4)
    weave(a, g3(3), ocvt(2), per=lambda k: 2, start=4)
    a("s_nop 6")
    for x in ocvt(3): a(x)
    a("s_waitcnt lgkmcnt(0)")
    a("s_barrier")
    stamp(a, 5)
    ACCA, ACCB, WB, PKA, PKB = 128, 144, 160, 192, 200
    def wread(k4, ni):
        return [f"ds_read_b64_tr_b16 {vr(WB+8*k4+4*ni+2*j,2)}, v{AO+ni} offset:{k4*4096+j*2048}" for j in range(2)]
    def oread(h):
        return [f"ds_read_b128 {vr(32*h+8*k4+4*qi,4)}, v{OR0 if h < 2 else OR1} offset:{(h&1)*16384+(k4*4+qi)*1024}" for k4 in range(4) for qi in range(2)]
    for h in range(2):
        for r in oread(h): a(r)
    for k4 in range(4):
        for ni in range(2):
            for r in wread(k4, ni)[:1 if (k4, ni) == (3, 1) else 2]: a(r)
    a(f"""
    s_mov_b32 s54, 0
    s_mov_b32 s55, {WO_RING+16384}
    v_add_u32 v{AO}, s55, v{AOB}
    s_lshl_b32 s58, s{S_ROT2}, 13
    s_sub_u32 s61, s58, 8192
    s_cselect_b32 s61, 65536, s61
    s_sub_u32 s62, s61, 8192
    s_cselect_b32 s62, 65536, s62
    s_sub_u32 s63, s62, 8192
    s_cselect_b32 s63, 65536, s63
    s_mov_b32 s60, -256
    """)
    for i in range(4): a(f"v_mov_b32 v{PKA+i}, -1")
    if opt.steps2: a("s_mov_b32 m0, 0\ns_memrealtime s[96:97]")
    a("s_waitcnt lgkmcnt(0)")
    def cvts(pk):
        return [cvt(pk+4*qi+2*ni+e, ACCB+8*qi+4*ni+2*e) for qi in range(2) for ni in range(2) for e in range(2)]
    def store(pk, qi, soff):
        if opt.x_nostore: return "s_nop 0"
        return f"buffer_store_dwordx4 {vr(pk,4)}, v{PV}, s[32:35], s{soff} offen offset:{qi*1024} {opt.part_flags}".rstrip()
    flagst = f"buffer_store_dword v{ONE}, v{FV}, s[36:39], s60 offen sc1" if opt.fused else "s_nop 0"
    def adv(r):
        return [f"s_add_u32 s{r}, s{r}, 16384", f"s_cmp_ge_u32 s{r}, 73728", f"s_cselect_b32 s53, 73728, 0", f"s_sub_u32 s{r}, s{r}, s53"]
    def block(extra, skip=False):
        for kq in range(4):
            if kq % 2 == 0:
                if opt.steps2: a("s_waitcnt lgkmcnt(0)\nv_writelane_b32 v250, s96, m0\ns_add_u32 m0, m0, 1")
                if kq == 2 and skip: a(f"s_cmp_eq_u32 s54, 7\ns_cbranch_scc1 {skip}")
                a("s_barrier")
                if kq == 2 and skip: a(f"{skip}:")
                if opt.steps2: a("s_memrealtime s[96:97]")
            ex = list(extra[kq])
            sl = ["s_add_u32 s55, s55, 16384", f"s_cmp_eq_u32 s55, {LDS_BYTES}", "s_cselect_b32 s55, 0, s55"]
            if len(ex) <= 7:
                ex = ex[:5] + [None]*(5 - len(ex[:5])) + sl + ex[5:]
            else:
                ex = ex[:8] + [sl[0] + "\n" + sl[1], sl[2]] if len(ex) == 8 else None
            for k4 in range(4):
                for ni in range(2):
                    for qj in range(2):
                        qi = qj ^ (ni & opt.snake)
                        first = kq == 0 and k4 == 0
                        last = kq == 3 and k4 == 3
                        t = 8*qi + 4*ni
                        if last: mfma(a, ACCB+t, WB+8*k4+4*ni, 32*kq+8*k4+4*qi, ACCA+t)
                        else: mfma(a, ACCA+t, WB+8*k4+4*ni, 32*kq+8*k4+4*qi, "zero" if first else None)
                        g = 4*k4 + 2*ni + qj
                        if not opt.x_noread:
                            if qj == 1: a(wread(k4, ni)[0])
                            else:
                                pk4, pni = (k4, 0) if ni == 1 else ((k4 - 1) % 4, 1)
                                a(wread(pk4, pni)[1])
                        if g % 4 == 3: a("s_waitcnt lgkmcnt(11)")
                        elif g == 0: a(f"v_add_u32 v{AO+1}, s55, v{AOB+1}")
                        elif g == 14: a(f"v_add_u32 v{AO}, s55, v{AOB}")
                        elif ex:
                            x = ex.pop(0)
                            if x: a(x)
            assert not ex, (kq, ex)
    o2, o3 = oread(2), oread(3)
    mark = lambda n, r: [None]*5 + [store(PKA, 0, r), store(PKA, 1, r)] if opt.fused and opt.nmark >= n and opt.mark_at == 0 else []
    block([[x + "\n" + y for x, y in zip(o2, o3)], mark(1, 61), mark(2, 62), mark(3, 63)])
    sites = opt.st_pos.split(",")
    for w in range(1, len(sites)):
        a(f"s_and_b32 s53, s{S_WAVE}, {len(sites)-1}" if w == 1 else "")
        a(f"s_cmp_eq_u32 s53, {w}\ns_cbranch_scc1 L_p2_loop{w}")
    for w, site in enumerate(sites):
        a(f"L_p2_loop{w}:")
        ex = [cvts(PKA), [None]*7, [None]*7, [None]*7]
        p = [int(c) for c in site]
        ex[p[0]][p[1]] = store(PKA, 0, 58)
        ex[p[2]][p[3]] = store(PKA+4, 1, 58) + "\ns_waitcnt vmcnt(2)\n" + flagst
        assert p[2] < 3 or p[3] < 2
        ex[3][2:7] = ["s_add_u32 s58, s58, 8192\ns_add_u32 s60, s60, 256", "s_cmp_eq_u32 s58, 73728", "s_cselect_b32 s58, 0, s58", "s_mov_b32 s38, 4096", "s_add_u32 s54, s54, 1"]
        block(ex, skip=f"L_nobar{w}" if opt.fused and opt.nod17 else None)
        a(f"""
        s_cmp_lg_u32 s54, 8
        s_cbranch_scc1 L_p2_loop{w}
        """)
        if w < len(sites) - 1: a("s_branch L_p2_done")
    a("""
    L_p2_done:
    s_nop 7
    """)
    if opt.steps2:
        a(f"""
        s_waitcnt lgkmcnt(0)
        v_writelane_b32 v250, s96, m0
        s_lshl_b32 s53, s2, 2
        s_add_u32 s53, s53, s{S_WAVE}
        s_lshl_b32 s53, s53, 8
        s_add_u32 s53, s53, {STAMP_OFF + (1 << 20)}
        s_add_u32 s40, s{S_WS}, s53
        s_addc_u32 s41, s{S_WS+1}, 0
        s_mov_b32 s42, 256
        s_mov_b32 s43, 0x20000
        v_lshrrev_b32 v251, 2, v{L16}
        buffer_store_dword v250, v251, s[40:43], 0 offen
        """)
    stamp(a, 6)
    cv = cvts(PKA)
    for x in cv[:4] + [store(PKA, 0, 61)] + cv[4:] + [store(PKA+4, 1, 61)]: a(x)
    if opt.fused:
        if opt.d18: a("s_barrier")
        a("s_waitcnt vmcnt(2)\n" + flagst + "\ns_add_u32 s60, s60, 256")
        a(f"""
        s_mov_b32 s16, s36
        s_mov_b32 s17, s37
        s_mov_b32 s18, 4096
        s_mov_b32 s19, 0x20000
        s_cmp_eq_u32 s{S_WAVE}, 0
        s_cbranch_scc1 L_last
        s_waitcnt vmcnt(1)
        """)
        a(flagst)
        if opt.stamps:
            a("s_waitcnt lgkmcnt(0)"); stamp(a, 4)
            a("s_waitcnt vmcnt(0)"); stamp(a, 7); stamp_flush(a, 8)
        a("s_endpgm")
        a("L_last:")
        a(f"v_lshrrev_b32 v30, 4, v{L16}")
        reduce_setup(a, 30)
        a(f"""
        s_lshr_b32 s45, s61, 13
        s_mov_b32 s52, 2048
        s_waitcnt vmcnt(1)
        """)
        a(flagst.replace("s[36:39]", "s[16:19]"))
        if opt.stamps: a(f"s_mov_b32 s{S_WAVE}, 8"); stamp(a, 1)
        a("s_mov_b32 s46, 0x8000\ns_mov_b32 s47, 0\ns_mov_b32 s44, 0xff\ns_branch L_go")
    if opt.stamps and not opt.fused:
        a("s_waitcnt vmcnt(0)")
        stamp(a, 7)
        stamp_flush(a, 8)
    a("L_end:")
    a("s_endpgm")

def reduce_kernel(a):
    a(f"""
    s_cmp_ge_u32 s2, 256
    s_cbranch_scc1 L_rend
    s_load_dwordx2 s[4:5], s[0:1], 80
    s_load_dwordx2 s[6:7], s[0:1], 96
    v_lshrrev_b32 v1, 6, v0
    v_and_b32 v0, 63, v0
    v_readfirstlane_b32 s3, v1
    s_lshr_b32 s8, s2, 3
    s_and_b32 s9, s2, 7
    v_lshrrev_b32 v1, 3, v0
    v_and_b32 v2, 7, v0
    v_lshrrev_b32 v3, 2, v1
    v_and_b32 v5, 3, v1
    s_lshr_b32 s10, s9, 1
    s_and_b32 s11, s9, 1
    s_lshl_b32 s10, s10, 10
    s_lshl_b32 s11, s11, 7
    s_add_u32 s10, s10, s11
    s_lshl_b32 s11, s3, 13
    s_add_u32 s10, s10, s11
    v_lshlrev_b32 v6, 6, v3
    v_lshlrev_b32 v3, 12, v3
    v_lshl_add_u32 v3, v5, 8, v3
    v_lshl_add_u32 v3, v2, 4, v3
    v_add_u32 v3, s10, v3
    v_lshl_add_u32 v6, v5, 3, v6
    s_mul_i32 s12, s8, {8*73728}
    s_and_b32 s13, s8, 15
    s_lshr_b32 s14, s8, 4
    s_lshl_b32 s13, s13, 6
    s_lshl_b32 s15, s9, 3
    s_add_u32 s13, s13, s15
    s_mul_i32 s13, s13, 2304
    s_mul_i32 s14, s14, 1152
    s_add_u32 s13, s13, s14
    s_lshl_b32 s14, s3, 7
    s_add_u32 s13, s13, s14
    v_mul_u32_u24 v4, 2304, v2
    v_add_u32 v4, v6, v4
    s_waitcnt lgkmcnt(0)
    s_add_u32 s16, s6, s12
    s_addc_u32 s17, s7, 0
    s_mov_b32 s18, {8*73728}
    s_mov_b32 s19, 0x20000
    s_mov_b32 s20, s4
    s_mov_b32 s21, s5
    s_mov_b32 s22, {16*64*1152*2}
    s_mov_b32 s23, 0x20000
    """)
    for s in range(8):
        a(f"s_mov_b32 s24, {s*73728}")
        a(f"buffer_load_dwordx4 {vr(8+4*s,4)}, v3, s[16:19], s24 offen")
    for s in range(8):
        a(f"s_waitcnt vmcnt({7-s})")
        for e in range(4):
            x = 8+4*s+e
            if s == 0:
                a(f"v_lshlrev_b32 v{40+2*e}, 16, v{x}")
                a(f"v_and_b32 v{41+2*e}, 0xffff0000, v{x}")
            else:
                a(f"v_lshlrev_b32 v48, 16, v{x}")
                a(f"v_and_b32 v49, 0xffff0000, v{x}")
                a(f"v_pk_add_f32 {vr(40+2*e,2)}, {vr(40+2*e,2)}, v[48:49]")
    for e in range(4):
        a(f"v_cvt_pk_bf16_f32 v{8+e}, v{40+2*e}, v{41+2*e}")
    a("buffer_store_dwordx2 v[8:9], v4, s[20:23], s13 offen")
    a("buffer_store_dwordx2 v[10:11], v4, s[20:23], s13 offen offset:32")
    if opt.stamps:
        a(f"""
        s_waitcnt vmcnt(0)
        s_memrealtime s[24:25]
        s_cmp_ge_u32 s3, 4
        s_cbranch_scc1 L_rend
        s_lshl_b32 s26, s2, 4
        s_add_u32 s26, s26, s3
        s_lshl_b32 s26, s26, 7
        s_add_u32 s26, s26, {STAMP_OFF}
        s_add_u32 s16, s6, s26
        s_addc_u32 s17, s7, 0
        s_mov_b32 s18, 128
        s_waitcnt lgkmcnt(0)
        v_mov_b32 v8, s24
        v_mov_b32 v9, s25
        v_mov_b32 v10, 0
        buffer_store_dwordx2 v[8:9], v10, s[16:19], 0 offen offset:120
        """)
    a("L_rend:")
    a("s_endpgm")

def diag_kernel(a):
    a(f"""
    s_cmp_ge_u32 s2, 1
    s_cbranch_scc1 L_dend
    s_load_dwordx2 s[6:7], s[0:1], 96
    v_lshrrev_b32 v1, 2, v0
    v_and_b32 v2, 3, v0
    v_lshlrev_b32 v1, 11, v1
    v_add_u32 v4, 5, v2
    v_lshl_add_u32 v4, v4, 7, v1
    v_max_u32 v2, 1, v2
    v_lshl_add_u32 v1, v2, 7, v1
    s_waitcnt lgkmcnt(0)
    s_add_u32 s8, s6, {STAMP_OFF}
    s_addc_u32 s9, s7, 0
    s_mov_b32 s10, {512*1024}
    s_mov_b32 s11, 0x20000
    """)
    for i in range(16):
        a(f"s_mov_b32 s12, {i*32768}")
        a(f"buffer_load_dword v{8+i}, v1, s[8:11], s12 offen")
        a(f"buffer_load_dword v{24+i}, v1, s[8:11], s12 offen offset:{8*opt.diag}" if opt.diag < 20 else f"buffer_load_dword v{24+i}, v4, s[8:11], s12 offen")
    a("s_waitcnt vmcnt(0)")
    a("v_readfirstlane_b32 s13, v8")
    a("s_sub_u32 s13, s13, 100000")
    a("s_nop 1")
    for i in range(32):
        a(f"v_subrev_u32 v{8+i}, s13, v{8+i}")
    for i in range(1, 16):
        a(f"v_min_u32 v8, v8, v{8+i}")
        a(f"v_max_u32 v24, v24, v{24+i}")
    a("s_mov_b32 s14, -1\ns_mov_b32 s15, 0\ns_nop 1")
    for l in range(64):
        a(f"v_readlane_b32 s16, v8, {l}")
        a(f"v_readlane_b32 s17, v24, {l}")
        a("s_nop 3")
        a("s_min_u32 s14, s14, s16")
        a("s_max_u32 s15, s15, s17")
    a("""
    s_sub_u32 s15, s15, s14
    s_min_u32 s15, s15, 20000
    s_mul_i32 s15, s15, 10
    s_memrealtime s[18:19]
    s_waitcnt lgkmcnt(0)
    L_dspin:
    s_memrealtime s[20:21]
    s_waitcnt lgkmcnt(0)
    s_sub_u32 s20, s20, s18
    s_cmp_lt_u32 s20, s15
    s_cbranch_scc1 L_dspin
    L_dend:
    s_endpgm
    """)

def kd(name, vgpr, sgpr):
    acc = (vgpr + 3)//4*4
    return f""".section .rodata,"a"
.p2align 6
.amdhsa_kernel {name}
  .amdhsa_next_free_vgpr {vgpr}
  .amdhsa_next_free_sgpr {sgpr}
  .amdhsa_accum_offset {acc}
  .amdhsa_group_segment_fixed_size 0
  .amdhsa_kernarg_size 104
  .amdhsa_user_sgpr_count 2
  .amdhsa_user_sgpr_kernarg_segment_ptr 1
  .amdhsa_system_sgpr_workgroup_id_x 1
.end_amdhsa_kernel
"""

def build():
    main = NAME + "_kernel"
    red = "mha_reduce_kernel"
    out = []
    single = opt.fused and opt.diag < 0 and not opt.extra_launch
    if single:
        out.append(f"; @launch grid=(256,1,1) block=(512,1,1) lds={LDS_BYTES}")
    else:
        out.append(f"; @launch kernel={main} grid=(256,1,1) block=(512,1,1) lds={LDS_BYTES}")
    if not opt.fused:
        out.append(f"; @launch kernel={red} grid=(256,1,1) block=(576,1,1) lds=0")
    if opt.diag >= 0:
        out.append(f"; @launch kernel=diag_kernel grid=(1,1,1) block=(64,1,1) lds=0")
    for _ in range(opt.extra_launch):
        out.append(f"; @launch kernel=nop_kernel grid=(1,1,1) block=(64,1,1) lds=0")
    out.append('.amdgcn_target "amdgcn-amd-amdhsa--gfx950"')
    out.append(".text")
    a = Asm()
    prologue(a); loader(a); compute(a)
    out.append(f".globl {main}\n.p2align 8\n.type {main},@function\n{main}:")
    out.append(a.text())
    if not opt.fused:
        a = Asm(); reduce_kernel(a)
        out.append(f".globl {red}\n.p2align 8\n.type {red},@function\n{red}:")
        out.append(a.text())
    if opt.diag >= 0:
        a = Asm(); diag_kernel(a)
        out.append(".globl diag_kernel\n.p2align 8\n.type diag_kernel,@function\ndiag_kernel:\n" + a.text())
        out.append(kd("diag_kernel", 48, 32))
        out.append(".text")
    if opt.extra_launch:
        out.append(".globl nop_kernel\n.p2align 8\n.type nop_kernel,@function\nnop_kernel:\n    s_endpgm\n")
        out.append(kd("nop_kernel", 8, 16))
        out.append(".text")
    out.append(kd(main, 256, 102))
    if not opt.fused: out.append(kd(red, 56, 32))
    return "\n".join(out)

if __name__ == "__main__":
    path = sys.argv[1]
    for kv in sys.argv[2:]:
        k, v = kv.split("=", 1)
        cur = getattr(opt, k)
        setattr(opt, k, type(cur)(int(v)) if isinstance(cur, (bool, int)) else v)
    open(path, "w").write(build())
```

```python
import sys, math, struct, re

NAME = "concat_heads__mha_block_cached__gqa_block_cached__near_ridge"

class Opt:
    kv_nt = True
    w_nt = False
    x_nt = False
    part_flags = "sc1"
    stamps = False
    pf_v = True
    pf_wo = True
    prio_load = 0
    extra_launch = 0
    ltime = 0
    pro = 0
    steps = 0
    x_nodma = 0
    x_noread = 0
    x_nowait = 0
    x_nochain = 0
    x_nostore = 0
    x_dbuf = 0
    st_pos = "1516"
    nmark = 0
    d18 = 0
    pretouch = 0
    latev = 1
    spoll = 1
    sleeps = 1
    smark = 0
    mark_at = 2
    snake = 1
    codepf = 1
    pair = 0
    tight = 0
    selfw = 0
    sched2 = "-1:x1|-1+:x2,x3,k0|7+:x4,x5,k1,k2,k3|15+:x6,x7,k4,k5,k6|23+:x8,k7,v0|27:v1|31:v2|33:v4,v5,v6,v7|35:v3"
    wslots = "23579b"
    stag2 = "0,4"
    g1dbl = 2
    hstride = 1
    defer = 1
    xpose = 1
    steps2 = 0
    flag_pos = 1
    g0_at = 14
    g0_split = 4
    sleep = 8
    sleep8 = 10
    sleep9 = 6
    nod17 = 0
    st_late = 0
    out_flags = ""
    x_nodsw = 0
    lead = 7
    pub_late = 0
    x_nopub = 0
    fused = 1
    prio_comp = 0
    sched = "0:x1|2:d0|1+:x2,x3,k0|7+:x4,x5,k1,k2,k3|15+:x6,x7,k4,k5,k6|23+:x8,k7,v0|31:v1,v2|32:v4|33:v5|35:v6,v7,v3"
    stagger = "0,1,2,3"
    p2quota = "222222222222222"
    diag = -1
opt = Opt()

class Asm:
    def __init__(self):
        self.l = []
    def __call__(self, s):
        for x in s.strip("\n").split("\n"):
            if not x.strip(): continue
            self.l.append("    " + x.strip() if not x.strip().endswith(":") else x.strip())
    def c(self, s):
        self.l.append("    ; " + s)
    def text(self):
        return "\n".join(self.l) + "\n"

def vr(a, n=1):
    return f"v{a}" if n == 1 else f"v[{a}:{a+n-1}]"
def sr(a, n=1):
    return f"s{a}" if n == 1 else f"s[{a}:{a+n-1}]"

KBASE = 65536
XBASE = 90112
VBASE01 = 131072
WO_RING = 32768
LDS_BYTES = 163840

S_WAVE, S_BR, S_B, S_HG, S_ROT, S_G, S_ROT2 = 3, 30, 31, 48, 49, 50, 14
S_X, S_K, S_V, S_WQ, S_WO, S_OUT, S_DBG, S_WS = 4, 6, 8, 10, 12, 24, 26, 28

FLAG_OFF = 24 << 20
STAGE = 0
STAMP_OFF = 32 << 20

def stamp(a, idx):
    if opt.stamps:
        a(f"s_memrealtime s[{64+2*idx}:{65+2*idx}]")
        a(f"s_memtime s[{80+2*idx}:{81+2*idx}]")

def stamp_flush(a, n):
    if not opt.stamps:
        return
    a(f"""
    s_waitcnt lgkmcnt(0)
    s_lshl_b32 s60, s2, 4
    s_add_u32 s60, s60, s{S_WAVE}
    s_lshl_b32 s60, s60, 7
    s_add_u32 s60, s60, {STAMP_OFF}
    s_add_u32 s56, s{S_WS}, s60
    s_addc_u32 s57, s{S_WS+1}, 0
    s_mov_b32 s58, 128
    s_mov_b32 s59, 0x20000
    v_mov_b32 v250, 0
    """)
    for i in range(2*n):
        a(f"v_mov_b32 v252, s{64+2*i}")
        a(f"v_mov_b32 v253, s{65+2*i}")
        a(f"buffer_store_dwordx2 v[252:253], v250, s[56:59], 0 offen offset:{8*i}")
        a("s_waitcnt vmcnt(0)")

def tbegin(a):
    if opt.stamps and opt.ltime:
        for i in range(16): a(f"s_mov_b64 s[{64+2*i}:{65+2*i}], 0")
        a("s_memtime s[96:97]\ns_waitcnt lgkmcnt(0)")
def tacc(a, idx):
    if opt.stamps and opt.ltime:
        a(f"""
        s_memtime s[98:99]
        s_waitcnt lgkmcnt(0)
        s_sub_u32 s97, s98, s96
        s_add_u32 s{64+2*idx}, s{64+2*idx}, s97
        s_mov_b32 s96, s98
        """)

def srd(a, d, base, off_expr_sreg, size):
    a(f"s_add_u32 s{d}, s{base}, s{off_expr_sreg}")
    a(f"s_addc_u32 s{d+1}, s{base+1}, 0")
    a(f"s_mov_b32 s{d+2}, {size}")
    a(f"s_mov_b32 s{d+3}, 0x20000")

class VM:
    def __init__(self, a):
        self.a = a; self.ops = []
    def issue(self, tag, n=1):
        self.ops += [tag] * n
    def wait(self, tag):
        last = max(i for i, t in enumerate(self.ops) if t == tag)
        n = len(self.ops) - 1 - last
        assert n <= 63, n
        self.a(f"s_waitcnt vmcnt({n})")
    def wait_all(self, tags):
        last = max(i for i, t in enumerate(self.ops) if t in tags)
        assert all(t in self.ops for t in tags), tags
        self.wait(self.ops[last])

class Grp:
    def __init__(self, tag, m0, pre, so, dm, post):
        self.tag, self.m0, self.pre, self.so, self.dm, self.post, self.ready = tag, m0, pre, so, dm, post, False

def emit_interval(a, vm, items, nxt_first, need):
    waited = need is None
    for k, g in enumerate(items):
        if not isinstance(g, Grp):
            g(); continue
        last = k == len(items) - 1
        if not g.ready:
            a(g.m0)
            for x in g.pre or ["s_nop 0"]: a(x)
        for d in g.dm[:-1]: a(d.format(so=g.so))
        vm.issue(g.tag, len(g.dm) - 1)
        nx = nxt_first if last else items[k+1]
        nx = nx if isinstance(nx, Grp) and opt.tight else None
        hoist = g.post + (nx.pre if nx else [])
        so = g.so
        if opt.tight:
            if any(re.match(rf"s_\w+ s{g.so},", x) for x in hoist):
                a(f"s_mov_b32 s94, s{g.so}"); so = 94
            for x in hoist: a(x)
            if last and not waited and g.tag not in need:
                vm.wait_all(need); waited = True
        a(g.dm[-1].format(so=so))
        vm.issue(g.tag, 1)
        if not opt.tight:
            for x in hoist: a(x)
        if nx:
            a(nx.m0); nx.ready = True
            if not last: a("s_nop 0")
    if need is not None:
        if not waited: vm.wait_all(need)
        a("s_barrier")

def prologue(a):
    a(f"""
    s_cmp_ge_u32 s2, 256
    s_cbranch_scc1 L_end
    {"s_memrealtime s[92:93]" if opt.pro else ""}
    s_bfe_u32 s{S_BR}, s2, 0x10002
    s_mul_i32 s52, s{S_BR}, 40
    s_load_dwordx8 s[4:11], s[0:1], s52
    s_add_u32 s53, s52, 32
    s_load_dwordx2 s[12:13], s[0:1], s53
    s_load_dwordx4 s[24:27], s[0:1], 80
    s_load_dwordx2 s[28:29], s[0:1], 96
    v_lshrrev_b32 v1, 6, v0
    v_and_b32 v0, 63, v0
    v_readfirstlane_b32 s{S_WAVE}, v1
    s_and_b32 s51, s2, 3
    s_lshr_b32 s{S_B}, s2, 4
    s_bfe_u32 s54, s2, 0x10003
    {"s_lshl_b32 s51, s51, 1" if not opt.pair else "s_lshl_b32 s55, s54, 2"}
    s_add_u32 s{S_HG}, s51, {"s54" if not opt.pair else "s55"}
    s_mul_i32 s55, s{S_B}, 9
    s_lshr_b32 s{S_ROT2}, s55, 4
    s_lshl_b32 s54, s54, 2
    s_add_u32 s{S_ROT}, s{S_ROT2}, s54
    s_cmp_ge_u32 s{S_ROT}, 9
    s_cselect_b32 s54, 9, 0
    s_sub_u32 s{S_ROT}, s{S_ROT}, s54
    s_lshl_b32 s{S_G}, s{S_BR}, 4
    s_add_u32 s{S_G}, s{S_G}, s{S_B}
    """)
    stamp(a, 0)
    a(f"""
    s_cmp_lt_u32 s{S_WAVE}, 4
    s_cbranch_scc1 L_compute
    """)

def dma4(a, vbase, srdr, soff, flags, same_v=False):
    for m in range(4):
        v = vbase if same_v else vbase + m
        a(f"buffer_load_dwordx4 v{v}, s[{srdr}:{srdr+3}], s{soff} offen offset:{m*1024}{flags} lds")

def reduce_setup(a, lane):
    SG, SO = 36, 40
    a(f"s_mul_i32 s52, s{S_G}, {8*73728}")
    srd(a, SG, S_WS, 52, 8*73728)
    a(f"""
    s_mov_b32 s{SO}, s{S_OUT}
    s_mov_b32 s{SO+1}, s{S_OUT+1}
    s_mov_b32 s{SO+2}, {16*64*1152*2}
    s_mov_b32 s{SO+3}, 0x20000
    v_lshrrev_b32 v26, 5, v{lane}
    v_bfe_u32 v27, v{lane}, 3, 2
    v_and_b32 v28, 7, v{lane}
    s_lshr_b32 s52, s{S_HG}, 1
    s_lshl_b32 s56, s52, 10
    s_and_b32 s57, s{S_HG}, 1
    s_lshl_b32 s57, s57, 7
    s_add_u32 s56, s56, s57
    v_lshlrev_b32 v22, 12, v26
    v_lshl_add_u32 v22, v27, 8, v22
    v_lshl_add_u32 v22, v28, 4, v22
    v_add_u32 v22, s56, v22
    {"v_lshrrev_b32 v21, 3, v%d" % lane if opt.xpose else ""}
    v_mul_u32_u24 v23, 2304, {"v21" if opt.xpose else "v28"}
    {"v_lshl_add_u32 v21, v28, 3, v21" if opt.xpose else ""}
    {"v_lshlrev_b32 v21, 2, v21" if opt.xpose else ""}
    {"v_bfe_u32 v26, v%d, 2, 1" % lane if opt.xpose else ""}
    {"v_and_b32 v27, 3, v%d" % lane if opt.xpose else ""}
    v_lshl_add_u32 v23, v26, 6, v23
    v_lshl_add_u32 v23, v27, 3, v23
    s_lshl_b32 s52, s52, 5
    v_lshl_add_u32 v24, v28, 2, s52
    v_bfe_u32 v29, v{lane}, 3, 1
    v_lshl_add_u32 v25, v29, 7, v24
    s_lshl_b32 s52, s{S_B}, 6
    s_lshl_b32 s56, s{S_HG}, 3
    s_add_u32 s52, s52, s56
    s_mul_i32 s52, s52, 2304
    s_mul_i32 s56, s{S_BR}, 1152
    s_add_u32 s15, s52, s56
    """)

def loader(a):
    vm = VM(a)
    flw = " nt" if opt.w_nt else ""
    flx = " nt" if opt.x_nt else ""
    flkv = " nt" if opt.kv_nt else ""
    SX, SWQ, SK, SV, SWO = 32, 36, 40, 44, 60
    a("L_load:")
    if opt.prio_load: a(f"s_setprio {opt.prio_load}")
    a(f"""
    s_sub_u32 s51, s{S_WAVE}, 4
    v_lshrrev_b32 v12, 3, v0
    v_mul_u32_u24 v12, 1152, v12
    v_lshrrev_b32 v13, 4, v0
    v_and_b32 v14, 7, v0
    v_xor_b32 v14, v14, v13
    v_lshl_add_u32 v5, v14, 4, v12
    v_xor_b32 v14, 4, v14
    v_lshl_add_u32 v6, v14, 4, v12
    v_add_u32 v6, 8192, v6
    s_lshl_b32 s53, s51, 12
    s_lshl_b32 s59, s51, 11
    s_mul_i32 s54, s51, {16*1152}
    s_lshl_b32 s55, s{S_ROT}, 7
    s_add_u32 s54, s54, s55
    s_mov_b32 s55, s{S_ROT}
    s_lshl_b32 s57, s{S_ROT}, 19
    s_lshl_b32 s56, s51, 15
    s_add_u32 s57, s57, s56
    s_and_b32 s56, s51, 1
    s_lshl_b32 s56, s56, 3
    v_xor_b32 v10, s56, v0
    """)
    if opt.hstride: a(f"v_mul_u32_u24 v11, {2048-256}, v13")
    for m in range(4):
        a(f"v_xor_b32 v{1+m}, {2*m}, v10")
        a(f"v_lshl_add_u32 v{1+m}, v{1+m}, 4, v11" if opt.hstride else f"v_lshlrev_b32 v{1+m}, 4, v{1+m}")
        if m: a(f"v_add_u32 v{1+m}, {m*(8192-1024)}, v{1+m}")
    a(f"""
    s_mul_i32 s44, s{S_B}, 73728
    s_lshl_b32 s45, s{S_HG}, {8 if opt.hstride else 10}
    s_sub_u32 s{SWQ+2}, {576*8192}, s45
    s_mov_b32 s{SWQ+3}, 0x20000
    s_mov_b32 s{SX+2}, 73728
    s_mov_b32 s{SX+3}, 0x20000
    s_waitcnt lgkmcnt(0)
    {"s_memrealtime s[66:67]" if opt.pro else ""}
    s_add_u32 s{SX}, s{S_X}, s44
    s_addc_u32 s{SX+1}, s{S_X+1}, 0
    s_add_u32 s{SWQ}, s{S_WQ}, s45
    s_addc_u32 s{SWQ+1}, s{S_WQ+1}, 0
    """)
    def xblk(i):
        return Grp(f"x{i}", f"s_add_u32 m0, s59, {XBASE + i*8192}", [], 54,
                   [f"buffer_load_dwordx4 v{5+m}, s[{SX}:{SX+3}], s{{so}} offen offset:{m*1024}{flx} lds" for m in range(2)],
                   ["s_add_u32 s55, s55, 1", "s_add_u32 s54, s54, 128", "s_cmp_eq_u32 s55, 9", "s_cselect_b32 s55, 0, s55",
                    "s_cselect_b32 s58, 1152, 0", "s_sub_u32 s54, s54, s58"])
    if opt.pro: a("s_memrealtime s[68:69]")
    def wq(u):
        post = [f"s_add_u32 s57, s57, {16*8192}"]
        if u % 4 == 3: post += [f"s_cmp_ge_u32 s57, {576*8192}", f"s_cselect_b32 s58, {576*8192}, 0", "s_sub_u32 s57, s57, s58"]
        return Grp(f"w{u}", f"s_add_u32 m0, s53, {(u%4)*16384}", [], 57,
                   [f"buffer_load_dwordx4 v{1+m}, s[{SWQ}:{SWQ+3}], s{{so}} offen offset:{m*1024}{flw} lds" for m in range(4)], post)
    emit_interval(a, vm, [xblk(0)] + ([] if opt.selfw else [wq(0), wq(1)]), None, None)
    if opt.codepf:
        a(f"""
        s_getpc_b64 s[62:63]
        L_pc:
        s_lshr_b32 s52, s2, 3
        s_lshl_b32 s52, s52, 2
        s_add_u32 s52, s52, s51
        s_mul_i32 s52, s52, 192
        s_min_u32 s52, s52, L_end - L_att - 192
        s_add_u32 s52, s52, L_att - L_pc
        s_add_u32 s62, s62, s52
        s_addc_u32 s63, s63, 0
        s_load_dword s100, s[62:63], 0
        s_load_dword s101, s[62:63], 64
        s_load_dword s100, s[62:63], 128
        """)
    a(f"""
    s_lshl_b32 s52, s{S_B}, 5
    s_lshl_b32 s56, s{S_HG}, {0 if opt.hstride else 2}
    s_add_u32 s52, s52, s56
    s_lshl_b32 s52, s52, 14
    """)
    kvoff = lambda n: (n >> 1)*8*16384 + (n & 1)*8192 if opt.hstride else n*8192
    srd(a, SK, S_K, 52, 25*16384 if opt.hstride else 65536)
    srd(a, SV, S_V, 52, 25*16384 if opt.hstride else 65536)
    a(f"""
    s_and_b32 s52, s51, 1
    s_lshl_b32 s52, s52, 3
    v_lshlrev_b32 v12, 8, v13
    v_and_b32 v14, 15, v0
    v_xor_b32 v15, v14, v13
    v_xor_b32 v15, s52, v15
    v_lshl_add_u32 v7, v15, 4, v12
    v_xor_b32 v15, 4, v15
    v_lshl_add_u32 v8, v15, 4, v12
    v_lshlrev_b32 v16, 1, v13
    v_xor_b32 v16, v16, v14
    v_lshl_add_u32 v9, v16, 4, v12
    v_xor_b32 v16, 8, v16
    v_lshl_add_u32 v10, v16, 4, v12
    s_mul_i32 s52, s{S_HG}, {(128 if opt.hstride else 512)*1152}
    """)
    KQ = (8 if opt.hstride else 1)*128*1152
    srd(a, SWO, S_WO, 52, 3*KQ + 128*1152)
    a(f"""
    v_lshrrev_b32 v12, 3, v0
    v_mul_u32_u24 v12, 1152, v12
    v_lshlrev_b32 v14, 1, v13
    v_and_b32 v15, 7, v0
    v_xor_b32 v14, v14, v15
    v_lshl_add_u32 v16, v14, 4, v12
    v_add_u32 v17, 8192, v16
    v_add_u32 v18, 16384, v16
    v_add_u32 v19, 24576, v16
    """)
    def kblk(n):
        return Grp(f"k{n}", f"s_add_u32 m0, s59, {KBASE + n*8192}", [f"s_add_u32 s56, s59, {kvoff(n)}"], 56,
                   [f"buffer_load_dwordx4 v{7+m}, s[{SK}:{SK+3}], s{{so}} offen offset:{m*1024}{flkv} lds" for m in range(2)], [])
    def vblk(n):
        dst = VBASE01 + n*8192 if n < 4 else (n-4)*8192
        return Grp(f"v{n}", f"s_add_u32 m0, s59, {dst}", [f"s_add_u32 s56, s59, {kvoff(n)}"], 56,
                   [f"buffer_load_dwordx4 v{9+m}, s[{SV}:{SV+3}], s{{so}} offen offset:{m*1024}{flkv} lds" for m in range(2)], [])
    def wo_init():
        a(f"""
        s_mul_i32 s54, s51, {32*1152}
        s_lshl_b32 s52, s{S_ROT2}, 7
        s_add_u32 s54, s54, s52
        s_mov_b32 s55, s{S_ROT2}
        """)
    def wo(t):
        post = [f"s_add_u32 s54, s54, {KQ}"] if t % 4 != 3 else [
            "s_add_u32 s55, s55, 1", "s_cmp_eq_u32 s55, 9", "s_cselect_b32 s55, 0, s55", "s_cselect_b32 s58, 1152, 0",
            f"s_sub_u32 s54, s54, {3*KQ-128}", "s_sub_u32 s54, s54, s58"]
        return Grp(f"o{t}", f"s_add_u32 m0, s53, {((t+2)%10)*16384}", [], 54,
                   [f"buffer_load_dwordx4 v{16+m}, s[{SWO}:{SWO+3}], s{{so}} offen offset:{m*1024}{flw} lds" for m in range(4)], post)
    F = {"x": xblk, "k": kblk, "v": vblk}
    if opt.fused:
        a(f"""
        s_lshl_b32 s52, s{S_G}, 12
        s_add_u32 s52, s52, {FLAG_OFF}
        """)
        srd(a, 16, S_WS, 52, 4096)
        a(f"""
        s_mov_b32 s20, s{S_DBG}
        s_mov_b32 s21, s{S_DBG+1}
        s_mov_b32 s22, 256
        s_mov_b32 s23, 0x20000
        s_lshl_b32 s52, s{S_G}, 2
        v_mov_b32 v72, s52
        s_add_u32 s56, s{S_HG}, s51
        s_cmp_eq_u32 s56, 0
        s_cselect_b32 s98, 4096, 0
        s_mov_b32 s96, s16
        s_mov_b32 s97, s17
        s_mov_b32 s99, 0x20000
        v_mov_b32 v32, 0
        v_mov_b32 v33, 0
        v_mov_b32 v34, 0
        v_mov_b32 v35, 0
        v_lshlrev_b32 v36, 4, v0
        v_mov_b32 v31, 1
        buffer_store_dwordx4 v[32:35], v36, s[96:99], 0 offen sc1
        buffer_store_dwordx4 v[32:35], v36, s[96:99], 0 offen offset:1024 sc1
        buffer_store_dwordx4 v[32:35], v36, s[96:99], 0 offen offset:2048 sc1
        """)
        vm.issue("z", 3)
    if opt.pretouch:
        a(f"""
        v_lshlrev_b32 v73, 17, v13
        v_mul_u32_u24 v74, {KQ >> 4}, v13
        v_lshlrev_b32 v74, 4, v74
        buffer_load_dword v75, v73, s[{SK}:{SK+3}], 0 offen
        buffer_load_dword v75, v73, s[{SV}:{SV+3}], 0 offen
        buffer_load_dword v75, v74, s[{SWO}:{SWO+3}], 0 offen
        """)
        vm.issue("pt", 3)
        if opt.pretouch > 1:
            a(f"""
            s_mul_i32 s52, s{S_G}, {8*73728}
            s_add_u32 s64, s{S_WS}, s52
            s_addc_u32 s65, s{S_WS+1}, 0
            s_mov_b32 s66, {8*73728}
            s_mov_b32 s67, 0x20000
            buffer_load_dword v75, v73, s[64:67], 0 offen
            """)
            vm.issue("pt", 1)
    def announce():
        if not opt.fused: return
        vm.wait("z")
        a("""
        s_mov_b32 s96, s20
        s_mov_b32 s97, s21
        s_lshr_b32 s98, s98, 4
        buffer_store_dword v31, v72, s[96:99], 0 offen sc1
        """)
        vm.issue("d")
    F["d"] = lambda _: announce
    if opt.pro:
        a("s_memrealtime s[72:73]")
        vm.wait("x0")
        a("s_memrealtime s[74:75]")
    vm.wait("x0" if opt.selfw else "w0")
    if opt.pro: a("s_memrealtime s[76:77]")
    a("s_barrier")
    if opt.pro: a("s_memrealtime s[78:79]\ns_waitcnt lgkmcnt(0)\ns_mov_b64 s[64:65], s[92:93]")
    offs = [int(x) for x in (opt.stag2 if opt.selfw else opt.stagger).split(",")]
    if len(offs) > 1:
        a(f"s_and_b32 s52, s{S_B}, {len(offs)-1}")
        for g in range(1, len(offs)):
            a(f"s_cmp_eq_u32 s52, {g}")
            a(f"s_cbranch_scc1 L_var{g}")
    ops0 = list(vm.ops)
    for g, off in enumerate(offs):
        vm.ops = list(ops0)
        if g: a(f"L_var{g}:")
        ev = {s: [] for s in range(-1, 36)}
        for item in (opt.sched2 + "|3:d0" if opt.selfw else opt.sched).split("|"):
            st, names = item.split(":")
            st = int(st[:-1]) + off if st.endswith("+") else int(st[:-1]) + off//2 if st.endswith("h") else int(st)
            for nm in names.split(","):
                n = int(nm[1:])
                free = {"d": 1, "p": -1, "x": -1, "k": 4*(n-3)+3 if n >= 3 else -1, "v": 4*(n+5)+3 if n < 4 else 32+(n-4)//2}[nm[0]]
                assert st >= free, (nm, st, free)
                if nm[0] == "x": assert st < 4*n-1, (nm, st)
                ev[st].append(F[nm[0]](int(nm[1:])))
        if opt.selfw:
            bars = [-1] + list(range(3, 32, 4)) + [33, 35]
            assert all(not ev[s] or s in bars for s in ev)
            for s, nb in zip(bars, bars[1:]):
                need = [f"x{(nb+1)//4}"] if nb < 33 else [f"k{n}" for n in range(8)]
                emit_interval(a, vm, ev[s], None, need)
            emit_interval(a, vm, ev[35], None, None)
        iv = {-1: [wq(2), wq(3)]}
        for s in range(36): iv[s] = ([wq(s + 4)] if s + 4 < 36 else []) + ev[s]
        for s in range(-1, 35) if not opt.selfw else []:
            need = [f"w{s+2}"] if s < 34 else [f"k{n}" for n in range(8)]
            if (s + 1) % 4 == 3 and s < 34: need.append(f"x{(s+2)//4}")
            emit_interval(a, vm, iv[s], iv[s+1][0] if iv[s+1] else None, need)
        if not opt.selfw: emit_interval(a, vm, iv[35], None, None)
        if g == 0: ops1 = list(vm.ops)
        assert vm.ops[-10:] == ops1[-10:] and sorted(vm.ops) == sorted(ops1)
        if g < len(offs) - 1: a("s_branch L_att")
    a("L_att:")
    vm.ops = ops1
    wo_init()
    O = [wo(t) for t in range(36)]
    emit_interval(a, vm, O[0:2], None, None)
    SG, SO, SF, SD = 36, 40, 16, 20
    reduce_setup(a, 0)
    def marks(at):
        if not (opt.fused and opt.mark_at == at and (opt.nmark or opt.smark)): return
        a(f"""
        s_lshl_b32 s52, s{S_G}, 3
        s_add_u32 s52, s52, s{S_HG}
        s_mul_i32 s52, s52, 73728
        """)
        srd(a, 32, S_WS, 52, 73728)
        a(f"""
        v_lshl_add_u32 v20, v0, 4, s59
        v_mov_b32 v32, -1
        v_mov_b32 v33, -1
        v_mov_b32 v34, -1
        v_mov_b32 v35, -1
        s_lshl_b32 s52, s{S_ROT2}, 13
        """)
        for n in range(opt.nmark or opt.smark):
            a("s_sub_u32 s52, s52, 8192\ns_cselect_b32 s52, 65536, s52")
            for m in range(2):
                a(f"buffer_store_dwordx4 v[32:35], v20, s[32:35], s52 offen offset:{m*1024} sc1")
            vm.issue("mark", 2)
    marks(1)
    if opt.fused:
        a(f"buffer_load_dword v29, v72, s[{SD}:{SD+3}], 0 offen sc1")
        vm.issue("dbg")
    vm.wait_all([f"v{n}" for n in range(8)])
    a("s_barrier")
    marks(2)
    emit_interval(a, vm, O[2:4], None, ["o0"])
    marks(3)
    def spin(tag, reg, load, label, nowait=False):
        if not nowait: vm.wait(tag)
        a(f"""
        s_mov_b32 s46, 0x8000
        {label}:
        v_cmp_ne_u32 vcc, 1, v{reg}
        s_sub_u32 s46, s46, 1
        s_cbranch_scc1 {label}_ok
        s_nop 3
        s_cbranch_vccz {label}_ok
        s_sleep {opt.sleep}
        {load}
        s_waitcnt vmcnt(0)
        s_branch {label}
        {label}_ok:
        """)
    def s_issue():
        a("s_load_dwordx8 s[72:79], s[16:17], s52 glc")
        a("s_add_u32 s57, s52, 128")
        a("s_load_dwordx8 s[88:95], s[16:17], s57 glc")
    def s_test():
        a("s_waitcnt lgkmcnt(0)")
        for i in range(4): a(f"s_and_b64 s[{72+2*i}:{73+2*i}], s[{72+2*i}:{73+2*i}], s[{88+2*i}:{89+2*i}]")
        a("""
        s_and_b64 s[72:73], s[72:73], s[74:75]
        s_and_b64 s[76:77], s[76:77], s[78:79]
        s_and_b64 s[72:73], s[72:73], s[76:77]
        s_and_b32 s72, s72, s73
        s_cmp_eq_u32 s72, 1
        """)
    def s_spin(label, entry=None):
        a(f"s_mov_b32 s46, 0x10000\n{label}:")
        s_test()
        a(f"""
        s_cbranch_scc1 {label}_ok
        s_sub_u32 s46, s46, 1
        s_cbranch_scc1 {label}_ok
        s_sleep {opt.sleeps}
        """)
        if entry: a(f"{entry}:")
        s_issue()
        a(f"s_branch {label}\n{label}_ok:")
    def task_setup(t_add):
        a(f"""
        s_add_u32 s52, s51, {t_add}
        s_add_u32 s45, s52, s{S_ROT2}
        s_cmp_ge_u32 s45, 9
        s_cselect_b32 s57, 9, 0
        s_sub_u32 s45, s45, s57
        s_lshl_b32 s52, s52, 8
        """)
        if opt.spoll: a(f"s_lshr_b32 s57, s{S_HG}, 1\ns_lshl_b32 s57, s57, 5\ns_add_u32 s52, s52, s57")
    def poll_ld(last):
        return f"buffer_load_dword v29, v25, s[{SF}:{SF+3}], s52 offen sc1"
    def gather(base, tag, lo=0, hi=8):
        if lo == 0: a("s_lshl_b32 s44, s45, 13")
        for src in range(lo, hi):
            a(f"buffer_load_dwordx4 {vr(base+4*src,4)}, v22, s[{SG}:{SG+3}], s44 offen sc1")
            if src < 7: a("s_add_u32 s44, s44, 73728")
        vm.issue(tag, hi - lo)
    def put(pk, sreg):
        a(f"s_lshl_b32 s57, s{sreg}, 7")
        a("s_add_u32 s57, s57, s15")
        a(f"buffer_store_dwordx2 {vr(pk,2)}, v23, s[{SO}:{SO+3}], s57 offen {opt.out_flags}")
        a(f"buffer_store_dwordx2 {vr(pk+2,2)}, v23, s[{SO}:{SO+3}], s57 offen offset:32 {opt.out_flags}")
        vm.issue("out", 2)
    def total(base, sreg, tag, later, pk=76, now=True):
        for src in range(8):
            a(f"s_waitcnt vmcnt({7-src+later})")
            for e in range(4):
                x = base + 4*src + e
                if src == 0:
                    a(f"v_lshlrev_b32 v{64+2*e}, 16, v{x}")
                    a(f"v_and_b32 v{65+2*e}, 0xffff0000, v{x}")
                else:
                    a(f"v_lshlrev_b32 v74, 16, v{x}")
                    a(f"v_and_b32 v75, 0xffff0000, v{x}")
                    a(f"v_pk_add_f32 {vr(64+2*e,2)}, {vr(64+2*e,2)}, v[74:75]")
        for e in range(4):
            a(cvt(pk+e, 64+2*e))
        if opt.xpose:
            for e in range(4): a(f"ds_bpermute_b32 v{pk+e}, v21, v{pk+e}")
            if now: a("s_waitcnt lgkmcnt(0)")
        if now: put(pk, sreg)
    nxt = 6
    assert opt.lead <= 7
    nbar = 17 if opt.fused and opt.nod17 else 18
    iv = {-1: O[4:6]}
    for i in range(nbar):
        it = []
        if i == 1 and opt.fused:
            it.append(lambda: spin("dbg", 29, f"buffer_load_dword v29, v72, s[{SD}:{SD+3}], 0 offen sc1", "L_dbg"))
        for _ in range(opt.lead - 5 if i == 0 else 2):
            if nxt < 36:
                assert nxt <= 2*i + 9
                it.append(O[nxt]); nxt += 1
        if opt.fused and i == opt.g0_at - 1:
            it.append(lambda: (task_setup(0), s_issue() if opt.spoll else (a(poll_ld(False)), vm.issue("poll0"))))
        if opt.fused and i == opt.g0_at:
            it.append(lambda: (s_spin("L_poll0") if opt.spoll else spin("poll0", 29, poll_ld(False), "L_poll0"), gather(80, "g0", 0, opt.g0_split), a("s_mov_b32 s59, s45")))
        if opt.fused and i == opt.g0_at + 1 and opt.g0_split < 8:
            it.append(lambda: gather(80, "g0", opt.g0_split, 8))
        if opt.fused and i == nbar-1:
            it.append(lambda: task_setup(4))
        iv[i] = it
    for i in range(-1, nbar - 1):
        need = [f"o{min(2*i+4, 35) if i+1 < nbar-1 else 35}"] + (["mark"] if "mark" in vm.ops and i == 1 else [])
        emit_interval(a, vm, iv[i], iv[i+1][0] if iv[i+1] else None, need)
    emit_interval(a, vm, iv[nbar-1], None, None)
    assert nxt == 36
    if opt.fused:
        assert vm.ops[-1] == "g0"
        if not opt.nmark:
            a("s_mov_b32 s58, 0")
            if opt.spoll: s_issue()
            if not opt.spoll: a(f"s_waitcnt vmcnt(0)\nbuffer_load_dword v29, v25, s[{SF}:{SF+3}], s52 offen sc1")
            a("s_branch L_sum\nL_round1:")
            for e in range(4): a(f"v_mov_b32 v{112+e}, v{76+e}")
            stamp(a, 1)
            if opt.d18: a("s_barrier")
            a("s_mov_b32 s58, 1")
            if opt.spoll:
                s_spin("L_again", entry="L_look")
            else:
                a(f"""
                s_mov_b32 s46, 0x8000
                L_again:
                v_cmp_ne_u32 vcc, 1, v29
                s_sub_u32 s46, s46, 1
                s_cbranch_scc1 L_go
                s_nop 3
                s_cbranch_vccz L_go
                s_sleep {opt.sleep8}
                L_look:
                buffer_load_dword v29, v25, s[{SF}:{SF+3}], s52 offen sc1
                s_waitcnt vmcnt(0)
                s_branch L_again
                L_go:
                """)
            if opt.stamps: a("s_waitcnt lgkmcnt(0)")
            stamp(a, 2)
            gather(80, "g1")
            if opt.smark:
                a("s_branch L_sum")
                a("L_samp:")
                for k in range(16): a(f"s_load_dword s{64+k}, s[62:63], {(k >> 1)*73728 + (k & 1)*4096} glc")
                a("s_load_dwordx8 s[80:87], s[16:17], s52 glc\ns_add_u32 s57, s52, 128\ns_load_dwordx8 s[88:95], s[16:17], s57 glc")
                a("s_cmp_eq_u32 s47, 0\ns_cbranch_scc1 L_told\ns_waitcnt vmcnt(1)")
                a(f"buffer_store_dword v253, v252, s[16:19], s60 offen sc1\ns_mov_b32 s47, 0\nL_told:\ns_waitcnt lgkmcnt(0)")
                for k in range(4): a(f"s_and_b64 s[{80+2*k}:{81+2*k}], s[{80+2*k}:{81+2*k}], s[{88+2*k}:{89+2*k}]")
                a("s_and_b64 s[80:81], s[80:81], s[82:83]\ns_and_b64 s[84:85], s[84:85], s[86:87]\ns_and_b64 s[80:81], s[80:81], s[84:85]\ns_and_b32 s80, s80, s81")
                for k in range(1, 16): a(f"s_max_u32 s64, s64, s{64+k}")
                a("""
                s_cmp_eq_u32 s80, 1
                s_cbranch_scc1 L_again_ok
                s_sub_u32 s46, s46, 1
                s_cbranch_scc1 L_again_ok
                s_cmp_eq_u32 s64, -1
                s_cbranch_scc1 L_samp
                """)
                if opt.stamps: stamp(a, 2)
                gather(80, "g2")
                a("s_waitcnt vmcnt(7)\nv_max3_u32 v26, v80, v81, v82\nv_max_u32 v26, v26, v83")
                for src in range(1, 8):
                    a(f"s_waitcnt vmcnt({7-src})")
                    a(f"v_max3_u32 v26, v26, v{80+4*src}, v{81+4*src}")
                    a(f"v_max3_u32 v26, v26, v{82+4*src}, v{83+4*src}")
                a("v_cmp_eq_u32 vcc, -1, v26\ns_nop 4\ns_cbranch_vccnz L_samp")
        else:
            a(f"""
            s_mov_b32 s58, 0
            s_mov_b32 s44, 0
            s_mov_b32 s47, 0
            s_branch L_go
            L_round1:
            """)
            for e in range(4): a(f"v_mov_b32 v{112+e}, v{76+e}")
            stamp(a, 1)
            if opt.d18: a("s_barrier")
            a(f"""
            s_mov_b32 s58, 1
            s_mov_b32 s46, 0x8000
            s_mov_b32 s44, 0xff
            s_cmp_ge_u32 s51, {5 - opt.nmark}
            s_cbranch_scc1 L_go
            L_again:
            v_cmp_ne_u32 vcc, 1, v29
            s_sub_u32 s46, s46, 1
            s_cbranch_scc1 L_give
            s_nop 3
            s_cbranch_vccz L_give
            s_sleep {opt.sleep8}
            buffer_load_dword v29, v25, s[{SF}:{SF+3}], s52 offen sc1
            s_waitcnt vmcnt(0)
            s_branch L_again
            L_give:
            s_mov_b32 s47, 1
            s_mov_b32 s44, 0xff
            L_go:
            """)
            if opt.stamps: a("s_waitcnt lgkmcnt(0)")
            stamp(a, 2)
            a("s_lshl_b32 s57, s45, 13")
            for src in range(8):
                a(f"s_bitcmp0_b32 s44, {src}")
                a(f"s_cbranch_scc1 L_skip{src}")
                a(f"buffer_load_dwordx4 {vr(80+4*src,4)}, v22, s[{SG}:{SG+3}], s57 offen sc1")
                a(f"L_skip{src}:")
                if src < 7: a("s_add_u32 s57, s57, 73728")
            a(f"""
            s_cmp_eq_u32 s47, 1
            s_cbranch_scc1 L_sum
            buffer_load_dword v29, v25, s[{SF}:{SF+3}], s52 offen sc1
            s_mov_b32 s44, 0
            s_waitcnt vmcnt(1)
            """)
            for src in range(8):
                a(f"v_max3_u32 v{112+8+src}, v{80+4*src}, v{81+4*src}, v{82+4*src}")
            for src in range(8):
                a(f"v_max_u32 v{112+8+src}, v{112+8+src}, v{83+4*src}")
            for src in range(8):
                a(f"v_cmp_eq_u32 s[{64+2*src}:{65+2*src}], -1, v{112+8+src}" if not opt.stamps else f"v_cmp_eq_u32 vcc, -1, v{112+8+src}\ns_nop 3\ns_cmp_lg_u64 vcc, 0\ns_cselect_b32 s56, {1 << src}, 0\ns_or_b32 s44, s44, s56")
            if not opt.stamps:
                for src in range(8):
                    a(f"s_cmp_lg_u64 s[{64+2*src}:{65+2*src}], 0")
                    a(f"s_cselect_b32 s56, {1 << src}, 0")
                    a("s_or_b32 s44, s44, s56")
            a(f"""
            s_cmp_eq_u32 s58, 0
            s_cselect_b32 s44, 0, s44
            s_cmp_eq_u32 s44, 0
            s_cbranch_scc1 L_sum
            s_waitcnt vmcnt(0)
            v_cmp_ne_u32 vcc, 1, v29
            s_sub_u32 s46, s46, 1
            s_cbranch_scc1 L_give
            s_nop 3
            s_cbranch_vccz L_give
            s_sleep {opt.sleep9}
            s_branch L_go
            """)
        a("L_sum:")
        total(80, 45, "g1", 0, now=False)
        a("""
        s_waitcnt lgkmcnt(0)
        s_cmp_eq_u32 s58, 0
        s_cbranch_scc1 L_round1
        """)
        put(76, 45)
        a("s_cmp_eq_u32 s58, 2\ns_cbranch_scc1 L_load_end")
        put(112, 59)
        stamp(a, 3)
        a("L_load_end:")
        if opt.stamps and not (opt.ltime or opt.pro):
            a("s_waitcnt vmcnt(0)")
            stamp(a, 0)
            stamp_flush(a, 3)
    if opt.ltime or opt.pro: stamp_flush(a, 8)
    a("s_endpgm")

def mfma(a, d, A, B, C=None):
    c = "0" if C == "zero" else vr(d if C is None else C, 4)
    a(f"v_mfma_f32_16x16x32_bf16 {vr(d,4)}, {vr(A,4)}, {vr(B,4)}, {c}")

def weave(a, mf, fill, per=lambda k: 1, start=0):
    fill = list(fill)
    for k, m in enumerate(mf):
        m()
        if k >= start:
            for _ in range(per(k)):
                if fill:
                    x = fill.pop(0)
                    if x: a(x)
    for f in fill: a(f)

def cvt(d, s0):
    return f"v_cvt_pk_bf16_f32 v{d}, v{s0}, v{s0+1}"

def xreduce(a, op, m, t, mid):
    a("s_nop 1")
    a(f"v_permlane16_swap_b32 v{m[0]}, v{m[1]}")
    a(f"v_permlane16_swap_b32 v{m[2]}, v{m[3]}")
    a("s_nop 0")
    a(f"{op} v{m[0]}, v{m[0]}, v{m[1]}")
    a(f"{op} v{m[2]}, v{m[2]}, v{m[3]}")
    a("s_nop 1")
    a(f"v_permlane32_swap_b32 v{m[0]}, v{m[2]}")
    a("s_nop 1")
    a(f"{op} v{m[0]}, v{m[0]}, v{m[2]}")
    mid(m[0])
    a(f"v_mov_b32 v{m[2]}, v{m[0]}")
    a("s_nop 1")
    a(f"v_permlane32_swap_b32 v{m[0]}, v{m[2]}")
    a("s_nop 1")
    a(f"v_mov_b32 v{m[1]}, v{m[0]}")
    a(f"v_mov_b32 v{m[3]}, v{m[2]}")
    a("s_nop 1")
    a(f"v_permlane16_swap_b32 v{m[0]}, v{m[1]}")
    a(f"v_permlane16_swap_b32 v{m[2]}, v{m[3]}")
    a("s_nop 1")

def sn(i):
    return range(3, -1, -1) if opt.snake and i & 1 else range(4)

def compute(a):
    FB = [128, 176]
    AW, AX, L16, ROW4, C8, AK = 224, 232, 236, 237, 238, 240
    a("L_compute:")
    if opt.prio_comp: a(f"s_setprio {opt.prio_comp}")
    DW = 252
    def wdma(u):
        r = [f"s_add_u32 m0, s58, {(u%4)*16384}"]
        r += [f"buffer_load_dwordx4 v{DW+m}, s[40:43], s57 offen offset:{m*1024} lds" for m in range(4)]
        r += [f"s_add_u32 s57, s57, {16*8192}"]
        if u % 4 == 3: r[-1] += f"\ns_cmp_ge_u32 s57, {576*8192}\ns_cselect_b32 s59, {576*8192}, 0\ns_sub_u32 s57, s57, s59"
        return r
    def wnow(u):
        r = wdma(u); a(r[0]); a("s_nop 0")
        for x in r[1:]: a(x)
    a(f"""
    v_lshrrev_b32 v1, 4, v0
    v_and_b32 v2, 15, v0
    """)
    if opt.selfw:
        assert opt.hstride
        a(f"""
        v_lshlrev_b32 v3, 1, v1
        v_xor_b32 v3, v3, v2
        v_lshlrev_b32 v4, 13, v1
        v_lshl_add_u32 v{DW}, v3, 4, v4
        v_xor_b32 v3, 8, v3
        v_lshl_add_u32 v{DW+1}, v3, 4, v4
        v_add_u32 v{DW+1}, {4*8192-1024}, v{DW+1}
        v_add_u32 v{DW+2}, {2*(4*8192-1024)}, v{DW}
        v_add_u32 v{DW+3}, {2*(4*8192-1024)}, v{DW+1}
        s_lshl_b32 s58, s{S_WAVE}, 12
        s_lshl_b32 s57, s{S_ROT}, 19
        s_lshl_b32 s51, s{S_WAVE}, 3
        s_add_u32 s51, s51, s{S_HG}
        s_lshl_b32 s51, s51, 8
        s_sub_u32 s42, {576*8192}, s51
        s_mov_b32 s43, 0x20000
        s_waitcnt lgkmcnt(0)
        s_add_u32 s40, s{S_WQ}, s51
        s_addc_u32 s41, s{S_WQ+1}, 0
        """)
        wnow(0); wnow(1)
    a(f"""
    v_lshrrev_b32 v{ROW4}, 2, v0
    v_and_b32 v3, 3, v0
    v_lshlrev_b32 v{C8}, 3, v3
    v_lshlrev_b32 v{L16}, 4, v0
    s_lshl_b32 s51, s{S_WAVE}, {12 if opt.selfw else 8}
    v_lshl_add_u32 v4, v{ROW4}, {8 if opt.selfw else 10}, v{C8}
    v_add_u32 v4, s51, v4
    v_and_b32 v5, 7, v{ROW4}
    """)
    for dt in range(8):
        a(f"v_xor_b32 v6, {dt}, v5")
        a(f"v_lshl_add_u32 v{AW+dt}, v6, 5, v4")
    a(f"""
    v_lshrrev_b32 v4, 3, v2
    v_lshlrev_b32 v4, 10, v4
    v_and_b32 v5, 7, v2
    v_lshl_add_u32 v4, v5, 7, v4
    v_and_b32 v5, 1, v1
    v_lshlrev_b32 v7, 3, v5
    v_add_u32 v4, v4, v7
    v_add_u32 v4, {XBASE}, v4
    v_lshrrev_b32 v8, 1, v1
    v_lshrrev_b32 v5, 1, v2
    v_xor_b32 v5, v5, v8
    """)
    for sp in range(4):
        a(f"v_xor_b32 v6, {2*sp}, v5")
        a(f"v_lshl_add_u32 v{AX+sp}, v6, 4, v4")
    a(f"""
    s_lshl_b32 s51, s{S_WAVE}, 14
    s_add_u32 s52, s51, {KBASE}
    v_lshl_add_u32 v4, v2, 8, v7
    v_add_u32 v4, s52, v4
    v_xor_b32 v5, v2, v8
    """)
    for i in range(8):
        a(f"v_xor_b32 v6, {2*i}, v5")
        a(f"v_lshl_add_u32 v{AK+i}, v6, 4, v4")
    a(f"""
    s_add_u32 s52, s51, {VBASE01}
    s_cmp_ge_u32 s{S_WAVE}, 2
    s_cselect_b32 s53, {LDS_BYTES}, 0
    s_sub_u32 s52, s52, s53
    s_lshl_b32 s53, s{S_G}, 3
    s_add_u32 s53, s53, s{S_HG}
    s_mul_i32 s53, s53, 73728
    s_waitcnt lgkmcnt(0)
    """)
    srd(a, 32, S_WS, 53, 73728)
    for i in range(128):
        a(f"v_mov_b32 v{i}, 0")
    def reads(u):
        fb = FB[(u >> 1) & 1] + 2*(u & 1)
        r = [f"ds_read_b64_tr_b16 {vr(fb+4*dt,2)}, v{AW+dt} offset:{(u%4)*16384}" for dt in range(8)]
        x = [f"ds_read_b64 {vr(fb+32+4*qt,2)}, v{AX+u%4} offset:{qt*2048}" for qt in range(4)]
        return x + r
    def half(buf, hf):
        return [lambda dt=dt, qt=qt: mfma(a, 16*dt+4*qt, FB[buf]+4*dt, FB[buf]+32+4*qt) for dt in range(4*hf, 4*hf+4) for qt in sn(dt)]
    def interval(buf, hf, rd, pre=(), post=(), mark=True):
        mf = half(buf, hf)
        if opt.steps and mark: a("s_memrealtime s[96:97]")
        weave(a, mf[:15], list(pre) + rd + list(post), per=lambda k: 2 if k < opt.g1dbl else 1)
        a("s_waitcnt lgkmcnt(0)")
        if opt.steps and mark: a("v_writelane_b32 v250, s96, m0\ns_add_u32 m0, m0, 1")
        mf[15]()
    if opt.selfw:
        def ival(u, dma, wait, post=()):
            buf, hf = ((u >> 1) + 1) & 1, (u + 1) & 1 ^ 0
            buf, hf = {1: (1, 1), 2: (0, 0), 3: (0, 1), 0: (1, 0)}[u % 4]
            mf = half(buf, hf)
            rd = reads(u); d = wdma(u + 3) if dma else []
            a(f"s_waitcnt vmcnt({wait})")
            if opt.steps: a("s_memrealtime s[96:97]")
            second = {int(c, 16): x for c, x in zip(opt.wslots, d)}
            extra = list(post)
            for k in range(15):
                mf[k]()
                if rd: a(rd.pop(0))
                if k < opt.g1dbl and rd: a(rd.pop(0))
                elif k in second: a(second.pop(k))
                elif extra and k > 10: a(extra.pop(0))
            assert not rd and not second and not extra
            a("s_waitcnt lgkmcnt(0)")
            if opt.steps: a("v_writelane_b32 v250, s96, s61\ns_add_u32 s61, s61, 1")
            mf[15]()
        for i in range(FB[1], FB[1] + 48): a(f"v_mov_b32 v{i}, 0")
        a("s_waitcnt vmcnt(4)")
        a("s_barrier")
        stamp(a, 1)
        for r in reads(0): a(r)
        wnow(2); wnow(3)
        a("s_mov_b32 s54, 8")
        if opt.steps: a("s_mov_b32 s61, 0\nv_mov_b32 v250, 0")
        a("s_waitcnt lgkmcnt(0)")
        a("L_g1_loop:")
        ival(1, True, 8)
        ival(2, True, 8)
        ival(3, True, 8, post=["s_sub_u32 s54, s54, 1", f"v_add_u32 v{AX}, 8192, v{AX}", f"v_add_u32 v{AX+1}, 8192, v{AX+1}"])
        a("s_barrier")
        ival(4, True, 8, post=[f"v_add_u32 v{AX+i}, 8192, v{AX+i}" for i in (2, 3)])
        a("s_cmp_lg_u32 s54, 0\ns_cbranch_scc1 L_g1_loop")
        ival(1, False, 8)
        a("s_barrier")
        ival(2, False, 4)
        ival(3, False, 0)
    else:
        a("s_barrier")
        stamp(a, 1)
        for r in reads(0): a(r)
        a("s_mov_b32 s54, 9")
        if opt.steps: a("s_mov_b32 m0, 0\nv_mov_b32 v250, 0")
        a("s_waitcnt lgkmcnt(0)")
        a("s_barrier")
        for r in reads(1): a(r)
        a("s_waitcnt lgkmcnt(0)")
        a("L_g1_loop:")
        a("s_barrier")
        interval(0, 0, reads(2))
        a("s_barrier")
        interval(0, 1, reads(3), post=["s_sub_u32 s54, s54, 1", f"v_add_u32 v{AX}, 8192, v{AX}", f"v_add_u32 v{AX+1}, 8192, v{AX+1}"])
        a("""
        s_cmp_eq_u32 s54, 0
        s_cbranch_scc1 L_g1_last
        s_barrier
        """)
        interval(1, 0, reads(4), post=[f"v_add_u32 v{AX+i}, 8192, v{AX+i}" for i in (2, 3)])
        a("s_barrier")
        interval(1, 1, reads(5))
        a("s_branch L_g1_loop")
    a("L_g1_last:")
    a("s_barrier")
    if opt.steps:
        a(f"""
        s_lshl_b32 s60, s2, 2
        s_add_u32 s60, s60, s{S_WAVE}
        s_lshl_b32 s60, s60, 8
        s_add_u32 s60, s60, {STAMP_OFF + (1 << 20)}
        s_add_u32 s56, s{S_WS}, s60
        s_addc_u32 s57, s{S_WS+1}, 0
        s_mov_b32 s58, 256
        s_mov_b32 s59, 0x20000
        v_lshrrev_b32 v251, 2, v{L16}
        buffer_store_dword v250, v251, s[56:59], 0 offen
        """)
    KF = lambda kt, ds: 128 + 16*ds + 4*kt
    krd = lambda ds: [f"ds_read_b64 {vr(KF(kt,ds)+2*jj,2)}, v{AK+2*ds+jj} offset:{kt*4096}" for kt in range(4) for jj in range(2)]
    weave(a, half(1, 0), krd(0) + krd(1) + krd(2), per=lambda k: 2)
    QF = lambda ds, qt: 64*(ds >> 1) + 16*(ds & 1) + 4*qt
    def qcvt(ds):
        return [cvt(QF(ds, qt)+2*u+e, 32*ds+16*u+4*qt+2*e) for qt in range(4) for u in range(2) for e in range(2)]
    av = [f"v_lshl_add_u32 v248, v{ROW4}, 8, v{C8}", "v_add_u32 v248, s52, v248", f"v_and_b32 v249, 7, v{ROW4}"]
    for dt in range(8):
        av += [f"v_xor_b32 v239, {dt}, v249", f"v_lshl_add_u32 v{AW+dt}, v239, 5, v248"]
    weave(a, half(1, 1), krd(3) + qcvt(0) + qcvt(1)[:8], per=lambda k: 2)
    stamp(a, 2)
    for x in qcvt(1)[8:]: a(x)
    a("s_waitcnt lgkmcnt(8)")
    S = lambda kt, qt: (32 if kt < 2 else 192) + 16*(kt & 1) + 4*qt
    g2 = lambda ds, kt, qt: (lambda: mfma(a, S(kt, qt), KF(kt, ds), QF(ds, qt), "zero" if ds == 0 else None))
    cbits = struct.unpack("<I", struct.pack("<f", math.log2(math.e) / math.sqrt(128.0)))[0]
    vals = [[S(kt, qt) + e for kt in range(4) for e in range(4)] for qt in range(4)]
    M = [240, 242, 244, 246]; SUM = [232, 234, 248, 250]
    def rowmax(qt):
        v = vals[qt]
        return ([f"v_max3_f32 v{M[qt]}, v{v[0]}, v{v[1]}, v{v[2]}"] +
                [f"v_max3_f32 v{M[qt]}, v{M[qt]}, v{v[i]}, v{v[i+1]}" for i in range(3, 15, 2)] +
                [f"v_max_f32 v{M[qt]}, v{M[qt]}, v{v[15]}"])
    weave(a, [g2(ds, kt, qt) for ds in range(2) for kt in range(4) for qt in sn(kt)],
          qcvt(2) + qcvt(3) + av + [f"s_mov_b32 s56, {hex(cbits)}", f"s_mov_b32 s57, {hex(cbits)}", "s_waitcnt lgkmcnt(0)"], per=lambda k: 2)
    for qt in range(4):
        weave(a, [g2(ds, kt, qt) for ds in (2, 3) for kt in range(4)], rowmax(qt-1) if qt else [], per=lambda k: 2, start=4)
    stamp(a, 3)
    a("s_nop 3")
    m3 = rowmax(3)
    a(m3[0]); a(m3[1]); a("s_nop 1")
    for x in m3[2:]: a(x)
    VF = lambda dt, ks: 128 + 16*(dt >> 1) + 8*ks + 4*(dt & 1)
    vrd = [f"ds_read_b64_tr_b16 {vr(VF(dt,ks)+2*j,2)}, v{AW+dt} offset:{ks*8192+j*4096}" for dt in range(8) for ks in range(2) for j in range(2)]
    xreduce(a, "v_max_f32", M, None, lambda u: a(f"v_mul_f32 v{u}, s56, v{u}"))
    for i in range(0, 16, 2):
        for qt in range(4):
            x = vals[qt][i]
            a(f"v_pk_fma_f32 {vr(x,2)}, {vr(x,2)}, s[56:57], {vr(M[qt],2)} op_sel_hi:[1,1,0] neg_lo:[0,0,1] neg_hi:[0,0,1]")
    for i in range(16):
        for qt in range(4):
            a(f"v_exp_f32 v{vals[qt][i]}, v{vals[qt][i]}")
    for qt in range(4):
        a(f"v_pk_add_f32 {vr(SUM[qt],2)}, {vr(vals[qt][0],2)}, {vr(vals[qt][2],2)}")
    for i in range(4, 16, 2):
        for qt in range(4):
            a(f"v_pk_add_f32 {vr(SUM[qt],2)}, {vr(SUM[qt],2)}, {vr(vals[qt][i],2)}")
    for qt in range(4):
        a(f"v_add_f32 v{SUM[qt]}, v{SUM[qt]}, v{SUM[qt]+1}")
    xreduce(a, "v_add_f32", SUM, None, lambda u: a(f"v_rcp_f32 v{u}, v{u}\ns_nop 0"))
    if not opt.latev: a("s_barrier")
    PF = lambda ks, qt: 96 + 16*ks + 4*qt
    for i in range(0, 16, 2):
        for qt in range(4):
            x = vals[qt][i]
            a(f"v_pk_mul_f32 {vr(x,2)}, {vr(x,2)}, {vr(SUM[qt],2)} op_sel_hi:[1,0]")
            if not opt.latev: a(vrd.pop(0))
    for ks in range(2):
        for qt in range(4):
            for u in range(2):
                for e in range(2):
                    a(cvt(PF(ks, qt)+2*u+e, S(2*ks+u, qt)+2*e))
    if opt.latev:
        a("s_barrier")
        for r in vrd[:16]: a(r)
        a("s_waitcnt lgkmcnt(8)")
    else:
        a("s_waitcnt lgkmcnt(0)")
        a("s_nop 0")
    if not opt.fused: stamp(a, 4)
    OT = lambda dt, qt: (16*dt if dt < 6 else 192 + 16*(dt-6)) + 4*qt
    g3 = lambda p: [lambda ks=ks, dt=dt, qt=qt: mfma(a, OT(dt, qt), VF(dt, ks), PF(ks, qt), "zero" if ks == 0 else None)
                    for ks in range(2) for dt in (2*p, 2*p+1) for qt in sn(dt)]
    OW, OR0, OR1, PV, AOB, AO, FV, ONE = 242, 243, 244, 245, 246, 248, 252, 253
    ad = f"""
    s_lshr_b32 s53, s{S_WAVE}, 1
    s_and_b32 s55, s{S_WAVE}, 1
    v_add_u32 v{OW}, s52, v{L16}
    s_lshl_b32 s55, s55, 11
    v_add_u32 v{OR1}, s55, v{L16}
    v_add_u32 v{OR0}, {VBASE01}, v{OR1}
    s_lshl_b32 s55, s{S_WAVE}, 11
    v_add_u32 v{PV}, s55, v{L16}
    s_lshl_b32 s53, s53, 1
    v_lshl_add_u32 v239, v{ROW4}, 7, v{C8}
    v_bfe_u32 v240, v{ROW4}, 1, 2
    v_xor_b32 v240, s53, v240
    v_lshl_add_u32 v{AOB}, v240, 5, v239
    v_xor_b32 v240, 1, v240
    v_lshl_add_u32 v{AOB+1}, v240, 5, v239
    v_add_u32 v{AO}, {WO_RING}, v{AOB}
    v_add_u32 v{AO+1}, {WO_RING}, v{AOB+1}
    s_lshl_b32 s55, s{S_G}, 12
    s_add_u32 s55, s55, {FLAG_OFF}
    s_add_u32 s36, s{S_WS}, s55
    s_addc_u32 s37, s{S_WS+1}, 0
    s_mov_b32 s38, 0
    s_mov_b32 s39, 0x20000
    s_lshl_b32 s55, s{S_WAVE}, 6
    s_lshl_b32 s53, s{S_HG}, 2
    s_add_u32 s55, s55, s53
    v_lshl_add_u32 v{FV}, v{L16}, 1, s55
    v_mov_b32 v{ONE}, 0x10000
    v_cmp_gt_u32 vcc, 32, v{L16}
    s_nop 0
    s_nop 0
    v_cndmask_b32 v{FV}, v{ONE}, v{FV}, vcc
    v_mov_b32 v{ONE}, 1
    """.strip().split("\n")
    OF = lambda k4, qt: 128 + 16*k4 + 4*qt
    def ocvt(k4):
        r = []
        for qt in range(4):
            r += [cvt(OF(k4, qt)+2*u+e, OT(2*k4+u, qt)+2*e) for u in range(2) for e in range(2)]
            r.append(f"ds_write_b128 v{OW}, {vr(OF(k4,qt),4)} offset:{(k4*4+qt)*1024}")
        return r
    if opt.latev:
        weave(a, g3(0), [x for p in zip(vrd[16:24], ad[:8]) for x in p] + ad[8:24], per=lambda k: 2)
        a("s_waitcnt lgkmcnt(8)")
        weave(a, g3(1), vrd[24:32] + ad[24:26] + ocvt(0), per=lambda k: 2)
        a("s_waitcnt lgkmcnt(12)")
        weave(a, g3(2), ad[26:] + [None] + ocvt(1), per=lambda k: 2)
        a("s_waitcnt lgkmcnt(8)")
        weave(a, g3(3), ocvt(2), per=lambda k: 2, start=4)
    else:
        weave(a, g3(0), ad[:30], per=lambda k: 2)
        weave(a, g3(1), ad[30:] + ocvt(0), per=lambda k: 2, start=2)
        weave(a, g3(2), ocvt(1), per=lambda k: 2, start=4)
        weave(a, g3(3), ocvt(2), per=lambda k: 2, start=4)
    a("s_nop 6")
    for x in ocvt(3): a(x)
    a("s_waitcnt lgkmcnt(0)")
    a("s_barrier")
    stamp(a, 5)
    ACCA, ACCB, WB, PKA, PKB = 128, 144, 160, 192, 200
    def wread(k4, ni):
        return [f"ds_read_b64_tr_b16 {vr(WB+8*k4+4*ni+2*j,2)}, v{AO+ni} offset:{k4*4096+j*2048}" for j in range(2)]
    def oread(h):
        return [f"ds_read_b128 {vr(32*h+8*k4+4*qi,4)}, v{OR0 if h < 2 else OR1} offset:{(h&1)*16384+(k4*4+qi)*1024}" for k4 in range(4) for qi in range(2)]
    for h in range(2):
        for r in oread(h): a(r)
    for k4 in range(4):
        for ni in range(2):
            for r in wread(k4, ni)[:1 if (k4, ni) == (3, 1) else 2]: a(r)
    a(f"""
    s_mov_b32 s54, 0
    s_mov_b32 s55, {WO_RING+16384}
    v_add_u32 v{AO}, s55, v{AOB}
    s_lshl_b32 s58, s{S_ROT2}, 13
    s_sub_u32 s61, s58, 8192
    s_cselect_b32 s61, 65536, s61
    s_sub_u32 s62, s61, 8192
    s_cselect_b32 s62, 65536, s62
    s_sub_u32 s63, s62, 8192
    s_cselect_b32 s63, 65536, s63
    s_mov_b32 s60, -256
    """)
    for i in range(4): a(f"v_mov_b32 v{PKA+i}, -1")
    if opt.steps2: a("s_mov_b32 m0, 0\ns_memrealtime s[96:97]")
    a("s_waitcnt lgkmcnt(0)")
    def cvts(pk):
        return [cvt(pk+4*qi+2*ni+e, ACCB+8*qi+4*ni+2*e) for qi in range(2) for ni in range(2) for e in range(2)]
    def store(pk, qi, soff):
        if opt.x_nostore: return "s_nop 0"
        return f"buffer_store_dwordx4 {vr(pk,4)}, v{PV}, s[32:35], s{soff} offen offset:{qi*1024} {opt.part_flags}".rstrip()
    flagst = f"buffer_store_dword v{ONE}, v{FV}, s[36:39], s60 offen sc1" if opt.fused else "s_nop 0"
    def adv(r):
        return [f"s_add_u32 s{r}, s{r}, 16384", f"s_cmp_ge_u32 s{r}, 73728", f"s_cselect_b32 s53, 73728, 0", f"s_sub_u32 s{r}, s{r}, s53"]
    def block(extra, skip=False):
        for kq in range(4):
            if kq % 2 == 0:
                if opt.steps2: a("s_waitcnt lgkmcnt(0)\nv_writelane_b32 v250, s96, m0\ns_add_u32 m0, m0, 1")
                if kq == 2 and skip: a(f"s_cmp_eq_u32 s54, 7\ns_cbranch_scc1 {skip}")
                a("s_barrier")
                if kq == 2 and skip: a(f"{skip}:")
                if opt.steps2: a("s_memrealtime s[96:97]")
            ex = list(extra[kq])
            sl = ["s_add_u32 s55, s55, 16384", f"s_cmp_eq_u32 s55, {LDS_BYTES}", "s_cselect_b32 s55, 0, s55"]
            if len(ex) <= 7:
                ex = ex[:5] + [None]*(5 - len(ex[:5])) + sl + ex[5:]
            else:
                ex = ex[:8] + [sl[0] + "\n" + sl[1], sl[2]] if len(ex) == 8 else None
            for k4 in range(4):
                for ni in range(2):
                    for qj in range(2):
                        qi = qj ^ (ni & opt.snake)
                        first = kq == 0 and k4 == 0
                        last = kq == 3 and k4 == 3
                        t = 8*qi + 4*ni
                        if last: mfma(a, ACCB+t, WB+8*k4+4*ni, 32*kq+8*k4+4*qi, ACCA+t)
                        else: mfma(a, ACCA+t, WB+8*k4+4*ni, 32*kq+8*k4+4*qi, "zero" if first else None)
                        g = 4*k4 + 2*ni + qj
                        if not opt.x_noread:
                            if qj == 1: a(wread(k4, ni)[0])
                            else:
                                pk4, pni = (k4, 0) if ni == 1 else ((k4 - 1) % 4, 1)
                                a(wread(pk4, pni)[1])
                        if g % 4 == 3: a("s_waitcnt lgkmcnt(11)")
                        elif g == 0: a(f"v_add_u32 v{AO+1}, s55, v{AOB+1}")
                        elif g == 14: a(f"v_add_u32 v{AO}, s55, v{AOB}")
                        elif ex:
                            x = ex.pop(0)
                            if x: a(x)
            assert not ex, (kq, ex)
    o2, o3 = oread(2), oread(3)
    mark = lambda n, r: [None]*5 + [store(PKA, 0, r), store(PKA, 1, r)] if opt.fused and opt.nmark >= n and opt.mark_at == 0 else []
    block([[x + "\n" + y for x, y in zip(o2, o3)], mark(1, 61), mark(2, 62), mark(3, 63)])
    sites = opt.st_pos.split(",")
    for w in range(1, len(sites)):
        a(f"s_and_b32 s53, s{S_WAVE}, {len(sites)-1}" if w == 1 else "")
        a(f"s_cmp_eq_u32 s53, {w}\ns_cbranch_scc1 L_p2_loop{w}")
    for w, site in enumerate(sites):
        a(f"L_p2_loop{w}:")
        ex = [cvts(PKA), [None]*7, [None]*7, [None]*7]
        p = [int(c) for c in site]
        ex[p[0]][p[1]] = store(PKA, 0, 58)
        ex[p[2]][p[3]] = store(PKA+4, 1, 58) + "\ns_waitcnt vmcnt(2)\n" + flagst
        assert p[2] < 3 or p[3] < 2
        ex[3][2:7] = ["s_add_u32 s58, s58, 8192\ns_add_u32 s60, s60, 256", "s_cmp_eq_u32 s58, 73728", "s_cselect_b32 s58, 0, s58", "s_mov_b32 s38, 4096", "s_add_u32 s54, s54, 1"]
        block(ex, skip=f"L_nobar{w}" if opt.fused and opt.nod17 else None)
        a(f"""
        s_cmp_lg_u32 s54, 8
        s_cbranch_scc1 L_p2_loop{w}
        """)
        if w < len(sites) - 1: a("s_branch L_p2_done")
    a("""
    L_p2_done:
    s_nop 7
    """)
    if opt.steps2:
        a(f"""
        s_waitcnt lgkmcnt(0)
        v_writelane_b32 v250, s96, m0
        s_lshl_b32 s53, s2, 2
        s_add_u32 s53, s53, s{S_WAVE}
        s_lshl_b32 s53, s53, 8
        s_add_u32 s53, s53, {STAMP_OFF + (1 << 20)}
        s_add_u32 s40, s{S_WS}, s53
        s_addc_u32 s41, s{S_WS+1}, 0
        s_mov_b32 s42, 256
        s_mov_b32 s43, 0x20000
        v_lshrrev_b32 v251, 2, v{L16}
        buffer_store_dword v250, v251, s[40:43], 0 offen
        """)
    stamp(a, 6)
    cv = cvts(PKA)
    for x in cv[:4] + [store(PKA, 0, 61)] + cv[4:] + [store(PKA+4, 1, 61)]: a(x)
    if opt.fused:
        if opt.d18: a("s_barrier")
        a("s_waitcnt vmcnt(2)\n" + flagst + "\ns_add_u32 s60, s60, 256")
        a(f"""
        s_mov_b32 s16, s36
        s_mov_b32 s17, s37
        s_mov_b32 s18, 4096
        s_mov_b32 s19, 0x20000
        s_cmp_eq_u32 s{S_WAVE}, 0
        s_cbranch_scc1 L_last
        s_waitcnt vmcnt(1)
        """)
        a(flagst)
        if opt.stamps:
            a("s_waitcnt lgkmcnt(0)"); stamp(a, 4)
            a("s_waitcnt vmcnt(0)"); stamp(a, 7); stamp_flush(a, 8)
        a("s_endpgm")
        a("L_last:")
        a(f"v_lshrrev_b32 v30, 4, v{L16}")
        reduce_setup(a, 30)
        a(f"""
        s_lshr_b32 s45, s61, 13
        s_lshr_b32 s52, s{S_HG}, 1
        s_lshl_b32 s52, s52, {5 if opt.spoll else 31}
        s_and_b32 s52, s52, 0xff
        s_add_u32 s52, s52, 2048
        """)
        if opt.smark:
            if opt.stamps: a(f"s_mov_b32 s{S_WAVE}, 8")
            a(f"""
            s_lshl_b32 s56, s{S_HG}, 7
            s_and_b32 s57, s56, 0x80
            s_lshr_b32 s56, s{S_HG}, 1
            s_lshl_b32 s56, s56, 10
            s_add_u32 s56, s56, s57
            s_add_u32 s56, s56, s61
            s_add_u32 s62, s36, s56
            s_addc_u32 s63, s37, 0
            s_mov_b32 s46, 0x10000
            s_mov_b32 s47, 1
            s_mov_b32 s58, 2
            s_branch L_samp
            """)
        else:
            a("s_waitcnt vmcnt(1)")
            a(flagst.replace("s[36:39]", "s[16:19]"))
            if opt.stamps: a(f"s_mov_b32 s{S_WAVE}, 8"); stamp(a, 1)
            a("s_mov_b32 s46, 0x10000\ns_mov_b32 s47, 0\ns_mov_b32 s44, 0xff\ns_mov_b32 s58, 2\n" + ("s_branch L_go" if opt.nmark else "s_branch L_look"))
    if opt.stamps and not opt.fused:
        a("s_waitcnt vmcnt(0)")
        stamp(a, 7)
        stamp_flush(a, 8)
    a("L_end:")
    a("s_endpgm")

def reduce_kernel(a):
    a(f"""
    s_cmp_ge_u32 s2, 256
    s_cbranch_scc1 L_rend
    s_load_dwordx2 s[4:5], s[0:1], 80
    s_load_dwordx2 s[6:7], s[0:1], 96
    v_lshrrev_b32 v1, 6, v0
    v_and_b32 v0, 63, v0
    v_readfirstlane_b32 s3, v1
    s_lshr_b32 s8, s2, 3
    s_and_b32 s9, s2, 7
    v_lshrrev_b32 v1, 3, v0
    v_and_b32 v2, 7, v0
    v_lshrrev_b32 v3, 2, v1
    v_and_b32 v5, 3, v1
    s_lshr_b32 s10, s9, 1
    s_and_b32 s11, s9, 1
    s_lshl_b32 s10, s10, 10
    s_lshl_b32 s11, s11, 7
    s_add_u32 s10, s10, s11
    s_lshl_b32 s11, s3, 13
    s_add_u32 s10, s10, s11
    v_lshlrev_b32 v6, 6, v3
    v_lshlrev_b32 v3, 12, v3
    v_lshl_add_u32 v3, v5, 8, v3
    v_lshl_add_u32 v3, v2, 4, v3
    v_add_u32 v3, s10, v3
    v_lshl_add_u32 v6, v5, 3, v6
    s_mul_i32 s12, s8, {8*73728}
    s_and_b32 s13, s8, 15
    s_lshr_b32 s14, s8, 4
    s_lshl_b32 s13, s13, 6
    s_lshl_b32 s15, s9, 3
    s_add_u32 s13, s13, s15
    s_mul_i32 s13, s13, 2304
    s_mul_i32 s14, s14, 1152
    s_add_u32 s13, s13, s14
    s_lshl_b32 s14, s3, 7
    s_add_u32 s13, s13, s14
    v_mul_u32_u24 v4, 2304, v2
    v_add_u32 v4, v6, v4
    s_waitcnt lgkmcnt(0)
    s_add_u32 s16, s6, s12
    s_addc_u32 s17, s7, 0
    s_mov_b32 s18, {8*73728}
    s_mov_b32 s19, 0x20000
    s_mov_b32 s20, s4
    s_mov_b32 s21, s5
    s_mov_b32 s22, {16*64*1152*2}
    s_mov_b32 s23, 0x20000
    """)
    for s in range(8):
        a(f"s_mov_b32 s24, {s*73728}")
        a(f"buffer_load_dwordx4 {vr(8+4*s,4)}, v3, s[16:19], s24 offen")
    for s in range(8):
        a(f"s_waitcnt vmcnt({7-s})")
        for e in range(4):
            x = 8+4*s+e
            if s == 0:
                a(f"v_lshlrev_b32 v{40+2*e}, 16, v{x}")
                a(f"v_and_b32 v{41+2*e}, 0xffff0000, v{x}")
            else:
                a(f"v_lshlrev_b32 v48, 16, v{x}")
                a(f"v_and_b32 v49, 0xffff0000, v{x}")
                a(f"v_pk_add_f32 {vr(40+2*e,2)}, {vr(40+2*e,2)}, v[48:49]")
    for e in range(4):
        a(f"v_cvt_pk_bf16_f32 v{8+e}, v{40+2*e}, v{41+2*e}")
    a("buffer_store_dwordx2 v[8:9], v4, s[20:23], s13 offen")
    a("buffer_store_dwordx2 v[10:11], v4, s[20:23], s13 offen offset:32")
    if opt.stamps:
        a(f"""
        s_waitcnt vmcnt(0)
        s_memrealtime s[24:25]
        s_cmp_ge_u32 s3, 4
        s_cbranch_scc1 L_rend
        s_lshl_b32 s26, s2, 4
        s_add_u32 s26, s26, s3
        s_lshl_b32 s26, s26, 7
        s_add_u32 s26, s26, {STAMP_OFF}
        s_add_u32 s16, s6, s26
        s_addc_u32 s17, s7, 0
        s_mov_b32 s18, 128
        s_waitcnt lgkmcnt(0)
        v_mov_b32 v8, s24
        v_mov_b32 v9, s25
        v_mov_b32 v10, 0
        buffer_store_dwordx2 v[8:9], v10, s[16:19], 0 offen offset:120
        """)
    a("L_rend:")
    a("s_endpgm")

def diag_kernel(a):
    a(f"""
    s_cmp_ge_u32 s2, 1
    s_cbranch_scc1 L_dend
    s_load_dwordx2 s[6:7], s[0:1], 96
    v_lshrrev_b32 v1, 2, v0
    v_and_b32 v2, 3, v0
    v_lshlrev_b32 v1, 11, v1
    v_add_u32 v4, 5, v2
    v_lshl_add_u32 v4, v4, 7, v1
    v_max_u32 v2, 1, v2
    v_lshl_add_u32 v1, v2, 7, v1
    s_waitcnt lgkmcnt(0)
    s_add_u32 s8, s6, {STAMP_OFF}
    s_addc_u32 s9, s7, 0
    s_mov_b32 s10, {512*1024}
    s_mov_b32 s11, 0x20000
    """)
    for i in range(16):
        a(f"s_mov_b32 s12, {i*32768}")
        a(f"buffer_load_dword v{8+i}, v1, s[8:11], s12 offen")
        a(f"buffer_load_dword v{24+i}, v1, s[8:11], s12 offen offset:{8*opt.diag}" if opt.diag < 20 else f"buffer_load_dword v{24+i}, v4, s[8:11], s12 offen")
    a("s_waitcnt vmcnt(0)")
    a("v_readfirstlane_b32 s13, v8")
    a("s_sub_u32 s13, s13, 100000")
    a("s_nop 1")
    for i in range(32):
        a(f"v_subrev_u32 v{8+i}, s13, v{8+i}")
    for i in range(1, 16):
        a(f"v_min_u32 v8, v8, v{8+i}")
        a(f"v_max_u32 v24, v24, v{24+i}")
    a("s_mov_b32 s14, -1\ns_mov_b32 s15, 0\ns_nop 1")
    for l in range(64):
        a(f"v_readlane_b32 s16, v8, {l}")
        a(f"v_readlane_b32 s17, v24, {l}")
        a("s_nop 3")
        a("s_min_u32 s14, s14, s16")
        a("s_max_u32 s15, s15, s17")
    a("""
    s_sub_u32 s15, s15, s14
    s_min_u32 s15, s15, 20000
    s_mul_i32 s15, s15, 10
    s_memrealtime s[18:19]
    s_waitcnt lgkmcnt(0)
    L_dspin:
    s_memrealtime s[20:21]
    s_waitcnt lgkmcnt(0)
    s_sub_u32 s20, s20, s18
    s_cmp_lt_u32 s20, s15
    s_cbranch_scc1 L_dspin
    L_dend:
    s_endpgm
    """)

def kd(name, vgpr, sgpr):
    acc = (vgpr + 3)//4*4
    return f""".section .rodata,"a"
.p2align 6
.amdhsa_kernel {name}
  .amdhsa_next_free_vgpr {vgpr}
  .amdhsa_next_free_sgpr {sgpr}
  .amdhsa_accum_offset {acc}
  .amdhsa_group_segment_fixed_size 0
  .amdhsa_kernarg_size 104
  .amdhsa_user_sgpr_count 2
  .amdhsa_user_sgpr_kernarg_segment_ptr 1
  .amdhsa_system_sgpr_workgroup_id_x 1
.end_amdhsa_kernel
"""

def build():
    main = NAME + "_kernel"
    red = "mha_reduce_kernel"
    out = []
    single = opt.fused and opt.diag < 0 and not opt.extra_launch
    if single:
        out.append(f"; @launch grid=(256,1,1) block=(512,1,1) lds={LDS_BYTES}")
    else:
        out.append(f"; @launch kernel={main} grid=(256,1,1) block=(512,1,1) lds={LDS_BYTES}")
    if not opt.fused:
        out.append(f"; @launch kernel={red} grid=(256,1,1) block=(576,1,1) lds=0")
    if opt.diag >= 0:
        out.append(f"; @launch kernel=diag_kernel grid=(1,1,1) block=(64,1,1) lds=0")
    for _ in range(opt.extra_launch):
        out.append(f"; @launch kernel=nop_kernel grid=(1,1,1) block=(64,1,1) lds=0")
    out.append('.amdgcn_target "amdgcn-amd-amdhsa--gfx950"')
    out.append(".text")
    a = Asm()
    prologue(a); loader(a); compute(a)
    out.append(f".globl {main}\n.p2align 8\n.type {main},@function\n{main}:")
    out.append(a.text())
    if not opt.fused:
        a = Asm(); reduce_kernel(a)
        out.append(f".globl {red}\n.p2align 8\n.type {red},@function\n{red}:")
        out.append(a.text())
    if opt.diag >= 0:
        a = Asm(); diag_kernel(a)
        out.append(".globl diag_kernel\n.p2align 8\n.type diag_kernel,@function\ndiag_kernel:\n" + a.text())
        out.append(kd("diag_kernel", 48, 32))
        out.append(".text")
    if opt.extra_launch:
        out.append(".globl nop_kernel\n.p2align 8\n.type nop_kernel,@function\nnop_kernel:\n    s_endpgm\n")
        out.append(kd("nop_kernel", 8, 16))
        out.append(".text")
    out.append(kd(main, 256, 102))
    if not opt.fused: out.append(kd(red, 56, 32))
    return "\n".join(out)

if __name__ == "__main__":
    path = sys.argv[1]
    for kv in sys.argv[2:]:
        k, v = kv.split("=", 1)
        cur = getattr(opt, k)
        setattr(opt, k, type(cur)(int(v)) if isinstance(cur, (bool, int)) else v)
    open(path, "w").write(build())
```

```python
import sys, math, struct, re

NAME = "concat_heads__mha_block_cached__gqa_block_cached__near_ridge"

class Opt:
    kv_nt = True
    w_nt = False
    x_nt = False
    part_flags = "sc1"
    stamps = False
    pf_v = True
    pf_wo = True
    prio_load = 0
    extra_launch = 0
    ltime = 0
    pro = 0
    steps = 0
    x_nodma = 0
    x_noread = 0
    x_nowait = 0
    x_nochain = 0
    x_nostore = 0
    x_dbuf = 0
    st_pos = "1516"
    nmark = 0
    d18 = 0
    pretouch = 0
    latev = 1
    spoll = 1
    sleeps = 1
    stv = 0
    denorm = 3
    npre = 2
    kfree = 0
    q1 = ""
    smark = 0
    mark_at = 2
    snake = 1
    codepf = 1
    pair = 0
    tight = 0
    selfw = 0
    sched2 = "-1:x1|-1+:x2,x3,k0|7+:x4,x5,k1,k2,k3|15+:x6,x7,k4,k5,k6|23+:x8,k7,v0|27:v1|31:v2|33:v4,v5,v6,v7|35:v3"
    wslots = "23579b"
    stag2 = "0,4"
    g1dbl = 0
    hstride = 1
    defer = 1
    xpose = 1
    steps2 = 0
    flag_pos = 1
    g0_at = 14
    g0_split = 4
    sleep = 8
    sleep8 = 10
    sleep9 = 6
    nod17 = 0
    st_late = 0
    out_flags = ""
    x_nodsw = 0
    lead = 7
    pub_late = 0
    x_nopub = 0
    fused = 1
    prio_comp = 0
    sched = "0:x1|2:d0|1+:x2,x3,k0|7+:x4,x5,k1,k2,k3|15+:x6,x7,k4,k5,k6|23+:x8,k7,v0|31:v1,v2|32:v4|33:v5|35:v6,v7,v3"
    stagger = "0"
    p2quota = "222222222222222"
    diag = -1
opt = Opt()

class Asm:
    def __init__(self):
        self.l = []
    def __call__(self, s):
        for x in s.strip("\n").split("\n"):
            if not x.strip(): continue
            self.l.append("    " + x.strip() if not x.strip().endswith(":") else x.strip())
    def c(self, s):
        self.l.append("    ; " + s)
    def text(self):
        return "\n".join(self.l) + "\n"

def vr(a, n=1):
    return f"v{a}" if n == 1 else f"v[{a}:{a+n-1}]"
def sr(a, n=1):
    return f"s{a}" if n == 1 else f"s[{a}:{a+n-1}]"

KBASE = 65536
XBASE = 90112
VBASE01 = 131072
WO_RING = 32768
LDS_BYTES = 163840

S_WAVE, S_BR, S_B, S_HG, S_ROT, S_G, S_ROT2 = 3, 30, 31, 48, 49, 50, 14
S_X, S_K, S_V, S_WQ, S_WO, S_OUT, S_DBG, S_WS = 4, 6, 8, 10, 12, 24, 26, 28

FLAG_OFF = 24 << 20
STAGE = 0
STAMP_OFF = 32 << 20

def stamp(a, idx):
    if opt.stamps:
        a(f"s_memrealtime s[{64+2*idx}:{65+2*idx}]")
        a(f"s_memtime s[{80+2*idx}:{81+2*idx}]")

def stamp_flush(a, n):
    if not opt.stamps:
        return
    a(f"""
    s_waitcnt lgkmcnt(0)
    s_lshl_b32 s60, s2, 4
    s_add_u32 s60, s60, s{S_WAVE}
    s_lshl_b32 s60, s60, 7
    s_add_u32 s60, s60, {STAMP_OFF}
    s_add_u32 s56, s{S_WS}, s60
    s_addc_u32 s57, s{S_WS+1}, 0
    s_mov_b32 s58, 128
    s_mov_b32 s59, 0x20000
    v_mov_b32 v250, 0
    """)
    for i in range(2*n):
        a(f"v_mov_b32 v252, s{64+2*i}")
        a(f"v_mov_b32 v253, s{65+2*i}")
        a(f"buffer_store_dwordx2 v[252:253], v250, s[56:59], 0 offen offset:{8*i}")
        a("s_waitcnt vmcnt(0)")

def tbegin(a):
    if opt.stamps and opt.ltime:
        for i in range(16): a(f"s_mov_b64 s[{64+2*i}:{65+2*i}], 0")
        a("s_memtime s[96:97]\ns_waitcnt lgkmcnt(0)")
def tacc(a, idx):
    if opt.stamps and opt.ltime:
        a(f"""
        s_memtime s[98:99]
        s_waitcnt lgkmcnt(0)
        s_sub_u32 s97, s98, s96
        s_add_u32 s{64+2*idx}, s{64+2*idx}, s97
        s_mov_b32 s96, s98
        """)

def srd(a, d, base, off_expr_sreg, size):
    a(f"s_add_u32 s{d}, s{base}, s{off_expr_sreg}")
    a(f"s_addc_u32 s{d+1}, s{base+1}, 0")
    a(f"s_mov_b32 s{d+2}, {size}")
    a(f"s_mov_b32 s{d+3}, 0x20000")

class VM:
    def __init__(self, a):
        self.a = a; self.ops = []
    def issue(self, tag, n=1):
        self.ops += [tag] * n
    def wait(self, tag):
        last = max(i for i, t in enumerate(self.ops) if t == tag)
        n = len(self.ops) - 1 - last
        assert n <= 63, n
        self.a(f"s_waitcnt vmcnt({n})")
    def wait_all(self, tags):
        last = max(i for i, t in enumerate(self.ops) if t in tags)
        assert all(t in self.ops for t in tags), tags
        self.wait(self.ops[last])

class Grp:
    def __init__(self, tag, m0, pre, so, dm, post):
        self.tag, self.m0, self.pre, self.so, self.dm, self.post, self.ready = tag, m0, pre, so, dm, post, False

def emit_interval(a, vm, items, nxt_first, need):
    waited = need is None
    for k, g in enumerate(items):
        if not isinstance(g, Grp):
            g(); continue
        last = k == len(items) - 1
        if not g.ready:
            a(g.m0)
            for x in g.pre or ["s_nop 0"]: a(x)
        for d in g.dm[:-1]: a(d.format(so=g.so))
        vm.issue(g.tag, len(g.dm) - 1)
        nx = nxt_first if last else items[k+1]
        nx = nx if isinstance(nx, Grp) and opt.tight else None
        hoist = g.post + (nx.pre if nx else [])
        so = g.so
        if opt.tight:
            if any(re.match(rf"s_\w+ s{g.so},", x) for x in hoist):
                a(f"s_mov_b32 s94, s{g.so}"); so = 94
            for x in hoist: a(x)
            if last and not waited and g.tag not in need:
                vm.wait_all(need); waited = True
        a(g.dm[-1].format(so=so))
        vm.issue(g.tag, 1)
        if not opt.tight:
            for x in hoist: a(x)
        if nx:
            a(nx.m0); nx.ready = True
            if not last: a("s_nop 0")
    if need is not None:
        if not waited: vm.wait_all(need)
        a("s_barrier")

def prologue(a):
    a(f"""
    s_cmp_ge_u32 s2, 256
    s_cbranch_scc1 L_end
    {"s_memrealtime s[92:93]" if opt.pro else ""}
    s_bfe_u32 s{S_BR}, s2, 0x10002
    s_mul_i32 s52, s{S_BR}, 40
    s_load_dwordx8 s[4:11], s[0:1], s52
    s_add_u32 s53, s52, 32
    s_load_dwordx2 s[12:13], s[0:1], s53
    s_load_dwordx4 s[24:27], s[0:1], 80
    s_load_dwordx2 s[28:29], s[0:1], 96
    v_lshrrev_b32 v1, 6, v0
    v_and_b32 v0, 63, v0
    v_readfirstlane_b32 s{S_WAVE}, v1
    s_and_b32 s51, s2, 3
    s_lshr_b32 s{S_B}, s2, 4
    s_bfe_u32 s54, s2, 0x10003
    {"s_lshl_b32 s51, s51, 1" if not opt.pair else "s_lshl_b32 s55, s54, 2"}
    s_add_u32 s{S_HG}, s51, {"s54" if not opt.pair else "s55"}
    s_mul_i32 s55, s{S_B}, 9
    s_lshr_b32 s{S_ROT2}, s55, 4
    s_lshl_b32 s54, s54, 2
    s_add_u32 s{S_ROT}, s{S_ROT2}, s54
    s_cmp_ge_u32 s{S_ROT}, 9
    s_cselect_b32 s54, 9, 0
    s_sub_u32 s{S_ROT}, s{S_ROT}, s54
    s_lshl_b32 s{S_G}, s{S_BR}, 4
    s_add_u32 s{S_G}, s{S_G}, s{S_B}
    """)
    stamp(a, 0)
    a(f"""
    s_cmp_lt_u32 s{S_WAVE}, 4
    s_cbranch_scc1 L_compute
    """)

def dma4(a, vbase, srdr, soff, flags, same_v=False):
    for m in range(4):
        v = vbase if same_v else vbase + m
        a(f"buffer_load_dwordx4 v{v}, s[{srdr}:{srdr+3}], s{soff} offen offset:{m*1024}{flags} lds")

def reduce_setup(a, lane):
    SG, SO = 36, 40
    a(f"s_mul_i32 s52, s{S_G}, {8*73728}")
    srd(a, SG, S_WS, 52, 8*73728)
    a(f"""
    s_mov_b32 s{SO}, s{S_OUT}
    s_mov_b32 s{SO+1}, s{S_OUT+1}
    s_mov_b32 s{SO+2}, {16*64*1152*2}
    s_mov_b32 s{SO+3}, 0x20000
    v_lshrrev_b32 v26, 5, v{lane}
    v_bfe_u32 v27, v{lane}, 3, 2
    v_and_b32 v28, 7, v{lane}
    s_lshr_b32 s52, s{S_HG}, 1
    s_lshl_b32 s56, s52, 10
    s_and_b32 s57, s{S_HG}, 1
    s_lshl_b32 s57, s57, 7
    s_add_u32 s56, s56, s57
    v_lshlrev_b32 v22, 12, v26
    v_lshl_add_u32 v22, v27, 8, v22
    v_lshl_add_u32 v22, v28, 4, v22
    v_add_u32 v22, s56, v22
    {"v_lshrrev_b32 v21, 3, v%d" % lane if opt.xpose else ""}
    v_mul_u32_u24 v23, 2304, {"v21" if opt.xpose else "v28"}
    {"v_lshl_add_u32 v21, v28, 3, v21" if opt.xpose else ""}
    {"v_lshlrev_b32 v21, 2, v21" if opt.xpose else ""}
    {"v_bfe_u32 v26, v%d, 2, 1" % lane if opt.xpose else ""}
    {"v_and_b32 v27, 3, v%d" % lane if opt.xpose else ""}
    v_lshl_add_u32 v23, v26, 6, v23
    v_lshl_add_u32 v23, v27, 3, v23
    s_lshl_b32 s52, s52, 5
    v_lshl_add_u32 v24, v28, 2, s52
    v_bfe_u32 v29, v{lane}, 3, 1
    v_lshl_add_u32 v25, v29, 7, v24
    s_lshl_b32 s52, s{S_B}, 6
    s_lshl_b32 s56, s{S_HG}, 3
    s_add_u32 s52, s52, s56
    s_mul_i32 s52, s52, 2304
    s_mul_i32 s56, s{S_BR}, 1152
    s_add_u32 s15, s52, s56
    """)

def loader(a):
    vm = VM(a)
    flw = " nt" if opt.w_nt else ""
    flx = " nt" if opt.x_nt else ""
    flkv = " nt" if opt.kv_nt else ""
    SX, SWQ, SK, SV, SWO = 32, 36, 40, 44, 60
    a.c("---------------- loader waves ----------------")
    a("L_load:")
    if opt.prio_load: a(f"s_setprio {opt.prio_load}")
    a(f"""
    s_sub_u32 s51, s{S_WAVE}, 4
    v_lshrrev_b32 v12, 3, v0
    v_mul_u32_u24 v12, 1152, v12
    v_lshrrev_b32 v13, 4, v0
    v_and_b32 v14, 7, v0
    v_xor_b32 v14, v14, v13
    v_lshl_add_u32 v5, v14, 4, v12
    v_xor_b32 v14, 4, v14
    v_lshl_add_u32 v6, v14, 4, v12
    v_add_u32 v6, 8192, v6
    s_lshl_b32 s53, s51, 12
    s_lshl_b32 s59, s51, 11
    s_mul_i32 s54, s51, {16*1152}
    s_lshl_b32 s55, s{S_ROT}, 7
    s_add_u32 s54, s54, s55
    s_mov_b32 s55, s{S_ROT}
    s_lshl_b32 s57, s{S_ROT}, 19
    s_lshl_b32 s56, s51, 15
    s_add_u32 s57, s57, s56
    s_and_b32 s56, s51, 1
    s_lshl_b32 s56, s56, 3
    v_xor_b32 v10, s56, v0
    """)
    if opt.hstride: a(f"v_mul_u32_u24 v11, {2048-256}, v13")
    for m in range(4):
        a(f"v_xor_b32 v{1+m}, {2*m}, v10")
        a(f"v_lshl_add_u32 v{1+m}, v{1+m}, 4, v11" if opt.hstride else f"v_lshlrev_b32 v{1+m}, 4, v{1+m}")
        if m: a(f"v_add_u32 v{1+m}, {m*(8192-1024)}, v{1+m}")
    a(f"""
    s_mul_i32 s44, s{S_B}, 73728
    s_lshl_b32 s45, s{S_HG}, {8 if opt.hstride else 10}
    s_sub_u32 s{SWQ+2}, {576*8192}, s45
    s_mov_b32 s{SWQ+3}, 0x20000
    s_mov_b32 s{SX+2}, 73728
    s_mov_b32 s{SX+3}, 0x20000
    s_waitcnt lgkmcnt(0)
    {"s_memrealtime s[66:67]" if opt.pro else ""}
    s_add_u32 s{SX}, s{S_X}, s44
    s_addc_u32 s{SX+1}, s{S_X+1}, 0
    s_add_u32 s{SWQ}, s{S_WQ}, s45
    s_addc_u32 s{SWQ+1}, s{S_WQ+1}, 0
    """)
    def xblk(i):
        return Grp(f"x{i}", f"s_add_u32 m0, s59, {XBASE + i*8192}", [], 54,
                   [f"buffer_load_dwordx4 v{5+m}, s[{SX}:{SX+3}], s{{so}} offen offset:{m*1024}{flx} lds" for m in range(2)],
                   ["s_add_u32 s55, s55, 1", "s_add_u32 s54, s54, 128", "s_cmp_eq_u32 s55, 9", "s_cselect_b32 s55, 0, s55",
                    "s_cselect_b32 s58, 1152, 0", "s_sub_u32 s54, s54, s58"])
    if opt.pro: a("s_memrealtime s[68:69]")
    def wq(u):
        post = [f"s_add_u32 s57, s57, {16*8192}"]
        if u % 4 == 3: post += [f"s_cmp_ge_u32 s57, {576*8192}", f"s_cselect_b32 s58, {576*8192}, 0", "s_sub_u32 s57, s57, s58"]
        return Grp(f"w{u}", f"s_add_u32 m0, s53, {(u%4)*16384}", [], 57,
                   [f"buffer_load_dwordx4 v{1+m}, s[{SWQ}:{SWQ+3}], s{{so}} offen offset:{m*1024}{flw} lds" for m in range(4)], post)
    emit_interval(a, vm, [xblk(0)] + ([] if opt.selfw else [wq(0), wq(1)]), None, None)
    if opt.codepf:
        a(f"""
        s_getpc_b64 s[62:63]
        L_pc:
        s_lshr_b32 s52, s2, 3
        s_lshl_b32 s52, s52, 2
        s_add_u32 s52, s52, s51
        s_mul_i32 s52, s52, 192
        s_min_u32 s52, s52, L_end - L_att - 192
        s_add_u32 s52, s52, L_att - L_pc
        s_add_u32 s62, s62, s52
        s_addc_u32 s63, s63, 0
        s_load_dword s100, s[62:63], 0
        s_load_dword s101, s[62:63], 64
        s_load_dword s100, s[62:63], 128
        """)
    a(f"""
    s_lshl_b32 s52, s{S_B}, 5
    s_lshl_b32 s56, s{S_HG}, {0 if opt.hstride else 2}
    s_add_u32 s52, s52, s56
    s_lshl_b32 s52, s52, 14
    """)
    kvoff = lambda n: (n >> 1)*8*16384 + (n & 1)*8192 if opt.hstride else n*8192
    srd(a, SK, S_K, 52, 25*16384 if opt.hstride else 65536)
    srd(a, SV, S_V, 52, 25*16384 if opt.hstride else 65536)
    a(f"""
    s_and_b32 s52, s51, 1
    s_lshl_b32 s52, s52, 3
    v_lshlrev_b32 v12, 8, v13
    v_and_b32 v14, 15, v0
    v_xor_b32 v15, v14, v13
    v_xor_b32 v15, s52, v15
    v_lshl_add_u32 v7, v15, 4, v12
    v_xor_b32 v15, 4, v15
    v_lshl_add_u32 v8, v15, 4, v12
    v_lshlrev_b32 v16, 1, v13
    v_xor_b32 v16, v16, v14
    v_lshl_add_u32 v9, v16, 4, v12
    v_xor_b32 v16, 8, v16
    v_lshl_add_u32 v10, v16, 4, v12
    s_mul_i32 s52, s{S_HG}, {(128 if opt.hstride else 512)*1152}
    """)
    KQ = (8 if opt.hstride else 1)*128*1152
    srd(a, SWO, S_WO, 52, 3*KQ + 128*1152)
    a(f"""
    v_lshrrev_b32 v12, 3, v0
    v_mul_u32_u24 v12, 1152, v12
    v_lshlrev_b32 v14, 1, v13
    v_and_b32 v15, 7, v0
    v_xor_b32 v14, v14, v15
    v_lshl_add_u32 v16, v14, 4, v12
    v_add_u32 v17, 8192, v16
    v_add_u32 v18, 16384, v16
    v_add_u32 v19, 24576, v16
    """)
    def kblk(n):
        return Grp(f"k{n}", f"s_add_u32 m0, s59, {KBASE + n*8192}", [f"s_add_u32 s56, s59, {kvoff(n)}"], 56,
                   [f"buffer_load_dwordx4 v{7+m}, s[{SK}:{SK+3}], s{{so}} offen offset:{m*1024}{flkv} lds" for m in range(2)], [])
    def vblk(n):
        dst = VBASE01 + n*8192 if n < 4 else (n-4)*8192
        return Grp(f"v{n}", f"s_add_u32 m0, s59, {dst}", [f"s_add_u32 s56, s59, {kvoff(n)}"], 56,
                   [f"buffer_load_dwordx4 v{9+m}, s[{SV}:{SV+3}], s{{so}} offen offset:{m*1024}{flkv} lds" for m in range(2)], [])
    def wo_init():
        a(f"""
        s_mul_i32 s54, s51, {32*1152}
        s_lshl_b32 s52, s{S_ROT2}, 7
        s_add_u32 s54, s54, s52
        s_mov_b32 s55, s{S_ROT2}
        """)
    def wo(t):
        post = [f"s_add_u32 s54, s54, {KQ}"] if t % 4 != 3 else [
            "s_add_u32 s55, s55, 1", "s_cmp_eq_u32 s55, 9", "s_cselect_b32 s55, 0, s55", "s_cselect_b32 s58, 1152, 0",
            f"s_sub_u32 s54, s54, {3*KQ-128}", "s_sub_u32 s54, s54, s58"]
        return Grp(f"o{t}", f"s_add_u32 m0, s53, {((t+2)%10)*16384}", [], 54,
                   [f"buffer_load_dwordx4 v{16+m}, s[{SWO}:{SWO+3}], s{{so}} offen offset:{m*1024}{flw} lds" for m in range(4)], post)
    F = {"x": xblk, "k": kblk, "v": vblk}
    if opt.fused:
        a(f"""
        s_lshl_b32 s52, s{S_G}, 12
        s_add_u32 s52, s52, {FLAG_OFF}
        """)
        srd(a, 16, S_WS, 52, 4096)
        a(f"""
        s_mov_b32 s20, s{S_DBG}
        s_mov_b32 s21, s{S_DBG+1}
        s_mov_b32 s22, 256
        s_mov_b32 s23, 0x20000
        s_lshl_b32 s52, s{S_G}, 2
        v_mov_b32 v72, s52
        s_add_u32 s56, s{S_HG}, s51
        s_cmp_eq_u32 s56, 0
        s_cselect_b32 s98, 4096, 0
        s_mov_b32 s96, s16
        s_mov_b32 s97, s17
        s_mov_b32 s99, 0x20000
        v_mov_b32 v32, 0
        v_mov_b32 v33, 0
        v_mov_b32 v34, 0
        v_mov_b32 v35, 0
        v_lshlrev_b32 v36, 4, v0
        v_mov_b32 v31, 1
        buffer_store_dwordx4 v[32:35], v36, s[96:99], 0 offen sc1
        buffer_store_dwordx4 v[32:35], v36, s[96:99], 0 offen offset:1024 sc1
        buffer_store_dwordx4 v[32:35], v36, s[96:99], 0 offen offset:2048 sc1
        """)
        vm.issue("z", 3)
    if opt.pretouch:
        a(f"""
        v_lshlrev_b32 v73, 17, v13
        v_mul_u32_u24 v74, {KQ >> 4}, v13
        v_lshlrev_b32 v74, 4, v74
        buffer_load_dword v75, v73, s[{SK}:{SK+3}], 0 offen
        buffer_load_dword v75, v73, s[{SV}:{SV+3}], 0 offen
        buffer_load_dword v75, v74, s[{SWO}:{SWO+3}], 0 offen
        """)
        vm.issue("pt", 3)
        if opt.pretouch > 1:
            a(f"""
            s_mul_i32 s52, s{S_G}, {8*73728}
            s_add_u32 s64, s{S_WS}, s52
            s_addc_u32 s65, s{S_WS+1}, 0
            s_mov_b32 s66, {8*73728}
            s_mov_b32 s67, 0x20000
            buffer_load_dword v75, v73, s[64:67], 0 offen
            """)
            vm.issue("pt", 1)
    def announce():
        if not opt.fused: return
        vm.wait("z")
        a("""
        s_mov_b32 s96, s20
        s_mov_b32 s97, s21
        s_lshr_b32 s98, s98, 4
        buffer_store_dword v31, v72, s[96:99], 0 offen sc1
        """)
        vm.issue("d")
    F["d"] = lambda _: announce
    if opt.pro:
        a("s_memrealtime s[72:73]")
        vm.wait("x0")
        a("s_memrealtime s[74:75]")
    vm.wait("x0" if opt.selfw else "w0")
    if opt.pro: a("s_memrealtime s[76:77]")
    a("s_barrier")
    if opt.pro: a("s_memrealtime s[78:79]\ns_waitcnt lgkmcnt(0)\ns_mov_b64 s[64:65], s[92:93]")
    offs = [int(x) for x in (opt.stag2 if opt.selfw else opt.stagger).split(",")]
    if len(offs) > 1:
        a(f"s_and_b32 s52, s{S_B}, {len(offs)-1}")
        for g in range(1, len(offs)):
            a(f"s_cmp_eq_u32 s52, {g}")
            a(f"s_cbranch_scc1 L_var{g}")
    ops0 = list(vm.ops)
    for g, off in enumerate(offs):
        vm.ops = list(ops0)
        if g: a(f"L_var{g}:")
        ev = {s: [] for s in range(-1, 36)}
        for item in (opt.sched2 + "|3:d0" if opt.selfw else opt.sched).split("|"):
            st, names = item.split(":")
            st = int(st[:-1]) + off if st.endswith("+") else int(st[:-1]) + off//2 if st.endswith("h") else int(st)
            for nm in names.split(","):
                n = int(nm[1:])
                free = {"d": 1, "p": -1, "x": -1, "k": 4*(n-3)+3 if n >= 3 else -1, "v": 4*(n+5)+3 if n < 4 else 32+(n-4)//2}[nm[0]]
                assert st >= free, (nm, st, free)
                if nm[0] == "x": assert st < 4*n-1, (nm, st)
                ev[st].append(F[nm[0]](int(nm[1:])))
        if opt.selfw:
            bars = [-1] + list(range(3, 32, 4)) + [33, 35]
            assert all(not ev[s] or s in bars for s in ev)
            for s, nb in zip(bars, bars[1:]):
                need = [f"x{(nb+1)//4}"] if nb < 33 else [f"k{n}" for n in range(8)]
                emit_interval(a, vm, ev[s], None, need)
            emit_interval(a, vm, ev[35], None, None)
        iv = {-1: [wq(2), wq(3)]}
        for s in range(36): iv[s] = ([wq(s + 4)] if s + 4 < 36 else []) + ev[s]
        for s in range(-1, 35) if not opt.selfw else []:
            need = [f"w{s+2}"] if s < 34 else [f"k{n}" for n in range(8)]
            if (s + 1) % 4 == 3 and s < 34: need.append(f"x{(s+2)//4}")
            emit_interval(a, vm, iv[s], iv[s+1][0] if iv[s+1] else None, need)
        if not opt.selfw: emit_interval(a, vm, iv[35], None, None)
        if g == 0: ops1 = list(vm.ops)
        assert vm.ops[-10:] == ops1[-10:] and sorted(vm.ops) == sorted(ops1)
        if g < len(offs) - 1: a("s_branch L_att")
    a.c("-- V and the first Wo stages arrive under the attention part; then one barrier per two Wo stages")
    a("L_att:")
    vm.ops = ops1
    wo_init()
    O = [wo(t) for t in range(36)]
    emit_interval(a, vm, O[0:2], None, None)
    SG, SO, SF, SD = 36, 40, 16, 20
    reduce_setup(a, 0)
    def marks(at):
        if not (opt.fused and opt.mark_at == at and (opt.nmark or opt.smark)): return
        a(f"""
        s_lshl_b32 s52, s{S_G}, 3
        s_add_u32 s52, s52, s{S_HG}
        s_mul_i32 s52, s52, 73728
        """)
        srd(a, 32, S_WS, 52, 73728)
        a(f"""
        v_lshl_add_u32 v20, v0, 4, s59
        v_mov_b32 v32, -1
        v_mov_b32 v33, -1
        v_mov_b32 v34, -1
        v_mov_b32 v35, -1
        s_lshl_b32 s52, s{S_ROT2}, 13
        """)
        for n in range(opt.nmark or opt.smark):
            a("s_sub_u32 s52, s52, 8192\ns_cselect_b32 s52, 65536, s52")
            for m in range(2):
                a(f"buffer_store_dwordx4 v[32:35], v20, s[32:35], s52 offen offset:{m*1024} sc1")
            vm.issue("mark", 2)
    marks(1)
    if opt.fused:
        a(f"buffer_load_dword v29, v72, s[{SD}:{SD+3}], 0 offen sc1")
        vm.issue("dbg")
    if opt.kfree:
        a("s_barrier")
        emit_interval(a, vm, O[2:2+opt.kfree], None, None)
    vm.wait_all([f"v{n}" for n in range(8)])
    a("s_barrier")
    marks(2)
    n1 = 2 + opt.kfree; n2 = min(6, n1 + opt.npre)
    emit_interval(a, vm, O[n1:n2], None, ["o0"])
    marks(3)
    def spin(tag, reg, load, label, nowait=False):
        if not nowait: vm.wait(tag)
        a(f"""
        s_mov_b32 s46, 0x8000
        {label}:
        v_cmp_ne_u32 vcc, 1, v{reg}
        s_sub_u32 s46, s46, 1
        s_cbranch_scc1 {label}_ok
        s_nop 3
        s_cbranch_vccz {label}_ok
        s_sleep {opt.sleep}
        {load}
        s_waitcnt vmcnt(0)
        s_branch {label}
        {label}_ok:
        """)
    def s_issue():
        a("s_load_dwordx8 s[72:79], s[16:17], s52 glc")
        a("s_add_u32 s57, s52, 128")
        a("s_load_dwordx8 s[88:95], s[16:17], s57 glc")
    def s_test():
        a("s_waitcnt lgkmcnt(0)")
        for i in range(4): a(f"s_and_b64 s[{72+2*i}:{73+2*i}], s[{72+2*i}:{73+2*i}], s[{88+2*i}:{89+2*i}]")
        a("""
        s_and_b64 s[72:73], s[72:73], s[74:75]
        s_and_b64 s[76:77], s[76:77], s[78:79]
        s_and_b64 s[72:73], s[72:73], s[76:77]
        s_and_b32 s72, s72, s73
        s_cmp_eq_u32 s72, 1
        """)
    def s_spin(label, entry=None):
        a(f"s_mov_b32 s46, 0x10000\n{label}:")
        s_test()
        a(f"""
        s_cbranch_scc1 {label}_ok
        s_sub_u32 s46, s46, 1
        s_cbranch_scc1 {label}_ok
        {f"s_sleep {opt.sleeps}" if opt.sleeps else ""}
        """)
        if entry: a(f"{entry}:")
        s_issue()
        a(f"s_branch {label}\n{label}_ok:")
    def task_setup(t_add):
        a(f"""
        s_add_u32 s52, s51, {t_add}
        s_add_u32 s45, s52, s{S_ROT2}
        s_cmp_ge_u32 s45, 9
        s_cselect_b32 s57, 9, 0
        s_sub_u32 s45, s45, s57
        s_lshl_b32 s52, s52, 8
        """)
        if opt.spoll: a(f"s_lshr_b32 s57, s{S_HG}, 1\ns_lshl_b32 s57, s57, 5\ns_add_u32 s52, s52, s57")
    def poll_ld(last):
        return f"buffer_load_dword v29, v25, s[{SF}:{SF+3}], s52 offen sc1"
    def gather(base, tag, lo=0, hi=8):
        if lo == 0: a("s_lshl_b32 s44, s45, 13")
        for src in range(lo, hi):
            a(f"buffer_load_dwordx4 {vr(base+4*src,4)}, v22, s[{SG}:{SG+3}], s44 offen sc1")
            if src < 7: a("s_add_u32 s44, s44, 73728")
        vm.issue(tag, hi - lo)
    def put(pk, sreg):
        a(f"s_lshl_b32 s57, s{sreg}, 7")
        a("s_add_u32 s57, s57, s15")
        a(f"buffer_store_dwordx2 {vr(pk,2)}, v23, s[{SO}:{SO+3}], s57 offen {opt.out_flags}")
        a(f"buffer_store_dwordx2 {vr(pk+2,2)}, v23, s[{SO}:{SO+3}], s57 offen offset:32 {opt.out_flags}")
        vm.issue("out", 2)
    def total(base, sreg, tag, later, pk=76, now=True):
        for src in range(8):
            a(f"s_waitcnt vmcnt({7-src+later})")
            for e in range(4):
                x = base + 4*src + e
                if src == 0:
                    a(f"v_lshlrev_b32 v{64+2*e}, 16, v{x}")
                    a(f"v_and_b32 v{65+2*e}, 0xffff0000, v{x}")
                else:
                    a(f"v_lshlrev_b32 v74, 16, v{x}")
                    a(f"v_and_b32 v75, 0xffff0000, v{x}")
                    a(f"v_pk_add_f32 {vr(64+2*e,2)}, {vr(64+2*e,2)}, v[74:75]")
        for e in range(4):
            a(cvt(pk+e, 64+2*e))
        if opt.xpose:
            for e in range(4): a(f"ds_bpermute_b32 v{pk+e}, v21, v{pk+e}")
            if now: a("s_waitcnt lgkmcnt(0)")
        if now: put(pk, sreg)
    nxt = 6
    assert opt.lead <= 7
    nbar = 17 if opt.fused and opt.nod17 else 18
    iv = {-1: O[n2:6]}
    for i in range(nbar):
        it = []
        if i == 1 and opt.fused:
            it.append(lambda: spin("dbg", 29, f"buffer_load_dword v29, v72, s[{SD}:{SD+3}], 0 offen sc1", "L_dbg"))
        for _ in range(opt.lead - 5 if i == 0 else 1 if str(i) in opt.q1.split(",") else 2):
            if nxt < 36:
                assert nxt <= 2*i + 9
                it.append(O[nxt]); nxt += 1
        if opt.fused and i == opt.g0_at - 1:
            it.append(lambda: (task_setup(0), s_issue() if opt.spoll else (a(poll_ld(False)), vm.issue("poll0"))))
        if opt.fused and i == opt.g0_at:
            it.append(lambda: (s_spin("L_poll0") if opt.spoll else spin("poll0", 29, poll_ld(False), "L_poll0"), gather(80, "g0", 0, opt.g0_split), a("s_mov_b32 s59, s45")))
        if opt.fused and i == opt.g0_at + 1 and opt.g0_split < 8:
            it.append(lambda: gather(80, "g0", opt.g0_split, 8))
        if opt.fused and i == nbar-1:
            it.append(lambda: task_setup(4))
        iv[i] = it
    for i in range(-1, nbar - 1):
        need = [f"o{min(2*i+4, 35) if i+1 < nbar-1 else 35}"] + (["mark"] if "mark" in vm.ops and i == 1 else [])
        emit_interval(a, vm, iv[i], iv[i+1][0] if iv[i+1] else None, need)
    emit_interval(a, vm, iv[nbar-1], None, None)
    assert nxt == 36
    if opt.fused:
        assert vm.ops[-1] == "g0"
        if not opt.nmark:
            a("s_mov_b32 s58, 0")
            if opt.spoll: s_issue()
            if not opt.spoll: a(f"s_waitcnt vmcnt(0)\nbuffer_load_dword v29, v25, s[{SF}:{SF+3}], s52 offen sc1")
            a("s_branch L_sum\nL_round1:")
            for e in range(4): a(f"v_mov_b32 v{112+e}, v{76+e}")
            stamp(a, 1)
            if opt.d18: a("s_barrier")
            a("s_mov_b32 s58, 1")
            if opt.spoll:
                s_spin("L_again", entry="L_look")
            else:
                a(f"""
                s_mov_b32 s46, 0x8000
                L_again:
                v_cmp_ne_u32 vcc, 1, v29
                s_sub_u32 s46, s46, 1
                s_cbranch_scc1 L_go
                s_nop 3
                s_cbranch_vccz L_go
                s_sleep {opt.sleep8}
                L_look:
                buffer_load_dword v29, v25, s[{SF}:{SF+3}], s52 offen sc1
                s_waitcnt vmcnt(0)
                s_branch L_again
                L_go:
                """)
            if opt.stamps: a("s_waitcnt lgkmcnt(0)")
            stamp(a, 2)
            gather(80, "g1")
            if opt.smark:
                a("s_branch L_sum")
                a("L_samp:")
                for k in range(16): a(f"s_load_dword s{64+k}, s[62:63], {(k >> 1)*73728 + (k & 1)*4096} glc")
                a("s_load_dwordx8 s[80:87], s[16:17], s52 glc\ns_add_u32 s57, s52, 128\ns_load_dwordx8 s[88:95], s[16:17], s57 glc")
                a("s_cmp_eq_u32 s47, 0\ns_cbranch_scc1 L_told\ns_waitcnt vmcnt(1)")
                a(f"buffer_store_dword v253, v252, s[16:19], s60 offen sc1\ns_mov_b32 s47, 0\nL_told:\ns_waitcnt lgkmcnt(0)")
                for k in range(4): a(f"s_and_b64 s[{80+2*k}:{81+2*k}], s[{80+2*k}:{81+2*k}], s[{88+2*k}:{89+2*k}]")
                a("s_and_b64 s[80:81], s[80:81], s[82:83]\ns_and_b64 s[84:85], s[84:85], s[86:87]\ns_and_b64 s[80:81], s[80:81], s[84:85]\ns_and_b32 s80, s80, s81")
                for k in range(1, 16): a(f"s_max_u32 s64, s64, s{64+k}")
                a("""
                s_cmp_eq_u32 s80, 1
                s_cbranch_scc1 L_again_ok
                s_sub_u32 s46, s46, 1
                s_cbranch_scc1 L_again_ok
                s_cmp_eq_u32 s64, -1
                s_cbranch_scc1 L_samp
                """)
                if opt.stamps: stamp(a, 2)
                gather(80, "g2")
                a("s_waitcnt vmcnt(7)\nv_max3_u32 v26, v80, v81, v82\nv_max_u32 v26, v26, v83")
                for src in range(1, 8):
                    a(f"s_waitcnt vmcnt({7-src})")
                    a(f"v_max3_u32 v26, v26, v{80+4*src}, v{81+4*src}")
                    a(f"v_max3_u32 v26, v26, v{82+4*src}, v{83+4*src}")
                a("v_cmp_eq_u32 vcc, -1, v26\ns_nop 4\ns_cbranch_vccnz L_samp")
        else:
            a(f"""
            s_mov_b32 s58, 0
            s_mov_b32 s44, 0
            s_mov_b32 s47, 0
            s_branch L_go
            L_round1:
            """)
            for e in range(4): a(f"v_mov_b32 v{112+e}, v{76+e}")
            stamp(a, 1)
            if opt.d18: a("s_barrier")
            a(f"""
            s_mov_b32 s58, 1
            s_mov_b32 s46, 0x8000
            s_mov_b32 s44, 0xff
            s_cmp_ge_u32 s51, {5 - opt.nmark}
            s_cbranch_scc1 L_go
            L_again:
            v_cmp_ne_u32 vcc, 1, v29
            s_sub_u32 s46, s46, 1
            s_cbranch_scc1 L_give
            s_nop 3
            s_cbranch_vccz L_give
            s_sleep {opt.sleep8}
            buffer_load_dword v29, v25, s[{SF}:{SF+3}], s52 offen sc1
            s_waitcnt vmcnt(0)
            s_branch L_again
            L_give:
            s_mov_b32 s47, 1
            s_mov_b32 s44, 0xff
            L_go:
            """)
            if opt.stamps: a("s_waitcnt lgkmcnt(0)")
            stamp(a, 2)
            a("s_lshl_b32 s57, s45, 13")
            for src in range(8):
                a(f"s_bitcmp0_b32 s44, {src}")
                a(f"s_cbranch_scc1 L_skip{src}")
                a(f"buffer_load_dwordx4 {vr(80+4*src,4)}, v22, s[{SG}:{SG+3}], s57 offen sc1")
                a(f"L_skip{src}:")
                if src < 7: a("s_add_u32 s57, s57, 73728")
            a(f"""
            s_cmp_eq_u32 s47, 1
            s_cbranch_scc1 L_sum
            buffer_load_dword v29, v25, s[{SF}:{SF+3}], s52 offen sc1
            s_mov_b32 s44, 0
            s_waitcnt vmcnt(1)
            """)
            for src in range(8):
                a(f"v_max3_u32 v{112+8+src}, v{80+4*src}, v{81+4*src}, v{82+4*src}")
            for src in range(8):
                a(f"v_max_u32 v{112+8+src}, v{112+8+src}, v{83+4*src}")
            for src in range(8):
                a(f"v_cmp_eq_u32 s[{64+2*src}:{65+2*src}], -1, v{112+8+src}" if not opt.stamps else f"v_cmp_eq_u32 vcc, -1, v{112+8+src}\ns_nop 3\ns_cmp_lg_u64 vcc, 0\ns_cselect_b32 s56, {1 << src}, 0\ns_or_b32 s44, s44, s56")
            if not opt.stamps:
                for src in range(8):
                    a(f"s_cmp_lg_u64 s[{64+2*src}:{65+2*src}], 0")
                    a(f"s_cselect_b32 s56, {1 << src}, 0")
                    a("s_or_b32 s44, s44, s56")
            a(f"""
            s_cmp_eq_u32 s58, 0
            s_cselect_b32 s44, 0, s44
            s_cmp_eq_u32 s44, 0
            s_cbranch_scc1 L_sum
            s_waitcnt vmcnt(0)
            v_cmp_ne_u32 vcc, 1, v29
            s_sub_u32 s46, s46, 1
            s_cbranch_scc1 L_give
            s_nop 3
            s_cbranch_vccz L_give
            s_sleep {opt.sleep9}
            s_branch L_go
            """)
        a("L_sum:")
        total(80, 45, "g1", 0, now=False)
        a("""
        s_waitcnt lgkmcnt(0)
        s_cmp_eq_u32 s58, 0
        s_cbranch_scc1 L_round1
        """)
        put(76, 45)
        a("s_cmp_eq_u32 s58, 2\ns_cbranch_scc1 L_load_end")
        put(112, 59)
        stamp(a, 3)
        a("L_load_end:")
        if opt.stamps and not (opt.ltime or opt.pro):
            a("s_waitcnt vmcnt(0)")
            stamp(a, 0)
            stamp_flush(a, 3)
    if opt.ltime or opt.pro: stamp_flush(a, 8)
    a("s_endpgm")

def mfma(a, d, A, B, C=None):
    c = "0" if C == "zero" else vr(d if C is None else C, 4)
    a(f"v_mfma_f32_16x16x32_bf16 {vr(d,4)}, {vr(A,4)}, {vr(B,4)}, {c}")

def weave(a, mf, fill, per=lambda k: 1, start=0):
    fill = list(fill)
    for k, m in enumerate(mf):
        m()
        if k >= start:
            for _ in range(per(k)):
                if fill:
                    x = fill.pop(0)
                    if x: a(x)
    for f in fill: a(f)

def cvt(d, s0):
    return f"v_cvt_pk_bf16_f32 v{d}, v{s0}, v{s0+1}"

def xreduce(a, op, m, t, mid):
    a("s_nop 1")
    a(f"v_permlane16_swap_b32 v{m[0]}, v{m[1]}")
    a(f"v_permlane16_swap_b32 v{m[2]}, v{m[3]}")
    a("s_nop 0")
    a(f"{op} v{m[0]}, v{m[0]}, v{m[1]}")
    a(f"{op} v{m[2]}, v{m[2]}, v{m[3]}")
    a("s_nop 1")
    a(f"v_permlane32_swap_b32 v{m[0]}, v{m[2]}")
    a("s_nop 1")
    a(f"{op} v{m[0]}, v{m[0]}, v{m[2]}")
    mid(m[0])
    a(f"v_mov_b32 v{m[2]}, v{m[0]}")
    a("s_nop 1")
    a(f"v_permlane32_swap_b32 v{m[0]}, v{m[2]}")
    a("s_nop 1")
    a(f"v_mov_b32 v{m[1]}, v{m[0]}")
    a(f"v_mov_b32 v{m[3]}, v{m[2]}")
    a("s_nop 1")
    a(f"v_permlane16_swap_b32 v{m[0]}, v{m[1]}")
    a(f"v_permlane16_swap_b32 v{m[2]}, v{m[3]}")
    a("s_nop 1")

def sn(i):
    return range(3, -1, -1) if opt.snake and i & 1 else range(4)

def compute(a):
    FB = [128, 176]
    AW, AX, L16, ROW4, C8, AK = 224, 232, 236, 237, 238, 240
    a.c("---------------- compute waves ----------------")
    a("L_compute:")
    if opt.prio_comp: a(f"s_setprio {opt.prio_comp}")
    DW = 252
    def wdma(u):
        r = [f"s_add_u32 m0, s58, {(u%4)*16384}"]
        r += [f"buffer_load_dwordx4 v{DW+m}, s[40:43], s57 offen offset:{m*1024} lds" for m in range(4)]
        r += [f"s_add_u32 s57, s57, {16*8192}"]
        if u % 4 == 3: r[-1] += f"\ns_cmp_ge_u32 s57, {576*8192}\ns_cselect_b32 s59, {576*8192}, 0\ns_sub_u32 s57, s57, s59"
        return r
    def wnow(u):
        r = wdma(u); a(r[0]); a("s_nop 0")
        for x in r[1:]: a(x)
    a(f"""
    v_lshrrev_b32 v1, 4, v0
    v_and_b32 v2, 15, v0
    """)
    if opt.selfw:
        assert opt.hstride
        a(f"""
        v_lshlrev_b32 v3, 1, v1
        v_xor_b32 v3, v3, v2
        v_lshlrev_b32 v4, 13, v1
        v_lshl_add_u32 v{DW}, v3, 4, v4
        v_xor_b32 v3, 8, v3
        v_lshl_add_u32 v{DW+1}, v3, 4, v4
        v_add_u32 v{DW+1}, {4*8192-1024}, v{DW+1}
        v_add_u32 v{DW+2}, {2*(4*8192-1024)}, v{DW}
        v_add_u32 v{DW+3}, {2*(4*8192-1024)}, v{DW+1}
        s_lshl_b32 s58, s{S_WAVE}, 12
        s_lshl_b32 s57, s{S_ROT}, 19
        s_lshl_b32 s51, s{S_WAVE}, 3
        s_add_u32 s51, s51, s{S_HG}
        s_lshl_b32 s51, s51, 8
        s_sub_u32 s42, {576*8192}, s51
        s_mov_b32 s43, 0x20000
        s_waitcnt lgkmcnt(0)
        s_add_u32 s40, s{S_WQ}, s51
        s_addc_u32 s41, s{S_WQ+1}, 0
        """)
        wnow(0); wnow(1)
    a(f"""
    v_lshrrev_b32 v{ROW4}, 2, v0
    v_and_b32 v3, 3, v0
    v_lshlrev_b32 v{C8}, 3, v3
    v_lshlrev_b32 v{L16}, 4, v0
    s_lshl_b32 s51, s{S_WAVE}, {12 if opt.selfw else 8}
    v_lshl_add_u32 v4, v{ROW4}, {8 if opt.selfw else 10}, v{C8}
    v_add_u32 v4, s51, v4
    v_and_b32 v5, 7, v{ROW4}
    """)
    for dt in range(8):
        a(f"v_xor_b32 v6, {dt}, v5")
        a(f"v_lshl_add_u32 v{AW+dt}, v6, 5, v4")
    a(f"""
    v_lshrrev_b32 v4, 3, v2
    v_lshlrev_b32 v4, 10, v4
    v_and_b32 v5, 7, v2
    v_lshl_add_u32 v4, v5, 7, v4
    v_and_b32 v5, 1, v1
    v_lshlrev_b32 v7, 3, v5
    v_add_u32 v4, v4, v7
    v_add_u32 v4, {XBASE}, v4
    v_lshrrev_b32 v8, 1, v1
    v_lshrrev_b32 v5, 1, v2
    v_xor_b32 v5, v5, v8
    """)
    for sp in range(4):
        a(f"v_xor_b32 v6, {2*sp}, v5")
        a(f"v_lshl_add_u32 v{AX+sp}, v6, 4, v4")
    a(f"""
    s_lshl_b32 s51, s{S_WAVE}, 14
    s_add_u32 s52, s51, {KBASE}
    v_lshl_add_u32 v4, v2, 8, v7
    v_add_u32 v4, s52, v4
    v_xor_b32 v5, v2, v8
    """)
    for i in range(8):
        a(f"v_xor_b32 v6, {2*i}, v5")
        a(f"v_lshl_add_u32 v{AK+i}, v6, 4, v4")
    a(f"""
    s_add_u32 s52, s51, {VBASE01}
    s_cmp_ge_u32 s{S_WAVE}, 2
    s_cselect_b32 s53, {LDS_BYTES}, 0
    s_sub_u32 s52, s52, s53
    s_lshl_b32 s53, s{S_G}, 3
    s_add_u32 s53, s53, s{S_HG}
    s_mul_i32 s53, s53, 73728
    s_waitcnt lgkmcnt(0)
    """)
    srd(a, 32, S_WS, 53, 73728)
    for i in range(128):
        a(f"v_mov_b32 v{i}, 0")
    def reads(u):
        fb = FB[(u >> 1) & 1] + 2*(u & 1)
        r = [f"ds_read_b64_tr_b16 {vr(fb+4*dt,2)}, v{AW+dt} offset:{(u%4)*16384}" for dt in range(8)]
        x = [f"ds_read_b64 {vr(fb+32+4*qt,2)}, v{AX+u%4} offset:{qt*2048}" for qt in range(4)]
        return x + r
    def half(buf, hf):
        return [lambda dt=dt, qt=qt: mfma(a, 16*dt+4*qt, FB[buf]+4*dt, FB[buf]+32+4*qt) for dt in range(4*hf, 4*hf+4) for qt in sn(dt)]
    def interval(buf, hf, rd, pre=(), post=(), mark=True):
        mf = half(buf, hf)
        if opt.steps and mark: a("s_memrealtime s[96:97]")
        weave(a, mf[:15], list(pre) + rd + list(post), per=lambda k: 2 if k < opt.g1dbl else 1)
        a("s_waitcnt lgkmcnt(0)")
        if opt.steps and mark: a("v_writelane_b32 v250, s96, m0\ns_add_u32 m0, m0, 1")
        mf[15]()
    if opt.selfw:
        def ival(u, dma, wait, post=()):
            buf, hf = ((u >> 1) + 1) & 1, (u + 1) & 1 ^ 0
            buf, hf = {1: (1, 1), 2: (0, 0), 3: (0, 1), 0: (1, 0)}[u % 4]
            mf = half(buf, hf)
            rd = reads(u); d = wdma(u + 3) if dma else []
            a(f"s_waitcnt vmcnt({wait})")
            if opt.steps: a("s_memrealtime s[96:97]")
            second = {int(c, 16): x for c, x in zip(opt.wslots, d)}
            extra = list(post)
            for k in range(15):
                mf[k]()
                if rd: a(rd.pop(0))
                if k < opt.g1dbl and rd: a(rd.pop(0))
                elif k in second: a(second.pop(k))
                elif extra and k > 10: a(extra.pop(0))
            assert not rd and not second and not extra
            a("s_waitcnt lgkmcnt(0)")
            if opt.steps: a("v_writelane_b32 v250, s96, s61\ns_add_u32 s61, s61, 1")
            mf[15]()
        for i in range(FB[1], FB[1] + 48): a(f"v_mov_b32 v{i}, 0")
        a("s_waitcnt vmcnt(4)")
        a("s_barrier")
        stamp(a, 1)
        for r in reads(0): a(r)
        wnow(2); wnow(3)
        a("s_mov_b32 s54, 8")
        if opt.steps: a("s_mov_b32 s61, 0\nv_mov_b32 v250, 0")
        a("s_waitcnt lgkmcnt(0)")
        a("L_g1_loop:")
        ival(1, True, 8)
        ival(2, True, 8)
        ival(3, True, 8, post=["s_sub_u32 s54, s54, 1", f"v_add_u32 v{AX}, 8192, v{AX}", f"v_add_u32 v{AX+1}, 8192, v{AX+1}"])
        a("s_barrier")
        ival(4, True, 8, post=[f"v_add_u32 v{AX+i}, 8192, v{AX+i}" for i in (2, 3)])
        a("s_cmp_lg_u32 s54, 0\ns_cbranch_scc1 L_g1_loop")
        ival(1, False, 8)
        a("s_barrier")
        ival(2, False, 4)
        ival(3, False, 0)
    else:
        a("s_barrier")
        stamp(a, 1)
        for r in reads(0): a(r)
        a("s_mov_b32 s54, 9")
        if opt.steps: a("s_mov_b32 m0, 0\nv_mov_b32 v250, 0")
        a("s_waitcnt lgkmcnt(0)")
        a("s_barrier")
        for r in reads(1): a(r)
        a("s_waitcnt lgkmcnt(0)")
        a.c("-- Q^T += Wq^T x^T : 16 rows of Wq per barrier, operands read one step ahead")
        a("L_g1_loop:")
        a("s_barrier")
        interval(0, 0, reads(2))
        a("s_barrier")
        interval(0, 1, reads(3), post=["s_sub_u32 s54, s54, 1", f"v_add_u32 v{AX}, 8192, v{AX}", f"v_add_u32 v{AX+1}, 8192, v{AX+1}"])
        a("""
        s_cmp_eq_u32 s54, 0
        s_cbranch_scc1 L_g1_last
        s_barrier
        """)
        interval(1, 0, reads(4), post=[f"v_add_u32 v{AX+i}, 8192, v{AX+i}" for i in (2, 3)])
        a("s_barrier")
        interval(1, 1, reads(5))
        a("s_branch L_g1_loop")
    a.c("-- last k-step, K fragments, Q -> bf16, S^T = K Q^T, softmax over the keys, O^T = V^T P^T, O -> LDS")
    a("L_g1_last:")
    a("s_barrier")
    if opt.steps:
        a(f"""
        s_lshl_b32 s60, s2, 2
        s_add_u32 s60, s60, s{S_WAVE}
        s_lshl_b32 s60, s60, 8
        s_add_u32 s60, s60, {STAMP_OFF + (1 << 20)}
        s_add_u32 s56, s{S_WS}, s60
        s_addc_u32 s57, s{S_WS+1}, 0
        s_mov_b32 s58, 256
        s_mov_b32 s59, 0x20000
        v_lshrrev_b32 v251, 2, v{L16}
        buffer_store_dword v250, v251, s[56:59], 0 offen
        """)
    KF = lambda kt, ds: 128 + 16*ds + 4*kt
    krd = lambda ds: [f"ds_read_b64 {vr(KF(kt,ds)+2*jj,2)}, v{AK+2*ds+jj} offset:{kt*4096}" for kt in range(4) for jj in range(2)]
    weave(a, half(1, 0), krd(0) + krd(1) + krd(2), per=lambda k: 2)
    QF = lambda ds, qt: 64*(ds >> 1) + 16*(ds & 1) + 4*qt
    def qcvt(ds):
        return [cvt(QF(ds, qt)+2*u+e, 32*ds+16*u+4*qt+2*e) for qt in range(4) for u in range(2) for e in range(2)]
    av = [f"v_lshl_add_u32 v248, v{ROW4}, 8, v{C8}", "v_add_u32 v248, s52, v248", f"v_and_b32 v249, 7, v{ROW4}"]
    for dt in range(8):
        av += [f"v_xor_b32 v239, {dt}, v249", f"v_lshl_add_u32 v{AW+dt}, v239, 5, v248"]
    weave(a, half(1, 1), krd(3) + qcvt(0) + qcvt(1)[:8], per=lambda k: 2)
    stamp(a, 2)
    for x in qcvt(1)[8:]: a(x)
    a("s_waitcnt lgkmcnt(8)")
    S = lambda kt, qt: (32 if kt < 2 else 192) + 16*(kt & 1) + 4*qt
    g2 = lambda ds, kt, qt: (lambda: mfma(a, S(kt, qt), KF(kt, ds), QF(ds, qt), "zero" if ds == 0 else None))
    cbits = struct.unpack("<I", struct.pack("<f", math.log2(math.e) / math.sqrt(128.0)))[0]
    vals = [[S(kt, qt) + e for kt in range(4) for e in range(4)] for qt in range(4)]
    M = [240, 242, 244, 246]; SUM = [232, 234, 248, 250]
    def rowmax(qt):
        v = vals[qt]
        return ([f"v_max3_f32 v{M[qt]}, v{v[0]}, v{v[1]}, v{v[2]}"] +
                [f"v_max3_f32 v{M[qt]}, v{M[qt]}, v{v[i]}, v{v[i+1]}" for i in range(3, 15, 2)] +
                [f"v_max_f32 v{M[qt]}, v{M[qt]}, v{v[15]}"])
    weave(a, [g2(ds, kt, qt) for ds in range(2) for kt in range(4) for qt in sn(kt)],
          qcvt(2) + qcvt(3) + av + [f"s_mov_b32 s56, {hex(cbits)}", f"s_mov_b32 s57, {hex(cbits)}", "s_waitcnt lgkmcnt(0)"], per=lambda k: 2)
    for qt in range(4):
        weave(a, [g2(ds, kt, qt) for ds in (2, 3) for kt in range(4)], rowmax(qt-1) if qt else [], per=lambda k: 2, start=4)
    stamp(a, 3)
    a("s_barrier\ns_nop 2" if opt.kfree else "s_nop 3")
    m3 = rowmax(3)
    a(m3[0]); a(m3[1]); a("s_nop 1")
    for x in m3[2:]: a(x)
    VF = lambda dt, ks: 128 + 16*(dt >> 1) + 8*ks + 4*(dt & 1)
    vrd = [f"ds_read_b64_tr_b16 {vr(VF(dt,ks)+2*j,2)}, v{AW+dt} offset:{ks*8192+j*4096}" for dt in range(8) for ks in range(2) for j in range(2)]
    xreduce(a, "v_max_f32", M, None, lambda u: a(f"v_mul_f32 v{u}, s56, v{u}"))
    for i in range(0, 16, 2):
        for qt in range(4):
            x = vals[qt][i]
            a(f"v_pk_fma_f32 {vr(x,2)}, {vr(x,2)}, s[56:57], {vr(M[qt],2)} op_sel_hi:[1,1,0] neg_lo:[0,0,1] neg_hi:[0,0,1]")
    for i in range(16):
        for qt in range(4):
            a(f"v_exp_f32 v{vals[qt][i]}, v{vals[qt][i]}")
    for qt in range(4):
        a(f"v_pk_add_f32 {vr(SUM[qt],2)}, {vr(vals[qt][0],2)}, {vr(vals[qt][2],2)}")
    for i in range(4, 16, 2):
        for qt in range(4):
            a(f"v_pk_add_f32 {vr(SUM[qt],2)}, {vr(SUM[qt],2)}, {vr(vals[qt][i],2)}")
    for qt in range(4):
        a(f"v_add_f32 v{SUM[qt]}, v{SUM[qt]}, v{SUM[qt]+1}")
    xreduce(a, "v_add_f32", SUM, None, lambda u: a(f"v_rcp_f32 v{u}, v{u}\ns_nop 0"))
    if not opt.latev: a("s_barrier")
    PF = lambda ks, qt: 96 + 16*ks + 4*qt
    for i in range(0, 16, 2):
        for qt in range(4):
            x = vals[qt][i]
            a(f"v_pk_mul_f32 {vr(x,2)}, {vr(x,2)}, {vr(SUM[qt],2)} op_sel_hi:[1,0]")
            if not opt.latev: a(vrd.pop(0))
    for ks in range(2):
        for qt in range(4):
            for u in range(2):
                for e in range(2):
                    a(cvt(PF(ks, qt)+2*u+e, S(2*ks+u, qt)+2*e))
    if opt.latev:
        if opt.stv: stamp(a, 4); a("s_waitcnt lgkmcnt(0)")
        a("s_barrier")
        if opt.stv: stamp(a, 7); a("s_waitcnt lgkmcnt(0)")
        for r in vrd[:16]: a(r)
        a("s_waitcnt lgkmcnt(8)")
    else:
        a("s_waitcnt lgkmcnt(0)")
        a("s_nop 0")
    if not opt.fused and not opt.stv: stamp(a, 4)
    OT = lambda dt, qt: (16*dt if dt < 6 else 192 + 16*(dt-6)) + 4*qt
    g3 = lambda p: [lambda ks=ks, dt=dt, qt=qt: mfma(a, OT(dt, qt), VF(dt, ks), PF(ks, qt), "zero" if ks == 0 else None)
                    for ks in range(2) for dt in (2*p, 2*p+1) for qt in sn(dt)]
    OW, OR0, OR1, PV, AOB, AO, FV, ONE = 242, 243, 244, 245, 246, 248, 252, 253
    ad = f"""
    s_lshr_b32 s53, s{S_WAVE}, 1
    s_and_b32 s55, s{S_WAVE}, 1
    v_add_u32 v{OW}, s52, v{L16}
    s_lshl_b32 s55, s55, 11
    v_add_u32 v{OR1}, s55, v{L16}
    v_add_u32 v{OR0}, {VBASE01}, v{OR1}
    s_lshl_b32 s55, s{S_WAVE}, 11
    v_add_u32 v{PV}, s55, v{L16}
    s_lshl_b32 s53, s53, 1
    v_lshl_add_u32 v239, v{ROW4}, 7, v{C8}
    v_bfe_u32 v240, v{ROW4}, 1, 2
    v_xor_b32 v240, s53, v240
    v_lshl_add_u32 v{AOB}, v240, 5, v239
    v_xor_b32 v240, 1, v240
    v_lshl_add_u32 v{AOB+1}, v240, 5, v239
    v_add_u32 v{AO}, {WO_RING}, v{AOB}
    v_add_u32 v{AO+1}, {WO_RING}, v{AOB+1}
    s_lshl_b32 s55, s{S_G}, 12
    s_add_u32 s55, s55, {FLAG_OFF}
    s_add_u32 s36, s{S_WS}, s55
    s_addc_u32 s37, s{S_WS+1}, 0
    s_mov_b32 s38, 0
    s_mov_b32 s39, 0x20000
    s_lshl_b32 s55, s{S_WAVE}, 6
    s_lshl_b32 s53, s{S_HG}, 2
    s_add_u32 s55, s55, s53
    v_lshl_add_u32 v{FV}, v{L16}, 1, s55
    v_mov_b32 v{ONE}, 0x10000
    v_cmp_gt_u32 vcc, 32, v{L16}
    s_nop 0
    s_nop 0
    v_cndmask_b32 v{FV}, v{ONE}, v{FV}, vcc
    v_mov_b32 v{ONE}, 1
    """.strip().split("\n")
    OF = lambda k4, qt: 128 + 16*k4 + 4*qt
    def ocvt(k4):
        r = []
        for qt in range(4):
            r += [cvt(OF(k4, qt)+2*u+e, OT(2*k4+u, qt)+2*e) for u in range(2) for e in range(2)]
            r.append(f"ds_write_b128 v{OW}, {vr(OF(k4,qt),4)} offset:{(k4*4+qt)*1024}")
        return r
    if opt.latev:
        weave(a, g3(0), [x for p in zip(vrd[16:24], ad[:8]) for x in p] + ad[8:24], per=lambda k: 2)
        a("s_waitcnt lgkmcnt(8)")
        weave(a, g3(1), vrd[24:32] + ad[24:26] + ocvt(0), per=lambda k: 2)
        a("s_waitcnt lgkmcnt(12)")
        weave(a, g3(2), ad[26:] + [None] + ocvt(1), per=lambda k: 2)
        a("s_waitcnt lgkmcnt(8)")
        weave(a, g3(3), ocvt(2), per=lambda k: 2, start=4)
    else:
        weave(a, g3(0), ad[:30], per=lambda k: 2)
        weave(a, g3(1), ad[30:] + ocvt(0), per=lambda k: 2, start=2)
        weave(a, g3(2), ocvt(1), per=lambda k: 2, start=4)
        weave(a, g3(3), ocvt(2), per=lambda k: 2, start=4)
    a("s_nop 6")
    for x in ocvt(3): a(x)
    a("s_waitcnt lgkmcnt(0)")
    if opt.stv: stamp(a, 1); a("s_waitcnt lgkmcnt(0)")
    a("s_barrier")
    stamp(a, 5)
    ACCA, ACCB, WB, PKA, PKB = 128, 144, 160, 192, 200
    def wread(k4, ni):
        return [f"ds_read_b64_tr_b16 {vr(WB+8*k4+4*ni+2*j,2)}, v{AO+ni} offset:{k4*4096+j*2048}" for j in range(2)]
    def oread(h):
        return [f"ds_read_b128 {vr(32*h+8*k4+4*qi,4)}, v{OR0 if h < 2 else OR1} offset:{(h&1)*16384+(k4*4+qi)*1024}" for k4 in range(4) for qi in range(2)]
    for h in range(2):
        for r in oread(h): a(r)
    for k4 in range(4):
        for ni in range(2):
            for r in wread(k4, ni)[:1 if (k4, ni) == (3, 1) else 2]: a(r)
    a(f"""
    s_mov_b32 s54, 0
    s_mov_b32 s55, {WO_RING+16384}
    v_add_u32 v{AO}, s55, v{AOB}
    s_lshl_b32 s58, s{S_ROT2}, 13
    s_sub_u32 s61, s58, 8192
    s_cselect_b32 s61, 65536, s61
    s_sub_u32 s62, s61, 8192
    s_cselect_b32 s62, 65536, s62
    s_sub_u32 s63, s62, 8192
    s_cselect_b32 s63, 65536, s63
    s_mov_b32 s60, -256
    """)
    for i in range(4): a(f"v_mov_b32 v{PKA+i}, -1")
    if opt.steps2: a("s_mov_b32 m0, 0\ns_memrealtime s[96:97]")
    a("s_waitcnt lgkmcnt(0)")
    def cvts(pk):
        return [cvt(pk+4*qi+2*ni+e, ACCB+8*qi+4*ni+2*e) for qi in range(2) for ni in range(2) for e in range(2)]
    def store(pk, qi, soff):
        if opt.x_nostore: return "s_nop 0"
        return f"buffer_store_dwordx4 {vr(pk,4)}, v{PV}, s[32:35], s{soff} offen offset:{qi*1024} {opt.part_flags}".rstrip()
    flagst = f"buffer_store_dword v{ONE}, v{FV}, s[36:39], s60 offen sc1" if opt.fused else "s_nop 0"
    def adv(r):
        return [f"s_add_u32 s{r}, s{r}, 16384", f"s_cmp_ge_u32 s{r}, 73728", f"s_cselect_b32 s53, 73728, 0", f"s_sub_u32 s{r}, s{r}, s53"]
    def block(extra, skip=False):
        for kq in range(4):
            if kq % 2 == 0:
                if opt.steps2: a("s_waitcnt lgkmcnt(0)\nv_writelane_b32 v250, s96, m0\ns_add_u32 m0, m0, 1")
                if kq == 2 and skip: a(f"s_cmp_eq_u32 s54, 7\ns_cbranch_scc1 {skip}")
                a("s_barrier")
                if kq == 2 and skip: a(f"{skip}:")
                if opt.steps2: a("s_memrealtime s[96:97]")
            ex = list(extra[kq])
            sl = ["s_add_u32 s55, s55, 16384", f"s_cmp_eq_u32 s55, {LDS_BYTES}", "s_cselect_b32 s55, 0, s55"]
            if len(ex) <= 7:
                ex = ex[:5] + [None]*(5 - len(ex[:5])) + sl + ex[5:]
            else:
                ex = ex[:8] + [sl[0] + "\n" + sl[1], sl[2]] if len(ex) == 8 else None
            for k4 in range(4):
                for ni in range(2):
                    for qj in range(2):
                        qi = qj ^ (ni & opt.snake)
                        first = kq == 0 and k4 == 0
                        last = kq == 3 and k4 == 3
                        t = 8*qi + 4*ni
                        if last: mfma(a, ACCB+t, WB+8*k4+4*ni, 32*kq+8*k4+4*qi, ACCA+t)
                        else: mfma(a, ACCA+t, WB+8*k4+4*ni, 32*kq+8*k4+4*qi, "zero" if first else None)
                        g = 4*k4 + 2*ni + qj
                        if not opt.x_noread:
                            if qj == 1: a(wread(k4, ni)[0])
                            else:
                                pk4, pni = (k4, 0) if ni == 1 else ((k4 - 1) % 4, 1)
                                a(wread(pk4, pni)[1])
                        if g % 4 == 3: a("s_waitcnt lgkmcnt(11)")
                        elif g == 0: a(f"v_add_u32 v{AO+1}, s55, v{AOB+1}")
                        elif g == 14: a(f"v_add_u32 v{AO}, s55, v{AOB}")
                        elif ex:
                            x = ex.pop(0)
                            if x: a(x)
            assert not ex, (kq, ex)
    a.c("-- out^T block = Wo^T O^T, K = 512 ; the block before is converted, stored and (one later) flagged underneath")
    o2, o3 = oread(2), oread(3)
    mark = lambda n, r: [None]*5 + [store(PKA, 0, r), store(PKA, 1, r)] if opt.fused and opt.nmark >= n and opt.mark_at == 0 else []
    block([[x + "\n" + y for x, y in zip(o2, o3)], mark(1, 61), mark(2, 62), mark(3, 63)])
    sites = opt.st_pos.split(",")
    for w in range(1, len(sites)):
        a(f"s_and_b32 s53, s{S_WAVE}, {len(sites)-1}" if w == 1 else "")
        a(f"s_cmp_eq_u32 s53, {w}\ns_cbranch_scc1 L_p2_loop{w}")
    for w, site in enumerate(sites):
        a(f"L_p2_loop{w}:")
        ex = [cvts(PKA), [None]*7, [None]*7, [None]*7]
        p = [int(c) for c in site]
        ex[p[0]][p[1]] = store(PKA, 0, 58)
        fl = "s_waitcnt vmcnt(2)\n" + flagst
        if len(p) == 4: ex[p[2]][p[3]] = store(PKA+4, 1, 58) + "\n" + fl
        elif (p[4], p[5]) < (p[0], p[1]):
            ex[p[2]][p[3]] = store(PKA+4, 1, 58); ex[p[4]][p[5]] = fl.replace("vmcnt(2)", "vmcnt(0)")
        else:
            ex[p[2]][p[3]] = store(PKA+4, 1, 58); ex[p[4]][p[5]] = fl
        assert p[2] < 3 or p[3] < 2
        ex[3][2:7] = ["s_add_u32 s58, s58, 8192\ns_add_u32 s60, s60, 256", "s_cmp_eq_u32 s58, 73728", "s_cselect_b32 s58, 0, s58", "s_mov_b32 s38, 4096", "s_add_u32 s54, s54, 1"]
        block(ex, skip=f"L_nobar{w}" if opt.fused and opt.nod17 else None)
        a(f"""
        s_cmp_lg_u32 s54, 8
        s_cbranch_scc1 L_p2_loop{w}
        """)
        if w < len(sites) - 1: a("s_branch L_p2_done")
    a("""
    L_p2_done:
    s_nop 7
    """)
    if opt.steps2:
        a(f"""
        s_waitcnt lgkmcnt(0)
        v_writelane_b32 v250, s96, m0
        s_lshl_b32 s53, s2, 2
        s_add_u32 s53, s53, s{S_WAVE}
        s_lshl_b32 s53, s53, 8
        s_add_u32 s53, s53, {STAMP_OFF + (1 << 20)}
        s_add_u32 s40, s{S_WS}, s53
        s_addc_u32 s41, s{S_WS+1}, 0
        s_mov_b32 s42, 256
        s_mov_b32 s43, 0x20000
        v_lshrrev_b32 v251, 2, v{L16}
        buffer_store_dword v250, v251, s[40:43], 0 offen
        """)
    stamp(a, 6)
    cv = cvts(PKA)
    for x in cv[:4] + [store(PKA, 0, 61)] + cv[4:] + [store(PKA+4, 1, 61)]: a(x)
    if opt.fused:
        if opt.d18: a("s_barrier")
        a("s_waitcnt vmcnt(2)\n" + flagst + "\ns_add_u32 s60, s60, 256")
        a(f"""
        s_mov_b32 s16, s36
        s_mov_b32 s17, s37
        s_mov_b32 s18, 4096
        s_mov_b32 s19, 0x20000
        s_cmp_eq_u32 s{S_WAVE}, 0
        s_cbranch_scc1 L_last
        s_waitcnt vmcnt(1)
        """)
        a(flagst)
        if opt.stamps:
            a("s_waitcnt lgkmcnt(0)"); stamp(a, 4)
            a("s_waitcnt vmcnt(0)"); stamp(a, 7); stamp_flush(a, 8)
        a("s_endpgm")
        a("L_last:")
        a(f"v_lshrrev_b32 v30, 4, v{L16}")
        reduce_setup(a, 30)
        a(f"""
        s_lshr_b32 s45, s61, 13
        s_lshr_b32 s52, s{S_HG}, 1
        s_lshl_b32 s52, s52, {5 if opt.spoll else 31}
        s_and_b32 s52, s52, 0xff
        s_add_u32 s52, s52, 2048
        """)
        if opt.smark:
            if opt.stamps: a(f"s_mov_b32 s{S_WAVE}, 8")
            a(f"""
            s_lshl_b32 s56, s{S_HG}, 7
            s_and_b32 s57, s56, 0x80
            s_lshr_b32 s56, s{S_HG}, 1
            s_lshl_b32 s56, s56, 10
            s_add_u32 s56, s56, s57
            s_add_u32 s56, s56, s61
            s_add_u32 s62, s36, s56
            s_addc_u32 s63, s37, 0
            s_mov_b32 s46, 0x10000
            s_mov_b32 s47, 1
            s_mov_b32 s58, 2
            s_branch L_samp
            """)
        else:
            a("s_waitcnt vmcnt(1)")
            a(flagst.replace("s[36:39]", "s[16:19]"))
            if opt.stamps: a(f"s_mov_b32 s{S_WAVE}, 8"); stamp(a, 1)
            a("s_mov_b32 s46, 0x10000\ns_mov_b32 s47, 0\ns_mov_b32 s44, 0xff\ns_mov_b32 s58, 2\n" + ("s_branch L_go" if opt.nmark else "s_branch L_look"))
    if opt.stamps and not opt.fused:
        a("s_waitcnt vmcnt(0)")
        if not opt.stv: stamp(a, 7)
        stamp_flush(a, 8)
    a("L_end:")
    a("s_endpgm")

def reduce_kernel(a):
    a(f"""
    s_cmp_ge_u32 s2, 256
    s_cbranch_scc1 L_rend
    s_load_dwordx2 s[4:5], s[0:1], 80
    s_load_dwordx2 s[6:7], s[0:1], 96
    v_lshrrev_b32 v1, 6, v0
    v_and_b32 v0, 63, v0
    v_readfirstlane_b32 s3, v1
    s_lshr_b32 s8, s2, 3
    s_and_b32 s9, s2, 7
    v_lshrrev_b32 v1, 3, v0
    v_and_b32 v2, 7, v0
    v_lshrrev_b32 v3, 2, v1
    v_and_b32 v5, 3, v1
    s_lshr_b32 s10, s9, 1
    s_and_b32 s11, s9, 1
    s_lshl_b32 s10, s10, 10
    s_lshl_b32 s11, s11, 7
    s_add_u32 s10, s10, s11
    s_lshl_b32 s11, s3, 13
    s_add_u32 s10, s10, s11
    v_lshlrev_b32 v6, 6, v3
    v_lshlrev_b32 v3, 12, v3
    v_lshl_add_u32 v3, v5, 8, v3
    v_lshl_add_u32 v3, v2, 4, v3
    v_add_u32 v3, s10, v3
    v_lshl_add_u32 v6, v5, 3, v6
    s_mul_i32 s12, s8, {8*73728}
    s_and_b32 s13, s8, 15
    s_lshr_b32 s14, s8, 4
    s_lshl_b32 s13, s13, 6
    s_lshl_b32 s15, s9, 3
    s_add_u32 s13, s13, s15
    s_mul_i32 s13, s13, 2304
    s_mul_i32 s14, s14, 1152
    s_add_u32 s13, s13, s14
    s_lshl_b32 s14, s3, 7
    s_add_u32 s13, s13, s14
    v_mul_u32_u24 v4, 2304, v2
    v_add_u32 v4, v6, v4
    s_waitcnt lgkmcnt(0)
    s_add_u32 s16, s6, s12
    s_addc_u32 s17, s7, 0
    s_mov_b32 s18, {8*73728}
    s_mov_b32 s19, 0x20000
    s_mov_b32 s20, s4
    s_mov_b32 s21, s5
    s_mov_b32 s22, {16*64*1152*2}
    s_mov_b32 s23, 0x20000
    """)
    for s in range(8):
        a(f"s_mov_b32 s24, {s*73728}")
        a(f"buffer_load_dwordx4 {vr(8+4*s,4)}, v3, s[16:19], s24 offen")
    for s in range(8):
        a(f"s_waitcnt vmcnt({7-s})")
        for e in range(4):
            x = 8+4*s+e
            if s == 0:
                a(f"v_lshlrev_b32 v{40+2*e}, 16, v{x}")
                a(f"v_and_b32 v{41+2*e}, 0xffff0000, v{x}")
            else:
                a(f"v_lshlrev_b32 v48, 16, v{x}")
                a(f"v_and_b32 v49, 0xffff0000, v{x}")
                a(f"v_pk_add_f32 {vr(40+2*e,2)}, {vr(40+2*e,2)}, v[48:49]")
    for e in range(4):
        a(f"v_cvt_pk_bf16_f32 v{8+e}, v{40+2*e}, v{41+2*e}")
    a("buffer_store_dwordx2 v[8:9], v4, s[20:23], s13 offen")
    a("buffer_store_dwordx2 v[10:11], v4, s[20:23], s13 offen offset:32")
    if opt.stamps:
        a(f"""
        s_waitcnt vmcnt(0)
        s_memrealtime s[24:25]
        s_cmp_ge_u32 s3, 4
        s_cbranch_scc1 L_rend
        s_lshl_b32 s26, s2, 4
        s_add_u32 s26, s26, s3
        s_lshl_b32 s26, s26, 7
        s_add_u32 s26, s26, {STAMP_OFF}
        s_add_u32 s16, s6, s26
        s_addc_u32 s17, s7, 0
        s_mov_b32 s18, 128
        s_waitcnt lgkmcnt(0)
        v_mov_b32 v8, s24
        v_mov_b32 v9, s25
        v_mov_b32 v10, 0
        buffer_store_dwordx2 v[8:9], v10, s[16:19], 0 offen offset:120
        """)
    a("L_rend:")
    a("s_endpgm")

def diag_kernel(a):
    a(f"""
    s_cmp_ge_u32 s2, 1
    s_cbranch_scc1 L_dend
    s_load_dwordx2 s[6:7], s[0:1], 96
    v_lshrrev_b32 v1, 2, v0
    v_and_b32 v2, 3, v0
    v_lshlrev_b32 v1, 11, v1
    v_add_u32 v4, 5, v2
    v_lshl_add_u32 v4, v4, 7, v1
    v_max_u32 v2, 1, v2
    v_lshl_add_u32 v1, v2, 7, v1
    s_waitcnt lgkmcnt(0)
    s_add_u32 s8, s6, {STAMP_OFF}
    s_addc_u32 s9, s7, 0
    s_mov_b32 s10, {512*1024}
    s_mov_b32 s11, 0x20000
    """)
    for i in range(16):
        a(f"s_mov_b32 s12, {i*32768}")
        a(f"buffer_load_dword v{8+i}, v1, s[8:11], s12 offen")
        a(f"buffer_load_dword v{24+i}, v1, s[8:11], s12 offen offset:{8*opt.diag}" if opt.diag < 20 else f"buffer_load_dword v{24+i}, v4, s[8:11], s12 offen")
    a("s_waitcnt vmcnt(0)")
    a("v_readfirstlane_b32 s13, v8")
    a("s_sub_u32 s13, s13, 100000")
    a("s_nop 1")
    for i in range(32):
        a(f"v_subrev_u32 v{8+i}, s13, v{8+i}")
    for i in range(1, 16):
        a(f"v_min_u32 v8, v8, v{8+i}")
        a(f"v_max_u32 v24, v24, v{24+i}")
    a("s_mov_b32 s14, -1\ns_mov_b32 s15, 0\ns_nop 1")
    for l in range(64):
        a(f"v_readlane_b32 s16, v8, {l}")
        a(f"v_readlane_b32 s17, v24, {l}")
        a("s_nop 3")
        a("s_min_u32 s14, s14, s16")
        a("s_max_u32 s15, s15, s17")
    a("""
    s_sub_u32 s15, s15, s14
    s_min_u32 s15, s15, 20000
    s_mul_i32 s15, s15, 10
    s_memrealtime s[18:19]
    s_waitcnt lgkmcnt(0)
    L_dspin:
    s_memrealtime s[20:21]
    s_waitcnt lgkmcnt(0)
    s_sub_u32 s20, s20, s18
    s_cmp_lt_u32 s20, s15
    s_cbranch_scc1 L_dspin
    L_dend:
    s_endpgm
    """)

def kd(name, vgpr, sgpr):
    acc = (vgpr + 3)//4*4
    return f""".section .rodata,"a"
.p2align 6
.amdhsa_kernel {name}
  .amdhsa_next_free_vgpr {vgpr}
  .amdhsa_next_free_sgpr {sgpr}
  .amdhsa_accum_offset {acc}
  .amdhsa_group_segment_fixed_size 0
  .amdhsa_kernarg_size 104
  .amdhsa_user_sgpr_count 2
  .amdhsa_user_sgpr_kernarg_segment_ptr 1
  .amdhsa_system_sgpr_workgroup_id_x 1
  .amdhsa_float_denorm_mode_32 {opt.denorm}
.end_amdhsa_kernel
"""

def build():
    main = NAME + "_kernel"
    red = "mha_reduce_kernel"
    out = []
    out.append("""; Two attention blocks (A, B) with cached K/V, outputs concatenated: out[b, q, br*576 + n].
; Kernarg: A_x A_k A_v A_wq A_wo (0..32)  B_x B_k B_v B_wq B_wo (40..72)  out 80  debug 88  ws 96""")
    single = opt.fused and opt.diag < 0 and not opt.extra_launch
    if single:
        out.append(f"; @launch grid=(256,1,1) block=(512,1,1) lds={LDS_BYTES}")
    else:
        out.append(f"; @launch kernel={main} grid=(256,1,1) block=(512,1,1) lds={LDS_BYTES}")
    if not opt.fused:
        out.append(f"; @launch kernel={red} grid=(256,1,1) block=(576,1,1) lds=0")
    if opt.diag >= 0:
        out.append(f"; @launch kernel=diag_kernel grid=(1,1,1) block=(64,1,1) lds=0")
    for _ in range(opt.extra_launch):
        out.append(f"; @launch kernel=nop_kernel grid=(1,1,1) block=(64,1,1) lds=0")
    out.append('.amdgcn_target "amdgcn-amd-amdhsa--gfx950"')
    out.append(".text")
    a = Asm()
    prologue(a); loader(a); compute(a)
    out.append(f".globl {main}\n.p2align 8\n.type {main},@function\n{main}:")
    out.append(a.text())
    if not opt.fused:
        a = Asm(); reduce_kernel(a)
        out.append(f".globl {red}\n.p2align 8\n.type {red},@function\n{red}:")
        out.append(a.text())
    if opt.diag >= 0:
        a = Asm(); diag_kernel(a)
        out.append(".globl diag_kernel\n.p2align 8\n.type diag_kernel,@function\ndiag_kernel:\n" + a.text())
        out.append(kd("diag_kernel", 48, 32))
        out.append(".text")
    if opt.extra_launch:
        out.append(".globl nop_kernel\n.p2align 8\n.type nop_kernel,@function\nnop_kernel:\n    s_endpgm\n")
        out.append(kd("nop_kernel", 8, 16))
        out.append(".text")
    out.append(kd(main, 256, 102))
    if not opt.fused: out.append(kd(red, 56, 32))
    return "\n".join(out)

if __name__ == "__main__":
    path = sys.argv[1]
    for kv in sys.argv[2:]:
        k, v = kv.split("=", 1)
        cur = getattr(opt, k)
        setattr(opt, k, type(cur)(int(v)) if isinstance(cur, (bool, int)) else v)
    open(path, "w").write(build())
```

```python
import sys, math, struct

NAME = "concat_heads__mha_block_cached__gqa_block_cached__near_ridge"

class Opt:
    stamps = 0
    kv_nt = 1
    sched = "0:x1|2:d0|1:x2,x3,k0|7:x4,x5,k1,k2,k3|15:x6,x7,k4,k5,k6|23:x8,k7,v0|31:v1,v2|32:v4|33:v5|35:v6,v7,v3"
    lastflag = 0
    st_pos = "1011"
    g_at = "14,15,17"
    sleeps = 1
    codepf = 1
opt = Opt()

class Asm:
    def __init__(self): self.l = []
    def __call__(self, s):
        for x in s.strip("\n").split("\n"):
            x = x.strip()
            if x: self.l.append(x if x.endswith(":") else "    " + x)
    def c(self, s): self.l.append("    ; " + s)
    def text(self): return "\n".join(self.l) + "\n"

def vr(a, n=1): return f"v{a}" if n == 1 else f"v[{a}:{a+n-1}]"

KBASE = 65536
XBASE = 90112
VBASE01 = 131072
WO_RING = 32768
STAGE = 0
LDS_BYTES = 163840
PART = 73728
FLAG_OFF = 24 << 20
STAMP_OFF = 32 << 20
KQ = 8*128*1152

S_WAVE, S_BR, S_B, S_HG, S_ROT, S_G, S_ROT2 = 3, 30, 31, 48, 49, 50, 14
S_X, S_K, S_V, S_WQ, S_WO, S_OUT, S_DBG, S_WS = 4, 6, 8, 10, 12, 24, 26, 28

def stamp(a, idx):
    if opt.stamps:
        a(f"s_memrealtime s[{64+2*idx}:{65+2*idx}]")
        a(f"s_memtime s[{80+2*idx}:{81+2*idx}]")

def stamp_flush(a, n):
    if not opt.stamps: return
    a(f"""
    s_waitcnt lgkmcnt(0)
    s_lshl_b32 s60, s2, 4
    s_add_u32 s60, s60, s{S_WAVE}
    s_lshl_b32 s60, s60, 7
    s_add_u32 s60, s60, {STAMP_OFF}
    s_add_u32 s56, s{S_WS}, s60
    s_addc_u32 s57, s{S_WS+1}, 0
    s_mov_b32 s58, 128
    s_mov_b32 s59, 0x20000
    v_mov_b32 v250, 0
    """)
    for i in range(2*n):
        a(f"v_mov_b32 v252, s{64+2*i}\nv_mov_b32 v253, s{65+2*i}")
        a(f"buffer_store_dwordx2 v[252:253], v250, s[56:59], 0 offen offset:{8*i}\ns_waitcnt vmcnt(0)")

def srd(a, d, base, off, size):
    a(f"s_add_u32 s{d}, s{base}, s{off}\ns_addc_u32 s{d+1}, s{base+1}, 0\ns_mov_b32 s{d+2}, {size}\ns_mov_b32 s{d+3}, 0x20000")

def cvt(d, s0): return f"v_cvt_pk_bf16_f32 v{d}, v{s0}, v{s0+1}"

class VM:
    def __init__(self, a): self.a = a; self.ops = []
    def issue(self, tag, n=1): self.ops += [tag] * n
    def count(self, tags):
        assert all(t in self.ops for t in tags), tags
        n = len(self.ops) - 1 - max(i for i, t in enumerate(self.ops) if t in tags)
        assert n <= 63
        return n
    def wait(self, *tags): self.a(f"s_waitcnt vmcnt({self.count(tags)})")

def prologue(a):
    a(f"""
    s_cmp_ge_u32 s2, 256
    s_cbranch_scc1 L_end
    s_bfe_u32 s{S_BR}, s2, 0x10002
    s_mul_i32 s52, s{S_BR}, 40
    s_load_dwordx8 s[4:11], s[0:1], s52
    s_add_u32 s53, s52, 32
    s_load_dwordx2 s[12:13], s[0:1], s53
    s_load_dwordx4 s[24:27], s[0:1], 80
    s_load_dwordx2 s[28:29], s[0:1], 96
    v_lshrrev_b32 v1, 6, v0
    v_and_b32 v0, 63, v0
    v_readfirstlane_b32 s{S_WAVE}, v1
    s_and_b32 s51, s2, 3
    s_lshr_b32 s{S_B}, s2, 4
    s_bfe_u32 s54, s2, 0x10003
    s_lshl_b32 s51, s51, 1
    s_add_u32 s{S_HG}, s51, s54
    s_mul_i32 s55, s{S_B}, 9
    s_lshr_b32 s{S_ROT2}, s55, 4
    s_lshl_b32 s54, s54, 2
    s_add_u32 s{S_ROT}, s{S_ROT2}, s54
    s_cmp_ge_u32 s{S_ROT}, 9
    s_cselect_b32 s54, 9, 0
    s_sub_u32 s{S_ROT}, s{S_ROT}, s54
    s_lshl_b32 s{S_G}, s{S_BR}, 4
    s_add_u32 s{S_G}, s{S_G}, s{S_B}
    """)
    stamp(a, 0)
    a(f"s_cmp_lt_u32 s{S_WAVE}, 4\ns_cbranch_scc1 L_compute")

def sum_setup(a, lane, frag_sreg):
    a(f"s_mul_i32 s52, s{S_G}, {8*PART}")
    srd(a, 36, S_WS, 52, 8*PART)
    a(f"""
    s_mov_b32 s40, s{S_OUT}
    s_mov_b32 s41, s{S_OUT+1}
    s_mov_b32 s42, {16*64*1152*2}
    s_mov_b32 s43, 0x20000
    s_lshl_b32 s52, s{frag_sreg}, 10
    v_lshl_add_u32 v22, v{lane}, 4, s52
    v_lshrrev_b32 v26, 2, v{lane}
    v_and_b32 v27, 3, v{lane}
    v_mul_u32_u24 v23, 2304, v26
    v_lshl_add_u32 v23, v27, 3, v23
    v_lshl_add_u32 v21, v27, 4, v26
    v_lshlrev_b32 v21, 2, v21
    s_and_b32 s52, s{frag_sreg}, 3
    s_lshl_b32 s52, s52, 4
    s_lshl_b32 s56, s{S_B}, 6
    s_add_u32 s52, s52, s56
    s_mul_i32 s15, s52, 2304
    s_mul_i32 s56, s{S_BR}, 1152
    s_add_u32 s15, s15, s56
    s_lshr_b32 s56, s{frag_sreg}, 2
    s_lshl_b32 s56, s56, 6
    s_add_u32 s15, s15, s56
    """)

def acc_in(a, acc, src, first):
    for e in range(4):
        if first:
            a(f"v_lshlrev_b32 v{acc+2*e}, 16, v{src+e}\nv_and_b32 v{acc+2*e+1}, 0xffff0000, v{src+e}")
        else:
            a(f"v_lshlrev_b32 v60, 16, v{src+e}\nv_and_b32 v61, 0xffff0000, v{src+e}")
            a(f"v_pk_add_f32 {vr(acc+2*e,2)}, {vr(acc+2*e,2)}, v[60:61]")

def put(a, pk, acc_list):
    for i, acc in enumerate(acc_list):
        for e in range(4): a(cvt(pk+4*i+e, acc+2*e))
        for e in range(4): a(f"ds_bpermute_b32 v{pk+4*i+e}, v21, v{pk+4*i+e}")
    a("s_lshl_b32 s57, s45, 7\ns_add_u32 s57, s57, s15")
    for i in range(len(acc_list)):
        a(f"s_waitcnt lgkmcnt({4*(len(acc_list)-1-i)})")
        a(f"buffer_store_dwordx2 {vr(pk+4*i,2)}, v23, s[40:43], s57 offen")
        a(f"buffer_store_dwordx2 {vr(pk+4*i+2,2)}, v23, s[40:43], s57 offen offset:32")
        if i + 1 < len(acc_list): a(f"s_add_u32 s57, s57, {16*2304}")

def poll_issue(a): a("s_load_dwordx8 s[72:79], s[16:17], s52 glc")

def poll_spin(a, label, need):
    a(f"s_mov_b32 s46, 0x10000\n{label}:\ns_waitcnt lgkmcnt(0)")
    a("s_lshl1_add_u32 s79, s79, s78")
    for k in range(5, -1, -1): a(f"s_lshl1_add_u32 s79, s79, s{72+k}")
    a(f"""
    s_mul_i32 s79, s79, 0x101
    s_lshr_b32 s79, s79, s{S_HG}
    s_and_b32 s79, s79, {need}
    s_cmp_eq_u32 s79, {need}
    s_cbranch_scc1 {label}_ok
    s_sub_u32 s46, s46, 1
    s_cbranch_scc1 {label}_ok
    {f's_sleep {opt.sleeps}' if opt.sleeps else ''}
    """)
    poll_issue(a)
    a(f"s_branch {label}\n{label}_ok:")

def loader(a):
    vm = VM(a)
    nt = " nt" if opt.kv_nt else ""
    SX, SWQ, SK, SV, SWO = 32, 36, 40, 44, 60
    a.c("---------------- loader waves ----------------")
    a(f"""
    s_sub_u32 s51, s{S_WAVE}, 4
    v_lshrrev_b32 v12, 3, v0
    v_mul_u32_u24 v12, 1152, v12
    v_lshrrev_b32 v13, 4, v0
    v_and_b32 v14, 7, v0
    v_xor_b32 v14, v14, v13
    v_lshl_add_u32 v5, v14, 4, v12
    v_xor_b32 v14, 4, v14
    v_lshl_add_u32 v6, v14, 4, v12
    v_add_u32 v6, 8192, v6
    s_lshl_b32 s53, s51, 12
    s_lshl_b32 s59, s51, 11
    s_mul_i32 s54, s51, {16*1152}
    s_lshl_b32 s55, s{S_ROT}, 7
    s_add_u32 s54, s54, s55
    s_mov_b32 s55, s{S_ROT}
    s_lshl_b32 s57, s{S_ROT}, 19
    s_lshl_b32 s56, s51, 15
    s_add_u32 s57, s57, s56
    s_and_b32 s56, s51, 1
    s_lshl_b32 s56, s56, 3
    v_xor_b32 v10, s56, v0
    v_mul_u32_u24 v11, {2048-256}, v13
    """)
    for m in range(4):
        a(f"v_xor_b32 v{1+m}, {2*m}, v10\nv_lshl_add_u32 v{1+m}, v{1+m}, 4, v11")
        if m: a(f"v_add_u32 v{1+m}, {m*(8192-1024)}, v{1+m}")
    a(f"""
    s_mul_i32 s44, s{S_B}, 73728
    s_lshl_b32 s45, s{S_HG}, 8
    s_sub_u32 s{SWQ+2}, {576*8192}, s45
    s_mov_b32 s{SWQ+3}, 0x20000
    s_mov_b32 s{SX+2}, 73728
    s_mov_b32 s{SX+3}, 0x20000
    s_waitcnt lgkmcnt(0)
    s_add_u32 s{SX}, s{S_X}, s44
    s_addc_u32 s{SX+1}, s{S_X+1}, 0
    s_add_u32 s{SWQ}, s{S_WQ}, s45
    s_addc_u32 s{SWQ+1}, s{S_WQ+1}, 0
    """)
    def group(tag, m0, pre, vregs, srdr, so, flags, post):
        a(m0); a(pre or "s_nop 0")
        for m, v in enumerate(vregs):
            a(f"buffer_load_dwordx4 v{v}, s[{srdr}:{srdr+3}], s{so} offen offset:{m*1024}{flags} lds")
        vm.issue(tag, len(vregs))
        a(post)
    def xblk(i):
        group(f"x{i}", f"s_add_u32 m0, s59, {XBASE + i*8192}", "s_add_u32 s55, s55, 1", (5, 6), SX, 54, "",
              "s_add_u32 s54, s54, 128\ns_cmp_eq_u32 s55, 9\ns_cselect_b32 s55, 0, s55\ns_cselect_b32 s58, 1152, 0\ns_sub_u32 s54, s54, s58")
    def wq(u):
        post = f"s_add_u32 s57, s57, {16*8192}"
        if u % 4 == 3: post += f"\ns_cmp_ge_u32 s57, {576*8192}\ns_cselect_b32 s58, {576*8192}, 0\ns_sub_u32 s57, s57, s58"
        group(f"w{u}", f"s_add_u32 m0, s53, {(u%4)*16384}", None, (1, 2, 3, 4), SWQ, 57, "", post)
    kvoff = lambda n: (n >> 1)*8*16384 + (n & 1)*8192
    def kblk(n):
        group(f"k{n}", f"s_add_u32 m0, s59, {KBASE + n*8192}", f"s_add_u32 s56, s59, {kvoff(n)}", (7, 8), SK, 56, nt, "")
    def vblk(n):
        dst = VBASE01 + n*8192 if n < 4 else (n-4)*8192
        group(f"v{n}", f"s_add_u32 m0, s59, {dst}", f"s_add_u32 s56, s59, {kvoff(n)}", (9, 10), SV, 56, nt, "")
    def wo(t):
        post = f"s_add_u32 s54, s54, {KQ}" if t % 4 != 3 else f"""
            s_and_b32 s55, s55, 7
            s_add_u32 s58, s55, s{S_ROT2}
            s_cmp_ge_u32 s58, 8
            s_cselect_b32 s56, -8, 1
            s_add_u32 s58, s58, s56
            s_lshl_b32 s58, s58, 7
            s_add_u32 s54, s58, s47"""
        group(f"o{t}", f"s_add_u32 m0, s53, {((t+2)%10)*16384}", "s_add_u32 s55, s55, 1" if t % 4 == 3 else None,
              (16, 17, 18, 19), SWO, 54, "", post)
    xblk(0); wq(0); wq(1)
    if opt.codepf:
        a.c("pull the code that runs later into L2: 192 B per loader wave")
        a(f"""
        s_getpc_b64 s[62:63]
        L_pc:
        s_lshr_b32 s52, s2, 3
        s_lshl_b32 s52, s52, 2
        s_add_u32 s52, s52, s51
        s_mul_i32 s52, s52, 192
        s_min_u32 s52, s52, L_end - L_att - 192
        s_add_u32 s52, s52, L_att - L_pc
        s_add_u32 s62, s62, s52
        s_addc_u32 s63, s63, 0
        s_load_dword s100, s[62:63], 0
        s_load_dword s101, s[62:63], 64
        s_load_dword s100, s[62:63], 128
        """)
    a(f"s_lshl_b32 s52, s{S_B}, 5\ns_add_u32 s52, s52, s{S_HG}\ns_lshl_b32 s52, s52, 14")
    srd(a, SK, S_K, 52, 25*16384)
    srd(a, SV, S_V, 52, 25*16384)
    a(f"""
    s_and_b32 s52, s51, 1
    s_lshl_b32 s52, s52, 3
    v_lshlrev_b32 v12, 8, v13
    v_and_b32 v14, 15, v0
    v_xor_b32 v15, v14, v13
    v_xor_b32 v15, s52, v15
    v_lshl_add_u32 v7, v15, 4, v12
    v_xor_b32 v15, 4, v15
    v_lshl_add_u32 v8, v15, 4, v12
    v_lshlrev_b32 v16, 1, v13
    v_xor_b32 v16, v16, v14
    v_lshl_add_u32 v9, v16, 4, v12
    v_xor_b32 v16, 8, v16
    v_lshl_add_u32 v10, v16, 4, v12
    s_mul_i32 s52, s{S_HG}, {128*1152}
    """)
    srd(a, SWO, S_WO, 52, 3*KQ + 128*1152)
    a(f"""
    v_lshrrev_b32 v12, 3, v0
    v_mul_u32_u24 v12, 1152, v12
    v_lshlrev_b32 v14, 1, v13
    v_and_b32 v15, 7, v0
    v_xor_b32 v14, v14, v15
    v_lshl_add_u32 v16, v14, 4, v12
    v_add_u32 v17, 8192, v16
    v_add_u32 v18, 16384, v16
    v_add_u32 v19, 24576, v16
    s_lshl_b32 s52, s{S_G}, 12
    s_add_u32 s52, s52, {FLAG_OFF}
    """)
    srd(a, 16, S_WS, 52, 4096)
    a.c("only wave 4 of the group's first workgroup gets a non-empty descriptor: it clears the flags and announces that later")
    a(f"""
    s_mov_b32 s20, s{S_DBG}
    s_mov_b32 s21, s{S_DBG+1}
    s_mov_b32 s22, 256
    s_mov_b32 s23, 0x20000
    s_lshl_b32 s52, s{S_G}, 2
    v_mov_b32 v72, s52
    s_add_u32 s56, s{S_HG}, s51
    s_cmp_eq_u32 s56, 0
    s_cselect_b32 s98, 4096, 0
    s_mov_b32 s96, s16
    s_mov_b32 s97, s17
    s_mov_b32 s99, 0x20000
    v_mov_b32 v32, 0
    v_mov_b32 v33, 0
    v_mov_b32 v34, 0
    v_mov_b32 v35, 0
    v_lshlrev_b32 v36, 4, v0
    v_mov_b32 v31, 1
    buffer_store_dwordx4 v[32:35], v36, s[96:99], 0 offen sc1
    buffer_store_dwordx4 v[32:35], v36, s[96:99], 0 offen offset:1024 sc1
    """)
    vm.issue("z", 2)
    def announce(_):
        vm.wait("z")
        a("s_mov_b32 s96, s20\ns_mov_b32 s97, s21\ns_lshr_b32 s98, s98, 4\nbuffer_store_dword v31, v72, s[96:99], 0 offen sc1")
        vm.issue("d")
    F = {"x": xblk, "k": kblk, "v": vblk, "d": announce}
    ev = {s: [] for s in range(36)}
    for item in opt.sched.split("|"):
        st, names = item.split(":"); st = int(st)
        for nm in names.split(","):
            n = int(nm[1:])
            assert st >= {"d": 1, "x": -1, "k": 4*(n-3)+3 if n >= 3 else -1, "v": 4*(n+5)+3 if n < 4 else 32+(n-4)//2}[nm[0]]
            assert nm[0] != "x" or st < 4*n - 1
            ev[st].append(nm)
    vm.wait("w0")
    a("s_barrier")
    wq(2); wq(3)
    a.c("-- barrier s: stage s+1 has landed, stage s has been read")
    for s in range(36):
        need = [f"w{s+1}"] if s < 35 else [f"k{n}" for n in range(8)]
        if s % 4 == 3 and s < 35: need.append(f"x{(s+1)//4}")
        vm.wait(*need)
        a("s_barrier")
        if s + 4 < 36: wq(s + 4)
        for nm in ev[s]: F[nm[0]](int(nm[1:]))
    a.c("-- V and the first Wo stages arrive under the attention part; then one barrier per two Wo stages")
    a(f"""
    L_att:
    s_mul_i32 s47, s51, {32*1152}
    s_lshl_b32 s52, s{S_ROT2}, 7
    s_add_u32 s54, s47, s52
    s_mov_b32 s55, s{S_HG}
    """)
    wo(0); wo(1)
    a("s_lshl_b32 s45, s51, 1")
    sum_setup(a, 0, 45)
    a(f"""
    s_lshl_b32 s52, s{S_HG}, 13
    v_add_u32 v22, s52, v22
    v_lshl_add_u32 v20, v0, 4, s59
    s_add_u32 s45, s{S_HG}, s{S_ROT2}
    s_cmp_ge_u32 s45, 8
    s_cselect_b32 s56, -8, 1
    s_add_u32 s45, s45, s56
    s_lshl_b32 s52, s{S_HG}, 7
    s_lshl_b32 s56, s51, 5
    s_add_u32 s52, s52, s56
    s_mov_b32 s44, s{S_HG}
    """)
    dbg = "buffer_load_dword v29, v72, s[20:23], 0 offen sc1"
    a(dbg); vm.issue("dbg")
    vm.wait(*[f"v{n}" for n in range(8)])
    a("s_barrier")
    wo(2); wo(3)
    vm.wait("o0")
    a("s_barrier")
    wo(4); wo(5)
    def fetch(t):
        a(f"s_sub_u32 s44, s44, 1\ns_and_b32 s44, s44, 7\ns_mul_i32 s57, s44, {PART}")
        for qi in range(2):
            a(f"buffer_load_dwordx4 {vr(80+8*t+4*qi,4)}, v22, s[36:39], s57 offen offset:{qi*1024} sc1")
        vm.issue(f"g{t}", 2)
    ga, gb, gc = [int(x) for x in opt.g_at.split(",")]
    nxt = 6
    for i in range(18):
        vm.wait(f"o{min(2*i+2, 35)}")
        a("s_barrier")
        if i == 1:
            vm.wait("dbg")
            a(f"""
            s_mov_b32 s46, 0x8000
            L_dbg:
            v_cmp_ne_u32 vcc, 1, v29
            s_sub_u32 s46, s46, 1
            s_cbranch_scc1 L_dbg_ok
            s_nop 3
            s_cbranch_vccz L_dbg_ok
            s_sleep 8
            {dbg}
            s_waitcnt vmcnt(0)
            s_branch L_dbg
            L_dbg_ok:
            """)
        for _ in range(2):
            if nxt < 36: wo(nxt); nxt += 1
        if i == ga: poll_spin(a, "L_pa", 0xf0); fetch(0); fetch(1)
        if i == gb: fetch(2); fetch(3)
        if i == gc: poll_spin(a, "L_pc4", 0x08); fetch(4)
        if i + 1 in (ga, gc) or i == 17: poll_issue(a)
    assert nxt == 36
    ACC = (64, 72 + 80)
    def add(t, first=False):
        ops = vm.ops
        for qi in range(2):
            a(f"s_waitcnt vmcnt({vm.count([f'g{t}']) + 1 - qi})")
            acc_in(a, ACC[qi], 80+8*t+4*qi, first)
    for t in range(5): add(t, t == 0)
    stamp(a, 1)
    poll_spin(a, "L_p5", 0x04); fetch(5); poll_issue(a)
    a("s_barrier")
    a(f"ds_read_b128 v[136:139], v20 offset:{STAGE}\nds_read_b128 v[140:143], v20 offset:{STAGE+1024}")
    poll_spin(a, "L_p6", 0x02); fetch(6)
    stamp(a, 2)
    for qi in range(2): acc_in(a, ACC[qi], 136+4*qi, False)
    add(5); add(6)
    if opt.stamps: a("s_waitcnt lgkmcnt(0)")
    put(a, 144, ACC)
    stamp(a, 3)
    if opt.stamps:
        a("L_fin:\ns_waitcnt vmcnt(0)"); stamp(a, 0); stamp_flush(a, 3)
    a("s_endpgm")

def mfma(a, d, A, B, C=None):
    a(f"v_mfma_f32_16x16x32_bf16 {vr(d,4)}, {vr(A,4)}, {vr(B,4)}, {'0' if C == 'zero' else vr(d if C is None else C, 4)}")

def weave(a, mf, fill, per=1, start=0):
    fill = list(fill)
    for k, m in enumerate(mf):
        m()
        for _ in range(per if k >= start else 0):
            if fill:
                x = fill.pop(0)
                if x: a(x)
    for f in fill: a(f)

def xreduce(a, op, m, mid):
    a(f"""
    s_nop 1
    v_permlane16_swap_b32 v{m[0]}, v{m[1]}
    v_permlane16_swap_b32 v{m[2]}, v{m[3]}
    s_nop 0
    {op} v{m[0]}, v{m[0]}, v{m[1]}
    {op} v{m[2]}, v{m[2]}, v{m[3]}
    s_nop 1
    v_permlane32_swap_b32 v{m[0]}, v{m[2]}
    s_nop 1
    {op} v{m[0]}, v{m[0]}, v{m[2]}
    {mid}
    v_mov_b32 v{m[2]}, v{m[0]}
    s_nop 1
    v_permlane32_swap_b32 v{m[0]}, v{m[2]}
    s_nop 1
    v_mov_b32 v{m[1]}, v{m[0]}
    v_mov_b32 v{m[3]}, v{m[2]}
    s_nop 1
    v_permlane16_swap_b32 v{m[0]}, v{m[1]}
    v_permlane16_swap_b32 v{m[2]}, v{m[3]}
    s_nop 1
    """)

def sn(i):
    return range(3, -1, -1) if i & 1 else range(4)

def compute(a):
    FB = [128, 176]
    AW, AX, L16, ROW4, C8, AK = 224, 232, 236, 237, 238, 240
    a.c("---------------- compute waves ----------------")
    a(f"""
    L_compute:
    v_lshrrev_b32 v1, 4, v0
    v_and_b32 v2, 15, v0
    v_lshrrev_b32 v{ROW4}, 2, v0
    v_and_b32 v3, 3, v0
    v_lshlrev_b32 v{C8}, 3, v3
    v_lshlrev_b32 v{L16}, 4, v0
    s_lshl_b32 s51, s{S_WAVE}, 8
    v_lshl_add_u32 v4, v{ROW4}, 10, v{C8}
    v_add_u32 v4, s51, v4
    v_and_b32 v5, 7, v{ROW4}
    """)
    for dt in range(8): a(f"v_xor_b32 v6, {dt}, v5\nv_lshl_add_u32 v{AW+dt}, v6, 5, v4")
    a(f"""
    v_lshrrev_b32 v4, 3, v2
    v_lshlrev_b32 v4, 10, v4
    v_and_b32 v5, 7, v2
    v_lshl_add_u32 v4, v5, 7, v4
    v_and_b32 v5, 1, v1
    v_lshlrev_b32 v7, 3, v5
    v_add_u32 v4, v4, v7
    v_add_u32 v4, {XBASE}, v4
    v_lshrrev_b32 v8, 1, v1
    v_lshrrev_b32 v5, 1, v2
    v_xor_b32 v5, v5, v8
    """)
    for sp in range(4): a(f"v_xor_b32 v6, {2*sp}, v5\nv_lshl_add_u32 v{AX+sp}, v6, 4, v4")
    a(f"""
    s_lshl_b32 s51, s{S_WAVE}, 14
    s_add_u32 s52, s51, {KBASE}
    v_lshl_add_u32 v4, v2, 8, v7
    v_add_u32 v4, s52, v4
    v_xor_b32 v5, v2, v8
    """)
    for i in range(8): a(f"v_xor_b32 v6, {2*i}, v5\nv_lshl_add_u32 v{AK+i}, v6, 4, v4")
    a(f"""
    s_add_u32 s52, s51, {VBASE01}
    s_cmp_ge_u32 s{S_WAVE}, 2
    s_cselect_b32 s53, {LDS_BYTES}, 0
    s_sub_u32 s52, s52, s53
    s_lshl_b32 s53, s{S_G}, 3
    s_add_u32 s53, s53, s{S_HG}
    s_mul_i32 s53, s53, {PART}
    s_waitcnt lgkmcnt(0)
    """)
    srd(a, 32, S_WS, 53, PART)
    for i in range(128): a(f"v_mov_b32 v{i}, 0")
    def reads(u):
        fb = FB[(u >> 1) & 1] + 2*(u & 1)
        return ([f"ds_read_b64 {vr(fb+32+4*qt,2)}, v{AX+u%4} offset:{qt*2048}" for qt in range(4)] +
                [f"ds_read_b64_tr_b16 {vr(fb+4*dt,2)}, v{AW+dt} offset:{(u%4)*16384}" for dt in range(8)])
    def half(buf, hf):
        return [lambda dt=dt, qt=qt: mfma(a, 16*dt+4*qt, FB[buf]+4*dt, FB[buf]+32+4*qt) for dt in range(4*hf, 4*hf+4) for qt in sn(dt)]
    def interval(buf, hf, fill):
        mf = half(buf, hf)
        weave(a, mf[:15], fill)
        a("s_waitcnt lgkmcnt(0)")
        mf[15]()
    a("s_barrier")
    stamp(a, 1)
    for r in reads(0): a(r)
    a("s_mov_b32 s54, 9\ns_waitcnt lgkmcnt(0)\ns_barrier")
    for r in reads(1): a(r)
    a("s_waitcnt lgkmcnt(0)")
    a.c("-- Q^T += Wq^T x^T : 16 rows of Wq per barrier, operands are read one step ahead")
    a("L_g1_loop:\ns_barrier")
    interval(0, 0, reads(2))
    a("s_barrier")
    interval(0, 1, reads(3) + ["s_sub_u32 s54, s54, 1", f"v_add_u32 v{AX}, 8192, v{AX}", f"v_add_u32 v{AX+1}, 8192, v{AX+1}"])
    a("s_cmp_eq_u32 s54, 0\ns_cbranch_scc1 L_g1_last\ns_barrier")
    interval(1, 0, reads(4) + [f"v_add_u32 v{AX+i}, 8192, v{AX+i}" for i in (2, 3)])
    a("s_barrier")
    interval(1, 1, reads(5))
    a("s_branch L_g1_loop")
    a.c("-- last k-step, K fragments, Q -> bf16, S^T = K Q^T, softmax over the keys, O^T = V^T P^T, O -> LDS")
    a("L_g1_last:\ns_barrier")
    KF = lambda kt, ds: 128 + 16*ds + 4*kt
    krd = lambda ds: [f"ds_read_b64 {vr(KF(kt,ds)+2*jj,2)}, v{AK+2*ds+jj} offset:{kt*4096}" for kt in range(4) for jj in range(2)]
    weave(a, half(1, 0), krd(0) + krd(1) + krd(2), per=2)
    QF = lambda ds, qt: 64*(ds >> 1) + 16*(ds & 1) + 4*qt
    qcvt = lambda ds: [cvt(QF(ds, qt)+2*u+e, 32*ds+16*u+4*qt+2*e) for qt in range(4) for u in range(2) for e in range(2)]
    av = [f"v_lshl_add_u32 v248, v{ROW4}, 8, v{C8}", "v_add_u32 v248, s52, v248", f"v_and_b32 v249, 7, v{ROW4}"]
    for dt in range(8): av += [f"v_xor_b32 v239, {dt}, v249", f"v_lshl_add_u32 v{AW+dt}, v239, 5, v248"]
    weave(a, half(1, 1), krd(3) + qcvt(0) + qcvt(1)[:8], per=2)
    stamp(a, 2)
    for x in qcvt(1)[8:]: a(x)
    a("s_waitcnt lgkmcnt(8)")
    S = lambda kt, qt: (32 if kt < 2 else 192) + 16*(kt & 1) + 4*qt
    g2 = lambda ds, kt, qt: (lambda: mfma(a, S(kt, qt), KF(kt, ds), QF(ds, qt), "zero" if ds == 0 else None))
    cbits = struct.unpack("<I", struct.pack("<f", math.log2(math.e) / math.sqrt(128.0)))[0]
    vals = [[S(kt, qt) + e for kt in range(4) for e in range(4)] for qt in range(4)]
    M = [240, 242, 244, 246]; SUM = [232, 234, 248, 250]
    def rowmax(qt):
        v = vals[qt]
        return ([f"v_max3_f32 v{M[qt]}, v{v[0]}, v{v[1]}, v{v[2]}"] +
                [f"v_max3_f32 v{M[qt]}, v{M[qt]}, v{v[i]}, v{v[i+1]}" for i in range(3, 15, 2)] +
                [f"v_max_f32 v{M[qt]}, v{M[qt]}, v{v[15]}"])
    weave(a, [g2(ds, kt, qt) for ds in range(2) for kt in range(4) for qt in sn(kt)],
          qcvt(2) + qcvt(3) + av + [f"s_mov_b32 s56, {hex(cbits)}", f"s_mov_b32 s57, {hex(cbits)}", "s_waitcnt lgkmcnt(0)"], per=2)
    for qt in range(4):
        weave(a, [g2(ds, kt, qt) for ds in (2, 3) for kt in range(4)], rowmax(qt-1) if qt else [], per=2, start=4)
    stamp(a, 3)
    m3 = rowmax(3)
    for x in ["s_nop 3"] + m3[:2] + ["s_nop 1"] + m3[2:]: a(x)
    xreduce(a, "v_max_f32", M, f"v_mul_f32 v{M[0]}, s56, v{M[0]}")
    for i in range(0, 16, 2):
        for qt in range(4):
            x = vals[qt][i]
            a(f"v_pk_fma_f32 {vr(x,2)}, {vr(x,2)}, s[56:57], {vr(M[qt],2)} op_sel_hi:[1,1,0] neg_lo:[0,0,1] neg_hi:[0,0,1]")
    for i in range(16):
        for qt in range(4): a(f"v_exp_f32 v{vals[qt][i]}, v{vals[qt][i]}")
    for qt in range(4): a(f"v_pk_add_f32 {vr(SUM[qt],2)}, {vr(vals[qt][0],2)}, {vr(vals[qt][2],2)}")
    for i in range(4, 16, 2):
        for qt in range(4): a(f"v_pk_add_f32 {vr(SUM[qt],2)}, {vr(SUM[qt],2)}, {vr(vals[qt][i],2)}")
    for qt in range(4): a(f"v_add_f32 v{SUM[qt]}, v{SUM[qt]}, v{SUM[qt]+1}")
    xreduce(a, "v_add_f32", SUM, f"v_rcp_f32 v{SUM[0]}, v{SUM[0]}\ns_nop 0")
    PF = lambda ks, qt: 96 + 16*ks + 4*qt
    for i in range(0, 16, 2):
        for qt in range(4):
            x = vals[qt][i]
            a(f"v_pk_mul_f32 {vr(x,2)}, {vr(x,2)}, {vr(SUM[qt],2)} op_sel_hi:[1,0]")
    for ks in range(2):
        for qt in range(4):
            for u in range(2):
                for e in range(2): a(cvt(PF(ks, qt)+2*u+e, S(2*ks+u, qt)+2*e))
    VF = lambda dt, ks: 128 + 16*(dt >> 1) + 8*ks + 4*(dt & 1)
    vrd = [f"ds_read_b64_tr_b16 {vr(VF(dt,ks)+2*j,2)}, v{AW+dt} offset:{ks*8192+j*4096}" for dt in range(8) for ks in range(2) for j in range(2)]
    a("s_barrier")
    for r in vrd[:16]: a(r)
    a("s_waitcnt lgkmcnt(8)")
    OT = lambda dt, qt: (16*dt if dt < 6 else 192 + 16*(dt-6)) + 4*qt
    g3 = lambda p: [lambda ks=ks, dt=dt, qt=qt: mfma(a, OT(dt, qt), VF(dt, ks), PF(ks, qt), "zero" if ks == 0 else None)
                    for ks in range(2) for dt in (2*p, 2*p+1) for qt in sn(dt)]
    OW, OR0, OR1, PV, AOB, AO, FV, ONE = 242, 243, 244, 245, 246, 248, 252, 253
    ad = f"""
    s_lshr_b32 s53, s{S_WAVE}, 1
    s_and_b32 s55, s{S_WAVE}, 1
    v_add_u32 v{OW}, s52, v{L16}
    s_lshl_b32 s55, s55, 11
    v_add_u32 v{OR1}, s55, v{L16}
    v_add_u32 v{OR0}, {VBASE01}, v{OR1}
    s_lshl_b32 s55, s{S_WAVE}, 11
    v_add_u32 v{PV}, s55, v{L16}
    s_lshl_b32 s53, s53, 1
    v_lshl_add_u32 v239, v{ROW4}, 7, v{C8}
    v_bfe_u32 v240, v{ROW4}, 1, 2
    v_xor_b32 v240, s53, v240
    v_lshl_add_u32 v{AOB}, v240, 5, v239
    v_xor_b32 v240, 1, v240
    v_lshl_add_u32 v{AOB+1}, v240, 5, v239
    v_add_u32 v{AO}, {WO_RING}, v{AOB}
    v_add_u32 v{AO+1}, {WO_RING}, v{AOB+1}
    s_lshl_b32 s55, s{S_G}, 12
    s_add_u32 s55, s55, {FLAG_OFF}
    s_add_u32 s16, s{S_WS}, s55
    s_addc_u32 s17, s{S_WS+1}, 0
    s_mov_b32 s18, 0
    s_mov_b32 s19, 0x20000
    s_lshl_b32 s55, s{S_WAVE}, 5
    s_lshl_b32 s53, s{S_HG}, 2
    s_add_u32 s55, s55, s53
    v_lshl_add_u32 v{FV}, v{L16}, 8, s55
    v_mov_b32 v{ONE}, 1
    """.strip().split("\n")
    OF = lambda k4, qt: 128 + 16*k4 + 4*qt
    def ocvt(k4):
        r = []
        for qt in range(4):
            r += [cvt(OF(k4, qt)+2*u+e, OT(2*k4+u, qt)+2*e) for u in range(2) for e in range(2)]
            r.append(f"ds_write_b128 v{OW}, {vr(OF(k4,qt),4)} offset:{(k4*4+qt)*1024}")
        return r
    weave(a, g3(0), [x for p in zip(vrd[16:24], ad[:8]) for x in p] + ad[8:24], per=2)
    a("s_waitcnt lgkmcnt(8)")
    weave(a, g3(1), vrd[24:32] + ad[24:26] + ocvt(0), per=2)
    a("s_waitcnt lgkmcnt(12)")
    weave(a, g3(2), ad[26:] + [None]*6 + ocvt(1), per=2)
    a("s_waitcnt lgkmcnt(8)")
    weave(a, g3(3), ocvt(2), per=2, start=4)
    a("s_nop 6")
    for x in ocvt(3): a(x)
    a("s_waitcnt lgkmcnt(0)\ns_barrier")
    stamp(a, 5)
    ACCA, ACCB, WB, PK = 128, 144, 160, 192
    wread = lambda k4, ni: [f"ds_read_b64_tr_b16 {vr(WB+8*k4+4*ni+2*j,2)}, v{AO+ni} offset:{k4*4096+j*2048}" for j in range(2)]
    oread = lambda h: [f"ds_read_b128 {vr(32*h+8*k4+4*qi,4)}, v{OR0 if h < 2 else OR1} offset:{(h&1)*16384+(k4*4+qi)*1024}" for k4 in range(4) for qi in range(2)]
    for r in oread(0) + oread(1): a(r)
    for k4 in range(4):
        for ni in range(2):
            for r in wread(k4, ni)[:1 if (k4, ni) == (3, 1) else 2]: a(r)
    a(f"""
    s_mov_b32 s54, 0
    s_mov_b32 s55, {WO_RING+16384}
    v_add_u32 v{AO}, s55, v{AOB}
    s_mov_b32 s58, {8*8192}
    s_mov_b32 s59, s{S_HG}
    s_mov_b32 s60, 0
    s_waitcnt lgkmcnt(0)
    """)
    cvts = [cvt(PK+4*qi+2*ni+e, ACCB+8*qi+4*ni+2*e) for qi in range(2) for ni in range(2) for e in range(2)]
    store = lambda qi: f"buffer_store_dwordx4 {vr(PK+4*qi,4)}, v{PV}, s[32:35], s58 offen offset:{qi*1024} sc1"
    flagst = f"buffer_store_dword v{ONE}, v{FV}, s[16:19], s60 offen sc1"
    def block(extra):
        for kq in range(4):
            if kq % 2 == 0: a("s_barrier")
            ex = list(extra[kq])
            sl = ["s_add_u32 s55, s55, 16384", f"s_cmp_eq_u32 s55, {LDS_BYTES}", "s_cselect_b32 s55, 0, s55"]
            ex = ex[:5] + [None]*(5 - len(ex[:5])) + sl + ex[5:] if len(ex) <= 7 else ex + [sl[0] + "\n" + sl[1], sl[2]]
            for k4 in range(4):
                for ni in range(2):
                    for qj in range(2):
                        qi = qj ^ ni; t = 8*qi + 4*ni; g = 4*k4 + 2*ni + qj
                        if kq == 3 and k4 == 3: mfma(a, ACCB+t, WB+8*k4+4*ni, 32*kq+8*k4+4*qi, ACCA+t)
                        else: mfma(a, ACCA+t, WB+8*k4+4*ni, 32*kq+8*k4+4*qi, "zero" if kq == 0 and k4 == 0 else None)
                        if qj == 1: a(wread(k4, ni)[0])
                        else: a(wread(*((k4, 0) if ni == 1 else ((k4 - 1) % 4, 1)))[1])
                        if g % 4 == 3: a("s_waitcnt lgkmcnt(11)")
                        elif g == 0: a(f"v_add_u32 v{AO+1}, s55, v{AOB+1}")
                        elif g == 14: a(f"v_add_u32 v{AO}, s55, v{AOB}")
                        elif ex:
                            x = ex.pop(0)
                            if x: a(x)
            assert not ex, (kq, ex)
    a.c("-- out^T block = Wo^T O^T, K = 512 ; the block before is converted, stored and (one later) flagged underneath")
    block([[x + "\n" + y for x, y in zip(oread(2), oread(3))], [], [], []])
    a("L_p2_loop:")
    ex = [cvts, [None]*7, [None]*7, [None]*7]
    p = [int(c) for c in opt.st_pos]
    ex[p[0]][p[1]] = store(0)
    ex[p[2]][p[3]] = store(1) + "\ns_waitcnt vmcnt(2)\n" + flagst
    ex[3][0:7] = ["s_lshr_b32 s60, s58, 6", "s_add_u32 s59, s59, 1", "s_and_b32 s59, s59, 7", "s_lshl_b32 s58, s59, 13",
                  "s_mov_b32 s18, 4096", None, "s_add_u32 s54, s54, 1"]
    if opt.lastflag:
        ex[3][5] = f"s_cmp_lg_u32 s54, 7\ns_cbranch_scc1 L_notlast\ns_waitcnt vmcnt(1)\n{flagst}\nL_notlast:"
    block(ex)
    a("s_cmp_lg_u32 s54, 8\ns_cbranch_scc1 L_p2_loop")
    stamp(a, 6)
    a.c("-- flag of the last published block; the own block goes to the loader waves through LDS")
    a(f"""
    {"s_waitcnt vmcnt(1)" if not opt.lastflag else "s_nop 0"}
    {flagst if not opt.lastflag else "s_nop 0"}
    s_lshr_b32 s52, s{S_HG}, 1
    s_lshl_b32 s52, s52, 5
    s_add_u32 s52, s52, 1024
    s_nop 1
    """)
    for x in cvts[:4] + [f"ds_write_b128 v{PV}, {vr(PK,4)} offset:{STAGE}"] + cvts[4:] + [f"ds_write_b128 v{PV}, {vr(PK+4,4)} offset:{STAGE+1024}"]: a(x)
    a(f"s_cmp_eq_u32 s{S_WAVE}, 0\ns_cbranch_scc1 L_last\ns_waitcnt lgkmcnt(0)\ns_barrier")
    if opt.stamps:
        stamp(a, 4); a("s_waitcnt vmcnt(0)"); stamp(a, 7); stamp_flush(a, 8)
    a("s_endpgm")
    a.c("-- wave 0 sums fragment hg of the shared block")
    a("L_last:\ns_waitcnt lgkmcnt(0)")
    poll_issue(a)
    a("s_barrier")
    a(f"s_mov_b32 s47, s52\nv_lshrrev_b32 v30, 4, v{L16}")
    sum_setup(a, 30, S_HG)
    a(f"s_mov_b32 s52, s47\ns_mov_b32 s45, s{S_ROT2}\ns_mov_b32 s44, {8*8192}")
    if opt.stamps: a(f"s_mov_b32 s{S_WAVE}, 8"); stamp(a, 1)
    poll_spin(a, "L_pl", 0xff)
    stamp(a, 2)
    for src in range(8):
        a(f"buffer_load_dwordx4 {vr(80+4*src,4)}, v22, s[36:39], s44 offen sc1")
        if src < 7: a(f"s_add_u32 s44, s44, {PART}")
    for src in range(8):
        a(f"s_waitcnt vmcnt({7-src})")
        acc_in(a, 64, 80+4*src, src == 0)
    if opt.stamps: a("s_waitcnt lgkmcnt(0)")
    put(a, 144, (64,))
    if opt.stamps:
        stamp(a, 3); a("s_branch L_fin")
    a("L_end:\ns_endpgm")

HEAD = """; Two attention blocks (A, B) with cached K/V, outputs concatenated: out[b, q, br*576 + n].
; d_debug[group].
; Kernarg: A_x A_k A_v A_wq A_wo (0..32)  B_x B_k B_v B_wq B_wo (40..72)  out 80  debug 88  ws 96"""

def build():
    main = NAME + "_kernel"
    a = Asm()
    prologue(a); loader(a); compute(a)
    return f"""{HEAD}
; @launch grid=(256,1,1) block=(512,1,1) lds={LDS_BYTES}
.amdgcn_target "amdgcn-amd-amdhsa--gfx950"
.text
.globl {main}
.p2align 8
.type {main},@function
{main}:
{a.text()}
.section .rodata,"a"
.p2align 6
.amdhsa_kernel {main}
  .amdhsa_next_free_vgpr 256
  .amdhsa_next_free_sgpr 102
  .amdhsa_accum_offset 256
  .amdhsa_group_segment_fixed_size 0
  .amdhsa_kernarg_size 104
  .amdhsa_user_sgpr_count 2
  .amdhsa_user_sgpr_kernarg_segment_ptr 1
  .amdhsa_system_sgpr_workgroup_id_x 1
  .amdhsa_float_denorm_mode_32 3
.end_amdhsa_kernel
"""

if __name__ == "__main__":
    for kv in sys.argv[2:]:
        k, v = kv.split("=", 1)
        setattr(opt, k, type(getattr(opt, k))(v))
    open(sys.argv[1], "w").write(build())
```

```python
import sys, math, struct

NAME = "concat_heads__mha_block_cached__gqa_block_cached__near_ridge"

class Opt:
    stamps = 0
    kv_nt = 1
    sched = "0:x1|2:d0|3:x2,x3,k0|9:x4,x5,k1,k2,k3|17:x6,x7,k4,k5,k6|25:x8,k7,v0|31:v1,v2|32:v4|33:v5|35:v6,v7,v3"
    lastflag = 0
    st_pos = "1011"
    g_at = "15,16,17"
    sleeps = 1
    codepf = 1
    q1 = "6,10"
    al1 = -1
    al2 = -1
    al3 = -1
    pfb = 192
opt = Opt()

class Asm:
    def __init__(self): self.l = []
    def __call__(self, s):
        for x in s.strip("\n").split("\n"):
            x = x.strip()
            if x: self.l.append(x if x.endswith(":") else "    " + x)
    def c(self, s): self.l.append("    ; " + s)
    def text(self): return "\n".join(self.l) + "\n"

def vr(a, n=1): return f"v{a}" if n == 1 else f"v[{a}:{a+n-1}]"

KBASE = 65536
XBASE = 90112
VBASE01 = 131072
WO_RING = 32768
STAGE = 0
LDS_BYTES = 163840
PART = 73728
FLAG_OFF = 24 << 20
STAMP_OFF = 32 << 20
KQ = 8*128*1152

S_WAVE, S_BR, S_B, S_HG, S_ROT, S_G, S_ROT2 = 3, 30, 31, 48, 49, 50, 14
S_X, S_K, S_V, S_WQ, S_WO, S_OUT, S_DBG, S_WS = 4, 6, 8, 10, 12, 24, 26, 28

def stamp(a, idx):
    if opt.stamps:
        a(f"s_memrealtime s[{64+2*idx}:{65+2*idx}]")
        a(f"s_memtime s[{80+2*idx}:{81+2*idx}]")

def stamp_flush(a, n):
    if not opt.stamps: return
    a(f"""
    s_waitcnt lgkmcnt(0)
    s_lshl_b32 s60, s2, 4
    s_add_u32 s60, s60, s{S_WAVE}
    s_lshl_b32 s60, s60, 7
    s_add_u32 s60, s60, {STAMP_OFF}
    s_add_u32 s56, s{S_WS}, s60
    s_addc_u32 s57, s{S_WS+1}, 0
    s_mov_b32 s58, 128
    s_mov_b32 s59, 0x20000
    v_mov_b32 v250, 0
    """)
    for i in range(2*n):
        a(f"v_mov_b32 v252, s{64+2*i}\nv_mov_b32 v253, s{65+2*i}")
        a(f"buffer_store_dwordx2 v[252:253], v250, s[56:59], 0 offen offset:{8*i}\ns_waitcnt vmcnt(0)")

def srd(a, d, base, off, size):
    a(f"s_add_u32 s{d}, s{base}, s{off}\ns_addc_u32 s{d+1}, s{base+1}, 0\ns_mov_b32 s{d+2}, {size}\ns_mov_b32 s{d+3}, 0x20000")

def cvt(d, s0): return f"v_cvt_pk_bf16_f32 v{d}, v{s0}, v{s0+1}"

class VM:
    def __init__(self, a): self.a = a; self.ops = []
    def issue(self, tag, n=1): self.ops += [tag] * n
    def count(self, tags):
        assert all(t in self.ops for t in tags), tags
        n = len(self.ops) - 1 - max(i for i, t in enumerate(self.ops) if t in tags)
        assert n <= 63
        return n
    def wait(self, *tags): self.a(f"s_waitcnt vmcnt({self.count(tags)})")

def prologue(a):
    a(f"""
    s_cmp_ge_u32 s2, 256
    s_cbranch_scc1 L_end
    s_bfe_u32 s{S_BR}, s2, 0x10002
    s_mul_i32 s52, s{S_BR}, 40
    s_load_dwordx8 s[4:11], s[0:1], s52
    s_add_u32 s53, s52, 32
    s_load_dwordx2 s[12:13], s[0:1], s53
    s_load_dwordx4 s[24:27], s[0:1], 80
    s_load_dwordx2 s[28:29], s[0:1], 96
    v_lshrrev_b32 v1, 6, v0
    v_and_b32 v0, 63, v0
    v_readfirstlane_b32 s{S_WAVE}, v1
    s_and_b32 s51, s2, 3
    s_lshr_b32 s{S_B}, s2, 4
    s_bfe_u32 s54, s2, 0x10003
    s_lshl_b32 s51, s51, 1
    s_add_u32 s{S_HG}, s51, s54
    s_mul_i32 s55, s{S_B}, 9
    s_lshr_b32 s{S_ROT2}, s55, 4
    s_lshl_b32 s54, s54, 2
    s_add_u32 s{S_ROT}, s{S_ROT2}, s54
    s_cmp_ge_u32 s{S_ROT}, 9
    s_cselect_b32 s54, 9, 0
    s_sub_u32 s{S_ROT}, s{S_ROT}, s54
    s_lshl_b32 s{S_G}, s{S_BR}, 4
    s_add_u32 s{S_G}, s{S_G}, s{S_B}
    """)
    stamp(a, 0)
    a(f"s_cmp_lt_u32 s{S_WAVE}, 4\ns_cbranch_scc1 L_compute")

def sum_setup(a, lane, frag_sreg):
    a(f"s_mul_i32 s52, s{S_G}, {8*PART}")
    srd(a, 36, S_WS, 52, 8*PART)
    a(f"""
    s_mov_b32 s40, s{S_OUT}
    s_mov_b32 s41, s{S_OUT+1}
    s_mov_b32 s42, {16*64*1152*2}
    s_mov_b32 s43, 0x20000
    s_lshl_b32 s52, s{frag_sreg}, 10
    v_lshl_add_u32 v22, v{lane}, 4, s52
    v_lshrrev_b32 v26, 2, v{lane}
    v_and_b32 v27, 3, v{lane}
    v_mul_u32_u24 v23, 2304, v26
    v_lshl_add_u32 v23, v27, 3, v23
    v_lshl_add_u32 v21, v27, 4, v26
    v_lshlrev_b32 v21, 2, v21
    s_and_b32 s52, s{frag_sreg}, 3
    s_lshl_b32 s52, s52, 4
    s_lshl_b32 s56, s{S_B}, 6
    s_add_u32 s52, s52, s56
    s_mul_i32 s15, s52, 2304
    s_mul_i32 s56, s{S_BR}, 1152
    s_add_u32 s15, s15, s56
    s_lshr_b32 s56, s{frag_sreg}, 2
    s_lshl_b32 s56, s56, 6
    s_add_u32 s15, s15, s56
    """)

def acc_in(a, acc, src, first):
    for e in range(4):
        if first:
            a(f"v_lshlrev_b32 v{acc+2*e}, 16, v{src+e}\nv_and_b32 v{acc+2*e+1}, 0xffff0000, v{src+e}")
        else:
            a(f"v_lshlrev_b32 v60, 16, v{src+e}\nv_and_b32 v61, 0xffff0000, v{src+e}")
            a(f"v_pk_add_f32 {vr(acc+2*e,2)}, {vr(acc+2*e,2)}, v[60:61]")

def put(a, pk, acc_list):
    for i, acc in enumerate(acc_list):
        for e in range(4): a(cvt(pk+4*i+e, acc+2*e))
        for e in range(4): a(f"ds_bpermute_b32 v{pk+4*i+e}, v21, v{pk+4*i+e}")
    a("s_lshl_b32 s57, s45, 7\ns_add_u32 s57, s57, s15")
    for i in range(len(acc_list)):
        a(f"s_waitcnt lgkmcnt({4*(len(acc_list)-1-i)})")
        a(f"buffer_store_dwordx2 {vr(pk+4*i,2)}, v23, s[40:43], s57 offen")
        a(f"buffer_store_dwordx2 {vr(pk+4*i+2,2)}, v23, s[40:43], s57 offen offset:32")
        if i + 1 < len(acc_list): a(f"s_add_u32 s57, s57, {16*2304}")

def poll_issue(a): a("s_load_dwordx8 s[72:79], s[16:17], s52 glc")

def poll_spin(a, label, need):
    a(f"s_mov_b32 s46, 0x10000\n{label}:\ns_waitcnt lgkmcnt(0)")
    a("s_lshl1_add_u32 s79, s79, s78")
    for k in range(5, -1, -1): a(f"s_lshl1_add_u32 s79, s79, s{72+k}")
    a(f"""
    s_mul_i32 s79, s79, 0x101
    s_lshr_b32 s79, s79, s{S_HG}
    s_and_b32 s79, s79, {need}
    s_cmp_eq_u32 s79, {need}
    s_cbranch_scc1 {label}_ok
    s_sub_u32 s46, s46, 1
    s_cbranch_scc1 {label}_ok
    {f's_sleep {opt.sleeps}' if opt.sleeps else ''}
    """)
    poll_issue(a)
    a(f"s_branch {label}\n{label}_ok:")

def loader(a):
    vm = VM(a)
    nt = " nt" if opt.kv_nt else ""
    SX, SWQ, SK, SV, SWO = 32, 36, 40, 44, 60
    a.c("---------------- loader waves ----------------")
    a(f"""
    s_sub_u32 s51, s{S_WAVE}, 4
    v_lshrrev_b32 v12, 3, v0
    v_mul_u32_u24 v12, 1152, v12
    v_lshrrev_b32 v13, 4, v0
    v_and_b32 v14, 7, v0
    v_xor_b32 v14, v14, v13
    v_lshl_add_u32 v5, v14, 4, v12
    v_xor_b32 v14, 4, v14
    v_lshl_add_u32 v6, v14, 4, v12
    v_add_u32 v6, 8192, v6
    s_lshl_b32 s53, s51, 12
    s_lshl_b32 s59, s51, 11
    s_mul_i32 s54, s51, {16*1152}
    s_lshl_b32 s55, s{S_ROT}, 7
    s_add_u32 s54, s54, s55
    s_mov_b32 s55, s{S_ROT}
    s_lshl_b32 s57, s{S_ROT}, 19
    s_lshl_b32 s56, s51, 15
    s_add_u32 s57, s57, s56
    s_and_b32 s56, s51, 1
    s_lshl_b32 s56, s56, 3
    v_xor_b32 v10, s56, v0
    v_mul_u32_u24 v11, {2048-256}, v13
    """)
    for m in range(4):
        a(f"v_xor_b32 v{1+m}, {2*m}, v10\nv_lshl_add_u32 v{1+m}, v{1+m}, 4, v11")
        if m: a(f"v_add_u32 v{1+m}, {m*(8192-1024)}, v{1+m}")
    a(f"""
    s_mul_i32 s44, s{S_B}, 73728
    s_lshl_b32 s45, s{S_HG}, 8
    s_sub_u32 s{SWQ+2}, {576*8192}, s45
    s_mov_b32 s{SWQ+3}, 0x20000
    s_mov_b32 s{SX+2}, 73728
    s_mov_b32 s{SX+3}, 0x20000
    s_waitcnt lgkmcnt(0)
    s_add_u32 s{SX}, s{S_X}, s44
    s_addc_u32 s{SX+1}, s{S_X+1}, 0
    s_add_u32 s{SWQ}, s{S_WQ}, s45
    s_addc_u32 s{SWQ+1}, s{S_WQ+1}, 0
    """)
    def group(tag, m0, pre, vregs, srdr, so, flags, post):
        a(m0); a(pre or "s_nop 0")
        for m, v in enumerate(vregs):
            a(f"buffer_load_dwordx4 v{v}, s[{srdr}:{srdr+3}], s{so} offen offset:{m*1024}{flags} lds")
        vm.issue(tag, len(vregs))
        a(post)
    def xblk(i):
        group(f"x{i}", f"s_add_u32 m0, s59, {XBASE + i*8192}", "s_add_u32 s55, s55, 1", (5, 6), SX, 54, "",
              "s_add_u32 s54, s54, 128\ns_cmp_eq_u32 s55, 9\ns_cselect_b32 s55, 0, s55\ns_cselect_b32 s58, 1152, 0\ns_sub_u32 s54, s54, s58")
    def wq(u):
        post = f"s_add_u32 s57, s57, {16*8192}"
        if u % 4 == 3: post += f"\ns_cmp_ge_u32 s57, {576*8192}\ns_cselect_b32 s58, {576*8192}, 0\ns_sub_u32 s57, s57, s58"
        group(f"w{u}", f"s_add_u32 m0, s53, {(u%4)*16384}", None, (1, 2, 3, 4), SWQ, 57, "", post)
    kvoff = lambda n: (n >> 1)*8*16384 + (n & 1)*8192
    def kblk(n):
        group(f"k{n}", f"s_add_u32 m0, s59, {KBASE + n*8192}", f"s_add_u32 s56, s59, {kvoff(n)}", (7, 8), SK, 56, nt, "")
    def vblk(n):
        dst = VBASE01 + n*8192 if n < 4 else (n-4)*8192
        group(f"v{n}", f"s_add_u32 m0, s59, {dst}", f"s_add_u32 s56, s59, {kvoff(n)}", (9, 10), SV, 56, nt, "")
    def wo(t):
        post = f"s_add_u32 s54, s54, {KQ}" if t % 4 != 3 else f"""
            s_and_b32 s55, s55, 7
            s_add_u32 s58, s55, s{S_ROT2}
            s_cmp_ge_u32 s58, 8
            s_cselect_b32 s56, -8, 1
            s_add_u32 s58, s58, s56
            s_lshl_b32 s58, s58, 7
            s_add_u32 s54, s58, s47"""
        group(f"o{t}", f"s_add_u32 m0, s53, {((t+2)%10)*16384}", "s_add_u32 s55, s55, 1" if t % 4 == 3 else None,
              (16, 17, 18, 19), SWO, 54, "", post)
    xblk(0); wq(0); wq(1)
    if opt.codepf:
        a.c("pull the code that runs later into L2: 192 B per loader wave")
        a(f"""
        s_getpc_b64 s[62:63]
        L_pc:
        s_lshr_b32 s52, s2, 3
        s_lshl_b32 s52, s52, 2
        s_add_u32 s52, s52, s51
        s_mul_i32 s52, s52, 192
        s_min_u32 s52, s52, L_end - L_att - 192
        s_add_u32 s52, s52, L_att - L_pc
        s_add_u32 s62, s62, s52
        s_addc_u32 s63, s63, 0
        s_load_dword s100, s[62:63], 0
        s_load_dword s101, s[62:63], 64
        s_load_dword s100, s[62:63], 128
        """)
    a(f"s_lshl_b32 s52, s{S_B}, 5\ns_add_u32 s52, s52, s{S_HG}\ns_lshl_b32 s52, s52, 14")
    srd(a, SK, S_K, 52, 25*16384)
    srd(a, SV, S_V, 52, 25*16384)
    a(f"""
    s_and_b32 s52, s51, 1
    s_lshl_b32 s52, s52, 3
    v_lshlrev_b32 v12, 8, v13
    v_and_b32 v14, 15, v0
    v_xor_b32 v15, v14, v13
    v_xor_b32 v15, s52, v15
    v_lshl_add_u32 v7, v15, 4, v12
    v_xor_b32 v15, 4, v15
    v_lshl_add_u32 v8, v15, 4, v12
    v_lshlrev_b32 v16, 1, v13
    v_xor_b32 v16, v16, v14
    v_lshl_add_u32 v9, v16, 4, v12
    v_xor_b32 v16, 8, v16
    v_lshl_add_u32 v10, v16, 4, v12
    s_mul_i32 s52, s{S_HG}, {128*1152}
    """)
    srd(a, SWO, S_WO, 52, 3*KQ + 128*1152)
    a(f"""
    v_lshrrev_b32 v12, 3, v0
    v_mul_u32_u24 v12, 1152, v12
    v_lshlrev_b32 v14, 1, v13
    v_and_b32 v15, 7, v0
    v_xor_b32 v14, v14, v15
    v_lshl_add_u32 v16, v14, 4, v12
    v_add_u32 v17, 8192, v16
    v_add_u32 v18, 16384, v16
    v_add_u32 v19, 24576, v16
    s_lshl_b32 s52, s{S_G}, 12
    s_add_u32 s52, s52, {FLAG_OFF}
    """)
    srd(a, 16, S_WS, 52, 4096)
    a.c("only wave 4 of the group's first workgroup gets a non-empty descriptor: it clears the flags and announces that later")
    a(f"""
    s_mov_b32 s20, s{S_DBG}
    s_mov_b32 s21, s{S_DBG+1}
    s_mov_b32 s22, 256
    s_mov_b32 s23, 0x20000
    s_lshl_b32 s52, s{S_G}, 2
    v_mov_b32 v72, s52
    s_add_u32 s56, s{S_HG}, s51
    s_cmp_eq_u32 s56, 0
    s_cselect_b32 s98, 4096, 0
    s_mov_b32 s96, s16
    s_mov_b32 s97, s17
    s_mov_b32 s99, 0x20000
    v_mov_b32 v32, 0
    v_mov_b32 v33, 0
    v_mov_b32 v34, 0
    v_mov_b32 v35, 0
    v_lshlrev_b32 v36, 4, v0
    v_mov_b32 v31, 1
    buffer_store_dwordx4 v[32:35], v36, s[96:99], 0 offen sc1
    buffer_store_dwordx4 v[32:35], v36, s[96:99], 0 offen offset:1024 sc1
    """)
    vm.issue("z", 2)
    def announce(_):
        vm.wait("z")
        a("s_mov_b32 s96, s20\ns_mov_b32 s97, s21\ns_lshr_b32 s98, s98, 4\nbuffer_store_dword v31, v72, s[96:99], 0 offen sc1")
        vm.issue("d")
    F = {"x": xblk, "k": kblk, "v": vblk, "d": announce}
    ev = {s: [] for s in range(36)}
    for item in opt.sched.split("|"):
        st, names = item.split(":"); st = int(st)
        for nm in names.split(","):
            n = int(nm[1:])
            assert st >= {"d": 1, "x": -1, "k": 4*(n-3)+3 if n >= 3 else -1, "v": 4*(n+5)+3 if n < 4 else 32+(n-4)//2}[nm[0]]
            assert nm[0] != "x" or st < 4*n - 1
            ev[st].append(nm)
    vm.wait("w0")
    a("s_barrier")
    wq(2); wq(3)
    a.c("-- barrier s: stage s+1 has landed, stage s has been read")
    for s in range(36):
        need = [f"w{s+1}"] if s < 35 else [f"k{n}" for n in range(8)]
        if s % 4 == 3 and s < 35: need.append(f"x{(s+1)//4}")
        vm.wait(*need)
        a("s_barrier")
        if s + 4 < 36: wq(s + 4)
        for nm in ev[s]: F[nm[0]](int(nm[1:]))
    a.c("-- V and the first Wo stages arrive under the attention part; then one barrier per two Wo stages")
    a(f"""
    L_att:
    s_mul_i32 s47, s51, {32*1152}
    s_lshl_b32 s52, s{S_ROT2}, 7
    s_add_u32 s54, s47, s52
    s_mov_b32 s55, s{S_HG}
    """)
    wo(0); wo(1)
    a("s_lshl_b32 s45, s51, 1")
    sum_setup(a, 0, 45)
    a(f"""
    s_lshl_b32 s52, s{S_HG}, 13
    v_add_u32 v22, s52, v22
    v_lshl_add_u32 v20, v0, 4, s59
    s_add_u32 s45, s{S_HG}, s{S_ROT2}
    s_cmp_ge_u32 s45, 8
    s_cselect_b32 s56, -8, 1
    s_add_u32 s45, s45, s56
    s_lshl_b32 s52, s{S_HG}, 7
    s_lshl_b32 s56, s51, 5
    s_add_u32 s52, s52, s56
    s_mov_b32 s44, s{S_HG}
    """)
    dbg = "buffer_load_dword v29, v72, s[20:23], 0 offen sc1"
    a(dbg); vm.issue("dbg")
    vm.wait(*[f"v{n}" for n in range(8)])
    a("s_barrier")
    wo(2); wo(3)
    vm.wait("o0")
    a("s_barrier")
    wo(4); wo(5)
    def fetch(t):
        a(f"s_sub_u32 s44, s44, 1\ns_and_b32 s44, s44, 7\ns_mul_i32 s57, s44, {PART}")
        for qi in range(2):
            a(f"buffer_load_dwordx4 {vr(80+8*t+4*qi,4)}, v22, s[36:39], s57 offen offset:{qi*1024} sc1")
        vm.issue(f"g{t}", 2)
    ga, gb, gc = [int(x) for x in opt.g_at.split(",")]
    nxt = 6
    for i in range(18):
        vm.wait(f"o{min(2*i+2, 35)}")
        a("s_barrier")
        if i == 1:
            vm.wait("dbg")
            a(f"""
            s_mov_b32 s46, 0x8000
            L_dbg:
            v_cmp_ne_u32 vcc, 1, v29
            s_sub_u32 s46, s46, 1
            s_cbranch_scc1 L_dbg_ok
            s_nop 3
            s_cbranch_vccz L_dbg_ok
            s_sleep 8
            {dbg}
            s_waitcnt vmcnt(0)
            s_branch L_dbg
            L_dbg_ok:
            """)
        for _ in range(1 if str(i) in opt.q1.split(",") else 2):
            if nxt < 36: wo(nxt); nxt += 1
        if i == ga: poll_spin(a, "L_pa", 0xf0); fetch(0); fetch(1)
        if i == gb: fetch(2); fetch(3)
        if i == gc: poll_spin(a, "L_pc4", 0x08); fetch(4)
        if i + 1 in (ga, gc) or i == 17: poll_issue(a)
    assert nxt == 36
    ACC = (64, 72 + 80)
    def add(t, first=False):
        ops = vm.ops
        for qi in range(2):
            a(f"s_waitcnt vmcnt({vm.count([f'g{t}']) + 1 - qi})")
            acc_in(a, ACC[qi], 80+8*t+4*qi, first)
    for t in range(5): add(t, t == 0)
    stamp(a, 1)
    poll_spin(a, "L_p5", 0x04); fetch(5); poll_issue(a)
    a("s_barrier")
    a(f"ds_read_b128 v[136:139], v20 offset:{STAGE}\nds_read_b128 v[140:143], v20 offset:{STAGE+1024}")
    poll_spin(a, "L_p6", 0x02); fetch(6)
    stamp(a, 2)
    for qi in range(2): acc_in(a, ACC[qi], 136+4*qi, False)
    add(5); add(6)
    if opt.stamps: a("s_waitcnt lgkmcnt(0)")
    put(a, 144, ACC)
    stamp(a, 3)
    if opt.stamps:
        a("L_fin:\ns_waitcnt vmcnt(0)"); stamp(a, 0); stamp_flush(a, 3)
    a("s_endpgm")

def mfma(a, d, A, B, C=None):
    a(f"v_mfma_f32_16x16x32_bf16 {vr(d,4)}, {vr(A,4)}, {vr(B,4)}, {'0' if C == 'zero' else vr(d if C is None else C, 4)}")

def weave(a, mf, fill, per=1, start=0):
    fill = list(fill)
    for k, m in enumerate(mf):
        m()
        for _ in range(per if k >= start else 0):
            if fill:
                x = fill.pop(0)
                if x: a(x)
    for f in fill: a(f)

def xreduce(a, op, m, mid):
    a(f"""
    s_nop 1
    v_permlane16_swap_b32 v{m[0]}, v{m[1]}
    v_permlane16_swap_b32 v{m[2]}, v{m[3]}
    s_nop 0
    {op} v{m[0]}, v{m[0]}, v{m[1]}
    {op} v{m[2]}, v{m[2]}, v{m[3]}
    s_nop 1
    v_permlane32_swap_b32 v{m[0]}, v{m[2]}
    s_nop 1
    {op} v{m[0]}, v{m[0]}, v{m[2]}
    {mid}
    v_mov_b32 v{m[2]}, v{m[0]}
    s_nop 1
    v_permlane32_swap_b32 v{m[0]}, v{m[2]}
    s_nop 1
    v_mov_b32 v{m[1]}, v{m[0]}
    v_mov_b32 v{m[3]}, v{m[2]}
    s_nop 1
    v_permlane16_swap_b32 v{m[0]}, v{m[1]}
    v_permlane16_swap_b32 v{m[2]}, v{m[3]}
    s_nop 1
    """)

def sn(i):
    return range(3, -1, -1) if i & 1 else range(4)

def compute(a):
    FB = [128, 176]
    AW, AX, L16, ROW4, C8, AK = 224, 232, 236, 237, 238, 240
    a.c("---------------- compute waves ----------------")
    a(f"""
    L_compute:
    v_lshrrev_b32 v1, 4, v0
    v_and_b32 v2, 15, v0
    v_lshrrev_b32 v{ROW4}, 2, v0
    v_and_b32 v3, 3, v0
    v_lshlrev_b32 v{C8}, 3, v3
    v_lshlrev_b32 v{L16}, 4, v0
    s_lshl_b32 s51, s{S_WAVE}, 8
    v_lshl_add_u32 v4, v{ROW4}, 10, v{C8}
    v_add_u32 v4, s51, v4
    v_and_b32 v5, 7, v{ROW4}
    """)
    for dt in range(8): a(f"v_xor_b32 v6, {dt}, v5\nv_lshl_add_u32 v{AW+dt}, v6, 5, v4")
    a(f"""
    v_lshrrev_b32 v4, 3, v2
    v_lshlrev_b32 v4, 10, v4
    v_and_b32 v5, 7, v2
    v_lshl_add_u32 v4, v5, 7, v4
    v_and_b32 v5, 1, v1
    v_lshlrev_b32 v7, 3, v5
    v_add_u32 v4, v4, v7
    v_add_u32 v4, {XBASE}, v4
    v_lshrrev_b32 v8, 1, v1
    v_lshrrev_b32 v5, 1, v2
    v_xor_b32 v5, v5, v8
    """)
    for sp in range(4): a(f"v_xor_b32 v6, {2*sp}, v5\nv_lshl_add_u32 v{AX+sp}, v6, 4, v4")
    a(f"""
    s_lshl_b32 s51, s{S_WAVE}, 14
    s_add_u32 s52, s51, {KBASE}
    v_lshl_add_u32 v4, v2, 8, v7
    v_add_u32 v4, s52, v4
    v_xor_b32 v5, v2, v8
    """)
    for i in range(8): a(f"v_xor_b32 v6, {2*i}, v5\nv_lshl_add_u32 v{AK+i}, v6, 4, v4")
    a(f"""
    s_add_u32 s52, s51, {VBASE01}
    s_cmp_ge_u32 s{S_WAVE}, 2
    s_cselect_b32 s53, {LDS_BYTES}, 0
    s_sub_u32 s52, s52, s53
    s_lshl_b32 s53, s{S_G}, 3
    s_add_u32 s53, s53, s{S_HG}
    s_mul_i32 s53, s53, {PART}
    s_waitcnt lgkmcnt(0)
    """)
    srd(a, 32, S_WS, 53, PART)
    for i in range(128): a(f"v_mov_b32 v{i}, 0")
    def reads(u):
        fb = FB[(u >> 1) & 1] + 2*(u & 1)
        return ([f"ds_read_b64 {vr(fb+32+4*qt,2)}, v{AX+u%4} offset:{qt*2048}" for qt in range(4)] +
                [f"ds_read_b64_tr_b16 {vr(fb+4*dt,2)}, v{AW+dt} offset:{(u%4)*16384}" for dt in range(8)])
    def half(buf, hf):
        return [lambda dt=dt, qt=qt: mfma(a, 16*dt+4*qt, FB[buf]+4*dt, FB[buf]+32+4*qt) for dt in range(4*hf, 4*hf+4) for qt in sn(dt)]
    def interval(buf, hf, fill):
        mf = half(buf, hf)
        weave(a, mf[:15], fill)
        a("s_waitcnt lgkmcnt(0)")
        mf[15]()
    a("s_barrier")
    stamp(a, 1)
    for r in reads(0): a(r)
    a("s_mov_b32 s54, 9\ns_waitcnt lgkmcnt(0)\ns_barrier")
    for r in reads(1): a(r)
    a("s_waitcnt lgkmcnt(0)")
    a.c("-- Q^T += Wq^T x^T : 16 rows of Wq per barrier, operands are read one step ahead")
    if opt.al1 >= 0: a.l.append(".p2align 6"); a("s_nop 0\n"*opt.al1)
    a("L_g1_loop:\ns_barrier")
    interval(0, 0, reads(2))
    a("s_barrier")
    interval(0, 1, reads(3) + ["s_sub_u32 s54, s54, 1", f"v_add_u32 v{AX}, 8192, v{AX}", f"v_add_u32 v{AX+1}, 8192, v{AX+1}"])
    a("s_cmp_eq_u32 s54, 0\ns_cbranch_scc1 L_g1_last\ns_barrier")
    interval(1, 0, reads(4) + [f"v_add_u32 v{AX+i}, 8192, v{AX+i}" for i in (2, 3)])
    a("s_barrier")
    interval(1, 1, reads(5))
    a("s_branch L_g1_loop")
    if opt.al3 >= 0: a.l.append(f".p2align {opt.al3}")
    a.c("-- last k-step, K fragments, Q -> bf16, S^T = K Q^T, softmax over the keys, O^T = V^T P^T, O -> LDS")
    a("L_g1_last:\ns_barrier")
    KF = lambda kt, ds: 128 + 16*ds + 4*kt
    krd = lambda ds: [f"ds_read_b64 {vr(KF(kt,ds)+2*jj,2)}, v{AK+2*ds+jj} offset:{kt*4096}" for kt in range(4) for jj in range(2)]
    weave(a, half(1, 0), krd(0) + krd(1) + krd(2), per=2)
    QF = lambda ds, qt: 64*(ds >> 1) + 16*(ds & 1) + 4*qt
    qcvt = lambda ds: [cvt(QF(ds, qt)+2*u+e, 32*ds+16*u+4*qt+2*e) for qt in range(4) for u in range(2) for e in range(2)]
    av = [f"v_lshl_add_u32 v248, v{ROW4}, 8, v{C8}", "v_add_u32 v248, s52, v248", f"v_and_b32 v249, 7, v{ROW4}"]
    for dt in range(8): av += [f"v_xor_b32 v239, {dt}, v249", f"v_lshl_add_u32 v{AW+dt}, v239, 5, v248"]
    weave(a, half(1, 1), krd(3) + qcvt(0) + qcvt(1)[:8], per=2)
    stamp(a, 2)
    for x in qcvt(1)[8:]: a(x)
    a("s_waitcnt lgkmcnt(8)")
    S = lambda kt, qt: (32 if kt < 2 else 192) + 16*(kt & 1) + 4*qt
    g2 = lambda ds, kt, qt: (lambda: mfma(a, S(kt, qt), KF(kt, ds), QF(ds, qt), "zero" if ds == 0 else None))
    cbits = struct.unpack("<I", struct.pack("<f", math.log2(math.e) / math.sqrt(128.0)))[0]
    vals = [[S(kt, qt) + e for kt in range(4) for e in range(4)] for qt in range(4)]
    M = [240, 242, 244, 246]; SUM = [232, 234, 248, 250]
    def rowmax(qt):
        v = vals[qt]
        return ([f"v_max3_f32 v{M[qt]}, v{v[0]}, v{v[1]}, v{v[2]}"] +
                [f"v_max3_f32 v{M[qt]}, v{M[qt]}, v{v[i]}, v{v[i+1]}" for i in range(3, 15, 2)] +
                [f"v_max_f32 v{M[qt]}, v{M[qt]}, v{v[15]}"])
    weave(a, [g2(ds, kt, qt) for ds in range(2) for kt in range(4) for qt in sn(kt)],
          qcvt(2) + qcvt(3) + av + [f"s_mov_b32 s56, {hex(cbits)}", f"s_mov_b32 s57, {hex(cbits)}", "s_waitcnt lgkmcnt(0)"], per=2)
    for qt in range(4):
        weave(a, [g2(ds, kt, qt) for ds in (2, 3) for kt in range(4)], rowmax(qt-1) if qt else [], per=2, start=4)
    stamp(a, 3)
    m3 = rowmax(3)
    for x in ["s_nop 3"] + m3[:2] + ["s_nop 1"] + m3[2:]: a(x)
    xreduce(a, "v_max_f32", M, f"v_mul_f32 v{M[0]}, s56, v{M[0]}")
    for i in range(0, 16, 2):
        for qt in range(4):
            x = vals[qt][i]
            a(f"v_pk_fma_f32 {vr(x,2)}, {vr(x,2)}, s[56:57], {vr(M[qt],2)} op_sel_hi:[1,1,0] neg_lo:[0,0,1] neg_hi:[0,0,1]")
    for i in range(16):
        for qt in range(4): a(f"v_exp_f32 v{vals[qt][i]}, v{vals[qt][i]}")
    for qt in range(4): a(f"v_pk_add_f32 {vr(SUM[qt],2)}, {vr(vals[qt][0],2)}, {vr(vals[qt][2],2)}")
    for i in range(4, 16, 2):
        for qt in range(4): a(f"v_pk_add_f32 {vr(SUM[qt],2)}, {vr(SUM[qt],2)}, {vr(vals[qt][i],2)}")
    for qt in range(4): a(f"v_add_f32 v{SUM[qt]}, v{SUM[qt]}, v{SUM[qt]+1}")
    xreduce(a, "v_add_f32", SUM, f"v_rcp_f32 v{SUM[0]}, v{SUM[0]}\ns_nop 0")
    PF = lambda ks, qt: 96 + 16*ks + 4*qt
    for i in range(0, 16, 2):
        for qt in range(4):
            x = vals[qt][i]
            a(f"v_pk_mul_f32 {vr(x,2)}, {vr(x,2)}, {vr(SUM[qt],2)} op_sel_hi:[1,0]")
    for ks in range(2):
        for qt in range(4):
            for u in range(2):
                for e in range(2): a(cvt(PF(ks, qt)+2*u+e, S(2*ks+u, qt)+2*e))
    VF = lambda dt, ks: 128 + 16*(dt >> 1) + 8*ks + 4*(dt & 1)
    vrd = [f"ds_read_b64_tr_b16 {vr(VF(dt,ks)+2*j,2)}, v{AW+dt} offset:{ks*8192+j*4096}" for dt in range(8) for ks in range(2) for j in range(2)]
    a("s_barrier")
    for r in vrd[:16]: a(r)
    a("s_waitcnt lgkmcnt(8)")
    OT = lambda dt, qt: (16*dt if dt < 6 else 192 + 16*(dt-6)) + 4*qt
    g3 = lambda p: [lambda ks=ks, dt=dt, qt=qt: mfma(a, OT(dt, qt), VF(dt, ks), PF(ks, qt), "zero" if ks == 0 else None)
                    for ks in range(2) for dt in (2*p, 2*p+1) for qt in sn(dt)]
    OW, OR0, OR1, PV, AOB, AO, FV, ONE = 242, 243, 244, 245, 246, 248, 252, 253
    ad = f"""
    s_lshr_b32 s53, s{S_WAVE}, 1
    s_and_b32 s55, s{S_WAVE}, 1
    v_add_u32 v{OW}, s52, v{L16}
    s_lshl_b32 s55, s55, 11
    v_add_u32 v{OR1}, s55, v{L16}
    v_add_u32 v{OR0}, {VBASE01}, v{OR1}
    s_lshl_b32 s55, s{S_WAVE}, 11
    v_add_u32 v{PV}, s55, v{L16}
    s_lshl_b32 s53, s53, 1
    v_lshl_add_u32 v239, v{ROW4}, 7, v{C8}
    v_bfe_u32 v240, v{ROW4}, 1, 2
    v_xor_b32 v240, s53, v240
    v_lshl_add_u32 v{AOB}, v240, 5, v239
    v_xor_b32 v240, 1, v240
    v_lshl_add_u32 v{AOB+1}, v240, 5, v239
    v_add_u32 v{AO}, {WO_RING}, v{AOB}
    v_add_u32 v{AO+1}, {WO_RING}, v{AOB+1}
    s_lshl_b32 s55, s{S_G}, 12
    s_add_u32 s55, s55, {FLAG_OFF}
    s_add_u32 s16, s{S_WS}, s55
    s_addc_u32 s17, s{S_WS+1}, 0
    s_mov_b32 s18, 0
    s_mov_b32 s19, 0x20000
    s_lshl_b32 s55, s{S_WAVE}, 5
    s_lshl_b32 s53, s{S_HG}, 2
    s_add_u32 s55, s55, s53
    v_lshl_add_u32 v{FV}, v{L16}, 8, s55
    v_mov_b32 v{ONE}, 1
    """.strip().split("\n")
    OF = lambda k4, qt: 128 + 16*k4 + 4*qt
    def ocvt(k4):
        r = []
        for qt in range(4):
            r += [cvt(OF(k4, qt)+2*u+e, OT(2*k4+u, qt)+2*e) for u in range(2) for e in range(2)]
            r.append(f"ds_write_b128 v{OW}, {vr(OF(k4,qt),4)} offset:{(k4*4+qt)*1024}")
        return r
    weave(a, g3(0), [x for p in zip(vrd[16:24], ad[:8]) for x in p] + ad[8:24], per=2)
    a("s_waitcnt lgkmcnt(8)")
    weave(a, g3(1), vrd[24:32] + ad[24:26] + ocvt(0), per=2)
    a("s_waitcnt lgkmcnt(12)")
    weave(a, g3(2), ad[26:] + [None]*6 + ocvt(1), per=2)
    a("s_waitcnt lgkmcnt(8)")
    weave(a, g3(3), ocvt(2), per=2, start=4)
    a("s_nop 6")
    for x in ocvt(3): a(x)
    a("s_waitcnt lgkmcnt(0)\ns_barrier")
    stamp(a, 5)
    ACCA, ACCB, WB, PK = 128, 144, 160, 192
    wread = lambda k4, ni: [f"ds_read_b64_tr_b16 {vr(WB+8*k4+4*ni+2*j,2)}, v{AO+ni} offset:{k4*4096+j*2048}" for j in range(2)]
    oread = lambda h: [f"ds_read_b128 {vr(32*h+8*k4+4*qi,4)}, v{OR0 if h < 2 else OR1} offset:{(h&1)*16384+(k4*4+qi)*1024}" for k4 in range(4) for qi in range(2)]
    for r in oread(0) + oread(1): a(r)
    for k4 in range(4):
        for ni in range(2):
            for r in wread(k4, ni)[:1 if (k4, ni) == (3, 1) else 2]: a(r)
    a(f"""
    s_mov_b32 s54, 0
    s_mov_b32 s55, {WO_RING+16384}
    v_add_u32 v{AO}, s55, v{AOB}
    s_mov_b32 s58, {8*8192}
    s_mov_b32 s59, s{S_HG}
    s_mov_b32 s60, 0
    s_waitcnt lgkmcnt(0)
    """)
    cvts = [cvt(PK+4*qi+2*ni+e, ACCB+8*qi+4*ni+2*e) for qi in range(2) for ni in range(2) for e in range(2)]
    store = lambda qi: f"buffer_store_dwordx4 {vr(PK+4*qi,4)}, v{PV}, s[32:35], s58 offen offset:{qi*1024} sc1"
    flagst = f"buffer_store_dword v{ONE}, v{FV}, s[16:19], s60 offen sc1"
    def block(extra):
        for kq in range(4):
            if kq % 2 == 0: a("s_barrier")
            ex = list(extra[kq])
            sl = ["s_add_u32 s55, s55, 16384", f"s_cmp_eq_u32 s55, {LDS_BYTES}", "s_cselect_b32 s55, 0, s55"]
            ex = ex[:5] + [None]*(5 - len(ex[:5])) + sl + ex[5:] if len(ex) <= 7 else ex + [sl[0] + "\n" + sl[1], sl[2]]
            for k4 in range(4):
                for ni in range(2):
                    for qj in range(2):
                        qi = qj ^ ni; t = 8*qi + 4*ni; g = 4*k4 + 2*ni + qj
                        if kq == 3 and k4 == 3: mfma(a, ACCB+t, WB+8*k4+4*ni, 32*kq+8*k4+4*qi, ACCA+t)
                        else: mfma(a, ACCA+t, WB+8*k4+4*ni, 32*kq+8*k4+4*qi, "zero" if kq == 0 and k4 == 0 else None)
                        if qj == 1: a(wread(k4, ni)[0])
                        else: a(wread(*((k4, 0) if ni == 1 else ((k4 - 1) % 4, 1)))[1])
                        if g % 4 == 3: a("s_waitcnt lgkmcnt(11)")
                        elif g == 0: a(f"v_add_u32 v{AO+1}, s55, v{AOB+1}")
                        elif g == 14: a(f"v_add_u32 v{AO}, s55, v{AOB}")
                        elif ex:
                            x = ex.pop(0)
                            if x: a(x)
            assert not ex, (kq, ex)
    a.c("-- out^T block = Wo^T O^T, K = 512 ; the block before is converted, stored and (one later) flagged underneath")
    block([[x + "\n" + y for x, y in zip(oread(2), oread(3))], [], [], []])
    if opt.al2 >= 0: a.l.append(".p2align 6"); a("s_nop 0\n"*opt.al2)
    a("L_p2_loop:")
    ex = [cvts, [None]*7, [None]*7, [None]*7]
    p = [int(c) for c in opt.st_pos]
    ex[p[0]][p[1]] = store(0)
    ex[p[2]][p[3]] = store(1) + "\ns_waitcnt vmcnt(2)\n" + flagst
    ex[3][0:7] = ["s_lshr_b32 s60, s58, 6", "s_add_u32 s59, s59, 1", "s_and_b32 s59, s59, 7", "s_lshl_b32 s58, s59, 13",
                  "s_mov_b32 s18, 4096", None, "s_add_u32 s54, s54, 1"]
    if opt.lastflag:
        ex[3][5] = f"s_cmp_lg_u32 s54, 7\ns_cbranch_scc1 L_notlast\ns_waitcnt vmcnt(1)\n{flagst}\nL_notlast:"
    block(ex)
    a("s_cmp_lg_u32 s54, 8\ns_cbranch_scc1 L_p2_loop")
    stamp(a, 6)
    a.c("-- flag of the last published block; the own block goes to the loader waves through LDS")
    a(f"""
    {"s_waitcnt vmcnt(1)" if not opt.lastflag else "s_nop 0"}
    {flagst if not opt.lastflag else "s_nop 0"}
    s_lshr_b32 s52, s{S_HG}, 1
    s_lshl_b32 s52, s52, 5
    s_add_u32 s52, s52, 1024
    s_nop 1
    """)
    for x in cvts[:4] + [f"ds_write_b128 v{PV}, {vr(PK,4)} offset:{STAGE}"] + cvts[4:] + [f"ds_write_b128 v{PV}, {vr(PK+4,4)} offset:{STAGE+1024}"]: a(x)
    a(f"s_cmp_eq_u32 s{S_WAVE}, 0\ns_cbranch_scc1 L_last\ns_waitcnt lgkmcnt(0)\ns_barrier")
    if opt.stamps:
        stamp(a, 4); a("s_waitcnt vmcnt(0)"); stamp(a, 7); stamp_flush(a, 8)
    a("s_endpgm")
    a.c("-- wave 0 sums fragment hg of the shared block")
    a("L_last:\ns_waitcnt lgkmcnt(0)")
    poll_issue(a)
    a("s_barrier")
    a(f"s_mov_b32 s47, s52\nv_lshrrev_b32 v30, 4, v{L16}")
    sum_setup(a, 30, S_HG)
    a(f"s_mov_b32 s52, s47\ns_mov_b32 s45, s{S_ROT2}\ns_mov_b32 s44, {8*8192}")
    if opt.stamps: a(f"s_mov_b32 s{S_WAVE}, 8"); stamp(a, 1)
    poll_spin(a, "L_pl", 0xff)
    stamp(a, 2)
    for src in range(8):
        a(f"buffer_load_dwordx4 {vr(80+4*src,4)}, v22, s[36:39], s44 offen sc1")
        if src < 7: a(f"s_add_u32 s44, s44, {PART}")
    for src in range(8):
        a(f"s_waitcnt vmcnt({7-src})")
        acc_in(a, 64, 80+4*src, src == 0)
    if opt.stamps: a("s_waitcnt lgkmcnt(0)")
    put(a, 144, (64,))
    if opt.stamps:
        stamp(a, 3); a("s_branch L_fin")
    a("L_end:\ns_endpgm")

HEAD = """; Two attention blocks (A, B) with cached K/V, outputs concatenated: out[b, q, br*576 + n].
; d_debug[group].
; Kernarg: A_x A_k A_v A_wq A_wo (0..32)  B_x B_k B_v B_wq B_wo (40..72)  out 80  debug 88  ws 96"""

def build():
    main = NAME + "_kernel"
    a = Asm()
    prologue(a); loader(a); compute(a)
    return f"""{HEAD}
; @launch grid=(256,1,1) block=(512,1,1) lds={LDS_BYTES}
.amdgcn_target "amdgcn-amd-amdhsa--gfx950"
.text
.globl {main}
.p2align 8
.type {main},@function
{main}:
{a.text()}
.section .rodata,"a"
.p2align 6
.amdhsa_kernel {main}
  .amdhsa_next_free_vgpr 256
  .amdhsa_next_free_sgpr 102
  .amdhsa_accum_offset 256
  .amdhsa_group_segment_fixed_size 0
  .amdhsa_kernarg_size 104
  .amdhsa_user_sgpr_count 2
  .amdhsa_user_sgpr_kernarg_segment_ptr 1
  .amdhsa_system_sgpr_workgroup_id_x 1
  .amdhsa_float_denorm_mode_32 3
.end_amdhsa_kernel
"""

if __name__ == "__main__":
    for kv in sys.argv[2:]:
        k, v = kv.split("=", 1)
        setattr(opt, k, type(getattr(opt, k))(v))
    open(sys.argv[1], "w").write(build())
```

```python
import sys, math, struct

NAME = "concat_heads__mha_block_cached__gqa_block_cached__near_ridge"

class Opt:
    stamps = 0
    kv_nt = 1
    sched = "0:x1|2:d0|3:x2,x3,k0|9:x4,x5,k1,k2,k3|17:x6,x7,k4,k5,k6|25:x8,k7,v0|31:v1,v2|32:v4|33:v5|35:v6,v7,v3"
    lastflag = 0
    st_pos = "1011"
    g_at = "15,16,17"
    sleeps = 1
    codepf = 1
    q1 = "6,10"
    al1 = -1
    al2 = -1
    al3 = -1
    xrot = 1
    pfb = 192
opt = Opt()

class Asm:
    def __init__(self): self.l = []
    def __call__(self, s):
        for x in s.strip("\n").split("\n"):
            x = x.strip()
            if x: self.l.append(x if x.endswith(":") else "    " + x)
    def c(self, s): self.l.append("    ; " + s)
    def text(self): return "\n".join(self.l) + "\n"

def vr(a, n=1): return f"v{a}" if n == 1 else f"v[{a}:{a+n-1}]"

KBASE = 65536
XBASE = 90112
VBASE01 = 131072
WO_RING = 32768
STAGE = 0
LDS_BYTES = 163840
PART = 73728
FLAG_OFF = 24 << 20
STAMP_OFF = 32 << 20
KQ = 8*128*1152

S_WAVE, S_BR, S_B, S_HG, S_ROT, S_G, S_ROT2 = 3, 30, 31, 48, 49, 50, 14
S_X, S_K, S_V, S_WQ, S_WO, S_OUT, S_DBG, S_WS = 4, 6, 8, 10, 12, 24, 26, 28

def stamp(a, idx):
    if opt.stamps:
        a(f"s_memrealtime s[{64+2*idx}:{65+2*idx}]")
        a(f"s_memtime s[{80+2*idx}:{81+2*idx}]")

def stamp_flush(a, n):
    if not opt.stamps: return
    a(f"""
    s_waitcnt lgkmcnt(0)
    s_lshl_b32 s60, s2, 4
    s_add_u32 s60, s60, s{S_WAVE}
    s_lshl_b32 s60, s60, 7
    s_add_u32 s60, s60, {STAMP_OFF}
    s_add_u32 s56, s{S_WS}, s60
    s_addc_u32 s57, s{S_WS+1}, 0
    s_mov_b32 s58, 128
    s_mov_b32 s59, 0x20000
    v_mov_b32 v250, 0
    """)
    for i in range(2*n):
        a(f"v_mov_b32 v252, s{64+2*i}\nv_mov_b32 v253, s{65+2*i}")
        a(f"buffer_store_dwordx2 v[252:253], v250, s[56:59], 0 offen offset:{8*i}\ns_waitcnt vmcnt(0)")

def srd(a, d, base, off, size):
    a(f"s_add_u32 s{d}, s{base}, s{off}\ns_addc_u32 s{d+1}, s{base+1}, 0\ns_mov_b32 s{d+2}, {size}\ns_mov_b32 s{d+3}, 0x20000")

def cvt(d, s0): return f"v_cvt_pk_bf16_f32 v{d}, v{s0}, v{s0+1}"

class VM:
    def __init__(self, a): self.a = a; self.ops = []
    def issue(self, tag, n=1): self.ops += [tag] * n
    def count(self, tags):
        assert all(t in self.ops for t in tags), tags
        n = len(self.ops) - 1 - max(i for i, t in enumerate(self.ops) if t in tags)
        assert n <= 63
        return n
    def wait(self, *tags): self.a(f"s_waitcnt vmcnt({self.count(tags)})")

def prologue(a):
    a(f"""
    s_cmp_ge_u32 s2, 256
    s_cbranch_scc1 L_end
    s_bfe_u32 s{S_BR}, s2, 0x10002
    s_mul_i32 s52, s{S_BR}, 40
    s_load_dwordx8 s[4:11], s[0:1], s52
    s_add_u32 s53, s52, 32
    s_load_dwordx2 s[12:13], s[0:1], s53
    s_load_dwordx4 s[24:27], s[0:1], 80
    s_load_dwordx2 s[28:29], s[0:1], 96
    v_lshrrev_b32 v1, 6, v0
    v_and_b32 v0, 63, v0
    v_readfirstlane_b32 s{S_WAVE}, v1
    s_and_b32 s51, s2, 3
    s_lshr_b32 s{S_B}, s2, 4
    s_bfe_u32 s54, s2, 0x10003
    s_lshl_b32 s51, s51, 1
    s_add_u32 s{S_HG}, s51, s54
    s_mul_i32 s55, s{S_B}, 9
    s_lshr_b32 s{S_ROT2}, s55, 4
    s_lshl_b32 s54, s54, 2
    s_add_u32 s{S_ROT}, s{S_ROT2}, s54
    {f"s_and_b32 s54, s2, 3" if opt.xrot else ""}
    {f"s_mul_i32 s54, s54, {opt.xrot}" if opt.xrot else ""}
    {f"s_add_u32 s{S_ROT}, s{S_ROT}, s54" if opt.xrot else ""}
    {f"s_cmp_ge_u32 s{S_ROT}, 18" if opt.xrot else ""}
    {f"s_cselect_b32 s54, 9, 0" if opt.xrot else ""}
    {f"s_sub_u32 s{S_ROT}, s{S_ROT}, s54" if opt.xrot else ""}
    s_cmp_ge_u32 s{S_ROT}, 9
    s_cselect_b32 s54, 9, 0
    s_sub_u32 s{S_ROT}, s{S_ROT}, s54
    s_lshl_b32 s{S_G}, s{S_BR}, 4
    s_add_u32 s{S_G}, s{S_G}, s{S_B}
    """)
    stamp(a, 0)
    a(f"s_cmp_lt_u32 s{S_WAVE}, 4\ns_cbranch_scc1 L_compute")

def sum_setup(a, lane, frag_sreg):
    a(f"s_mul_i32 s52, s{S_G}, {8*PART}")
    srd(a, 36, S_WS, 52, 8*PART)
    a(f"""
    s_mov_b32 s40, s{S_OUT}
    s_mov_b32 s41, s{S_OUT+1}
    s_mov_b32 s42, {16*64*1152*2}
    s_mov_b32 s43, 0x20000
    s_lshl_b32 s52, s{frag_sreg}, 10
    v_lshl_add_u32 v22, v{lane}, 4, s52
    v_lshrrev_b32 v26, 2, v{lane}
    v_and_b32 v27, 3, v{lane}
    v_mul_u32_u24 v23, 2304, v26
    v_lshl_add_u32 v23, v27, 3, v23
    v_lshl_add_u32 v21, v27, 4, v26
    v_lshlrev_b32 v21, 2, v21
    s_and_b32 s52, s{frag_sreg}, 3
    s_lshl_b32 s52, s52, 4
    s_lshl_b32 s56, s{S_B}, 6
    s_add_u32 s52, s52, s56
    s_mul_i32 s15, s52, 2304
    s_mul_i32 s56, s{S_BR}, 1152
    s_add_u32 s15, s15, s56
    s_lshr_b32 s56, s{frag_sreg}, 2
    s_lshl_b32 s56, s56, 6
    s_add_u32 s15, s15, s56
    """)

def acc_in(a, acc, src, first):
    for e in range(4):
        if first:
            a(f"v_lshlrev_b32 v{acc+2*e}, 16, v{src+e}\nv_and_b32 v{acc+2*e+1}, 0xffff0000, v{src+e}")
        else:
            a(f"v_lshlrev_b32 v60, 16, v{src+e}\nv_and_b32 v61, 0xffff0000, v{src+e}")
            a(f"v_pk_add_f32 {vr(acc+2*e,2)}, {vr(acc+2*e,2)}, v[60:61]")

def put(a, pk, acc_list):
    for i, acc in enumerate(acc_list):
        for e in range(4): a(cvt(pk+4*i+e, acc+2*e))
        for e in range(4): a(f"ds_bpermute_b32 v{pk+4*i+e}, v21, v{pk+4*i+e}")
    a("s_lshl_b32 s57, s45, 7\ns_add_u32 s57, s57, s15")
    for i in range(len(acc_list)):
        a(f"s_waitcnt lgkmcnt({4*(len(acc_list)-1-i)})")
        a(f"buffer_store_dwordx2 {vr(pk+4*i,2)}, v23, s[40:43], s57 offen")
        a(f"buffer_store_dwordx2 {vr(pk+4*i+2,2)}, v23, s[40:43], s57 offen offset:32")
        if i + 1 < len(acc_list): a(f"s_add_u32 s57, s57, {16*2304}")

def poll_issue(a): a("s_load_dwordx8 s[72:79], s[16:17], s52 glc")

def poll_spin(a, label, need):
    a(f"s_mov_b32 s46, 0x10000\n{label}:\ns_waitcnt lgkmcnt(0)")
    a("s_lshl1_add_u32 s79, s79, s78")
    for k in range(5, -1, -1): a(f"s_lshl1_add_u32 s79, s79, s{72+k}")
    a(f"""
    s_mul_i32 s79, s79, 0x101
    s_lshr_b32 s79, s79, s{S_HG}
    s_and_b32 s79, s79, {need}
    s_cmp_eq_u32 s79, {need}
    s_cbranch_scc1 {label}_ok
    s_sub_u32 s46, s46, 1
    s_cbranch_scc1 {label}_ok
    {f's_sleep {opt.sleeps}' if opt.sleeps else ''}
    """)
    poll_issue(a)
    a(f"s_branch {label}\n{label}_ok:")

def loader(a):
    vm = VM(a)
    nt = " nt" if opt.kv_nt else ""
    SX, SWQ, SK, SV, SWO = 32, 36, 40, 44, 60
    a.c("---------------- loader waves ----------------")
    a(f"""
    s_sub_u32 s51, s{S_WAVE}, 4
    v_lshrrev_b32 v12, 3, v0
    v_mul_u32_u24 v12, 1152, v12
    v_lshrrev_b32 v13, 4, v0
    v_and_b32 v14, 7, v0
    v_xor_b32 v14, v14, v13
    v_lshl_add_u32 v5, v14, 4, v12
    v_xor_b32 v14, 4, v14
    v_lshl_add_u32 v6, v14, 4, v12
    v_add_u32 v6, 8192, v6
    s_lshl_b32 s53, s51, 12
    s_lshl_b32 s59, s51, 11
    s_mul_i32 s54, s51, {16*1152}
    s_lshl_b32 s55, s{S_ROT}, 7
    s_add_u32 s54, s54, s55
    s_mov_b32 s55, s{S_ROT}
    s_lshl_b32 s57, s{S_ROT}, 19
    s_lshl_b32 s56, s51, 15
    s_add_u32 s57, s57, s56
    s_and_b32 s56, s51, 1
    s_lshl_b32 s56, s56, 3
    v_xor_b32 v10, s56, v0
    v_mul_u32_u24 v11, {2048-256}, v13
    """)
    for m in range(4):
        a(f"v_xor_b32 v{1+m}, {2*m}, v10\nv_lshl_add_u32 v{1+m}, v{1+m}, 4, v11")
        if m: a(f"v_add_u32 v{1+m}, {m*(8192-1024)}, v{1+m}")
    a(f"""
    s_mul_i32 s44, s{S_B}, 73728
    s_lshl_b32 s45, s{S_HG}, 8
    s_sub_u32 s{SWQ+2}, {576*8192}, s45
    s_mov_b32 s{SWQ+3}, 0x20000
    s_mov_b32 s{SX+2}, 73728
    s_mov_b32 s{SX+3}, 0x20000
    s_waitcnt lgkmcnt(0)
    s_add_u32 s{SX}, s{S_X}, s44
    s_addc_u32 s{SX+1}, s{S_X+1}, 0
    s_add_u32 s{SWQ}, s{S_WQ}, s45
    s_addc_u32 s{SWQ+1}, s{S_WQ+1}, 0
    """)
    def group(tag, m0, pre, vregs, srdr, so, flags, post):
        a(m0); a(pre or "s_nop 0")
        for m, v in enumerate(vregs):
            a(f"buffer_load_dwordx4 v{v}, s[{srdr}:{srdr+3}], s{so} offen offset:{m*1024}{flags} lds")
        vm.issue(tag, len(vregs))
        a(post)
    def xblk(i):
        group(f"x{i}", f"s_add_u32 m0, s59, {XBASE + i*8192}", "s_add_u32 s55, s55, 1", (5, 6), SX, 54, "",
              "s_add_u32 s54, s54, 128\ns_cmp_eq_u32 s55, 9\ns_cselect_b32 s55, 0, s55\ns_cselect_b32 s58, 1152, 0\ns_sub_u32 s54, s54, s58")
    def wq(u):
        post = f"s_add_u32 s57, s57, {16*8192}"
        if u % 4 == 3: post += f"\ns_cmp_ge_u32 s57, {576*8192}\ns_cselect_b32 s58, {576*8192}, 0\ns_sub_u32 s57, s57, s58"
        group(f"w{u}", f"s_add_u32 m0, s53, {(u%4)*16384}", None, (1, 2, 3, 4), SWQ, 57, "", post)
    kvoff = lambda n: (n >> 1)*8*16384 + (n & 1)*8192
    def kblk(n):
        group(f"k{n}", f"s_add_u32 m0, s59, {KBASE + n*8192}", f"s_add_u32 s56, s59, {kvoff(n)}", (7, 8), SK, 56, nt, "")
    def vblk(n):
        dst = VBASE01 + n*8192 if n < 4 else (n-4)*8192
        group(f"v{n}", f"s_add_u32 m0, s59, {dst}", f"s_add_u32 s56, s59, {kvoff(n)}", (9, 10), SV, 56, nt, "")
    def wo(t):
        post = f"s_add_u32 s54, s54, {KQ}" if t % 4 != 3 else f"""
            s_and_b32 s55, s55, 7
            s_add_u32 s58, s55, s{S_ROT2}
            s_cmp_ge_u32 s58, 8
            s_cselect_b32 s56, -8, 1
            s_add_u32 s58, s58, s56
            s_lshl_b32 s58, s58, 7
            s_add_u32 s54, s58, s47"""
        group(f"o{t}", f"s_add_u32 m0, s53, {((t+2)%10)*16384}", "s_add_u32 s55, s55, 1" if t % 4 == 3 else None,
              (16, 17, 18, 19), SWO, 54, "", post)
    xblk(0); wq(0); wq(1)
    if opt.codepf:
        a.c("pull the code that runs later into L2: 192 B per loader wave")
        a(f"""
        s_getpc_b64 s[62:63]
        L_pc:
        s_lshr_b32 s52, s2, 3
        s_lshl_b32 s52, s52, 2
        s_add_u32 s52, s52, s51
        s_mul_i32 s52, s52, 192
        s_min_u32 s52, s52, L_end - L_att - 192
        s_add_u32 s52, s52, L_att - L_pc
        s_add_u32 s62, s62, s52
        s_addc_u32 s63, s63, 0
        s_load_dword s100, s[62:63], 0
        s_load_dword s101, s[62:63], 64
        s_load_dword s100, s[62:63], 128
        """)
    a(f"s_lshl_b32 s52, s{S_B}, 5\ns_add_u32 s52, s52, s{S_HG}\ns_lshl_b32 s52, s52, 14")
    srd(a, SK, S_K, 52, 25*16384)
    srd(a, SV, S_V, 52, 25*16384)
    a(f"""
    s_and_b32 s52, s51, 1
    s_lshl_b32 s52, s52, 3
    v_lshlrev_b32 v12, 8, v13
    v_and_b32 v14, 15, v0
    v_xor_b32 v15, v14, v13
    v_xor_b32 v15, s52, v15
    v_lshl_add_u32 v7, v15, 4, v12
    v_xor_b32 v15, 4, v15
    v_lshl_add_u32 v8, v15, 4, v12
    v_lshlrev_b32 v16, 1, v13
    v_xor_b32 v16, v16, v14
    v_lshl_add_u32 v9, v16, 4, v12
    v_xor_b32 v16, 8, v16
    v_lshl_add_u32 v10, v16, 4, v12
    s_mul_i32 s52, s{S_HG}, {128*1152}
    """)
    srd(a, SWO, S_WO, 52, 3*KQ + 128*1152)
    a(f"""
    v_lshrrev_b32 v12, 3, v0
    v_mul_u32_u24 v12, 1152, v12
    v_lshlrev_b32 v14, 1, v13
    v_and_b32 v15, 7, v0
    v_xor_b32 v14, v14, v15
    v_lshl_add_u32 v16, v14, 4, v12
    v_add_u32 v17, 8192, v16
    v_add_u32 v18, 16384, v16
    v_add_u32 v19, 24576, v16
    s_lshl_b32 s52, s{S_G}, 12
    s_add_u32 s52, s52, {FLAG_OFF}
    """)
    srd(a, 16, S_WS, 52, 4096)
    a.c("only wave 4 of the group's first workgroup gets a non-empty descriptor: it clears the flags and announces that later")
    a(f"""
    s_mov_b32 s20, s{S_DBG}
    s_mov_b32 s21, s{S_DBG+1}
    s_mov_b32 s22, 256
    s_mov_b32 s23, 0x20000
    s_lshl_b32 s52, s{S_G}, 2
    v_mov_b32 v72, s52
    s_add_u32 s56, s{S_HG}, s51
    s_cmp_eq_u32 s56, 0
    s_cselect_b32 s98, 4096, 0
    s_mov_b32 s96, s16
    s_mov_b32 s97, s17
    s_mov_b32 s99, 0x20000
    v_mov_b32 v32, 0
    v_mov_b32 v33, 0
    v_mov_b32 v34, 0
    v_mov_b32 v35, 0
    v_lshlrev_b32 v36, 4, v0
    v_mov_b32 v31, 1
    buffer_store_dwordx4 v[32:35], v36, s[96:99], 0 offen sc1
    buffer_store_dwordx4 v[32:35], v36, s[96:99], 0 offen offset:1024 sc1
    """)
    vm.issue("z", 2)
    def announce(_):
        vm.wait("z")
        a("s_mov_b32 s96, s20\ns_mov_b32 s97, s21\ns_lshr_b32 s98, s98, 4\nbuffer_store_dword v31, v72, s[96:99], 0 offen sc1")
        vm.issue("d")
    F = {"x": xblk, "k": kblk, "v": vblk, "d": announce}
    ev = {s: [] for s in range(36)}
    for item in opt.sched.split("|"):
        st, names = item.split(":"); st = int(st)
        for nm in names.split(","):
            n = int(nm[1:])
            assert st >= {"d": 1, "x": -1, "k": 4*(n-3)+3 if n >= 3 else -1, "v": 4*(n+5)+3 if n < 4 else 32+(n-4)//2}[nm[0]]
            assert nm[0] != "x" or st < 4*n - 1
            ev[st].append(nm)
    vm.wait("w0")
    a("s_barrier")
    wq(2); wq(3)
    a.c("-- barrier s: stage s+1 has landed, stage s has been read")
    for s in range(36):
        need = [f"w{s+1}"] if s < 35 else [f"k{n}" for n in range(8)]
        if s % 4 == 3 and s < 35: need.append(f"x{(s+1)//4}")
        vm.wait(*need)
        a("s_barrier")
        if s + 4 < 36: wq(s + 4)
        for nm in ev[s]: F[nm[0]](int(nm[1:]))
    a.c("-- V and the first Wo stages arrive under the attention part; then one barrier per two Wo stages")
    a(f"""
    L_att:
    s_mul_i32 s47, s51, {32*1152}
    s_lshl_b32 s52, s{S_ROT2}, 7
    s_add_u32 s54, s47, s52
    s_mov_b32 s55, s{S_HG}
    """)
    wo(0); wo(1)
    a("s_lshl_b32 s45, s51, 1")
    sum_setup(a, 0, 45)
    a(f"""
    s_lshl_b32 s52, s{S_HG}, 13
    v_add_u32 v22, s52, v22
    v_lshl_add_u32 v20, v0, 4, s59
    s_add_u32 s45, s{S_HG}, s{S_ROT2}
    s_cmp_ge_u32 s45, 8
    s_cselect_b32 s56, -8, 1
    s_add_u32 s45, s45, s56
    s_lshl_b32 s52, s{S_HG}, 7
    s_lshl_b32 s56, s51, 5
    s_add_u32 s52, s52, s56
    s_mov_b32 s44, s{S_HG}
    """)
    dbg = "buffer_load_dword v29, v72, s[20:23], 0 offen sc1"
    a(dbg); vm.issue("dbg")
    vm.wait(*[f"v{n}" for n in range(8)])
    a("s_barrier")
    wo(2); wo(3)
    vm.wait("o0")
    a("s_barrier")
    wo(4); wo(5)
    def fetch(t):
        a(f"s_sub_u32 s44, s44, 1\ns_and_b32 s44, s44, 7\ns_mul_i32 s57, s44, {PART}")
        for qi in range(2):
            a(f"buffer_load_dwordx4 {vr(80+8*t+4*qi,4)}, v22, s[36:39], s57 offen offset:{qi*1024} sc1")
        vm.issue(f"g{t}", 2)
    ga, gb, gc = [int(x) for x in opt.g_at.split(",")]
    nxt = 6
    for i in range(18):
        vm.wait(f"o{min(2*i+2, 35)}")
        a("s_barrier")
        if i == 1:
            vm.wait("dbg")
            a(f"""
            s_mov_b32 s46, 0x8000
            L_dbg:
            v_cmp_ne_u32 vcc, 1, v29
            s_sub_u32 s46, s46, 1
            s_cbranch_scc1 L_dbg_ok
            s_nop 3
            s_cbranch_vccz L_dbg_ok
            s_sleep 8
            {dbg}
            s_waitcnt vmcnt(0)
            s_branch L_dbg
            L_dbg_ok:
            """)
        for _ in range(1 if str(i) in opt.q1.split(",") else 2):
            if nxt < 36: wo(nxt); nxt += 1
        if i == ga: poll_spin(a, "L_pa", 0xf0); fetch(0); fetch(1)
        if i == gb: fetch(2); fetch(3)
        if i == gc: poll_spin(a, "L_pc4", 0x08); fetch(4)
        if i + 1 in (ga, gc) or i == 17: poll_issue(a)
    assert nxt == 36
    ACC = (64, 72 + 80)
    def add(t, first=False):
        ops = vm.ops
        for qi in range(2):
            a(f"s_waitcnt vmcnt({vm.count([f'g{t}']) + 1 - qi})")
            acc_in(a, ACC[qi], 80+8*t+4*qi, first)
    for t in range(5): add(t, t == 0)
    stamp(a, 1)
    poll_spin(a, "L_p5", 0x04); fetch(5); poll_issue(a)
    a("s_barrier")
    a(f"ds_read_b128 v[136:139], v20 offset:{STAGE}\nds_read_b128 v[140:143], v20 offset:{STAGE+1024}")
    poll_spin(a, "L_p6", 0x02); fetch(6)
    stamp(a, 2)
    for qi in range(2): acc_in(a, ACC[qi], 136+4*qi, False)
    add(5); add(6)
    if opt.stamps: a("s_waitcnt lgkmcnt(0)")
    put(a, 144, ACC)
    stamp(a, 3)
    if opt.stamps:
        a("L_fin:\ns_waitcnt vmcnt(0)"); stamp(a, 0); stamp_flush(a, 3)
    a("s_endpgm")

def mfma(a, d, A, B, C=None):
    a(f"v_mfma_f32_16x16x32_bf16 {vr(d,4)}, {vr(A,4)}, {vr(B,4)}, {'0' if C == 'zero' else vr(d if C is None else C, 4)}")

def weave(a, mf, fill, per=1, start=0):
    fill = list(fill)
    for k, m in enumerate(mf):
        m()
        for _ in range(per if k >= start else 0):
            if fill:
                x = fill.pop(0)
                if x: a(x)
    for f in fill: a(f)

def xreduce(a, op, m, mid):
    a(f"""
    s_nop 1
    v_permlane16_swap_b32 v{m[0]}, v{m[1]}
    v_permlane16_swap_b32 v{m[2]}, v{m[3]}
    s_nop 0
    {op} v{m[0]}, v{m[0]}, v{m[1]}
    {op} v{m[2]}, v{m[2]}, v{m[3]}
    s_nop 1
    v_permlane32_swap_b32 v{m[0]}, v{m[2]}
    s_nop 1
    {op} v{m[0]}, v{m[0]}, v{m[2]}
    {mid}
    v_mov_b32 v{m[2]}, v{m[0]}
    s_nop 1
    v_permlane32_swap_b32 v{m[0]}, v{m[2]}
    s_nop 1
    v_mov_b32 v{m[1]}, v{m[0]}
    v_mov_b32 v{m[3]}, v{m[2]}
    s_nop 1
    v_permlane16_swap_b32 v{m[0]}, v{m[1]}
    v_permlane16_swap_b32 v{m[2]}, v{m[3]}
    s_nop 1
    """)

def sn(i):
    return range(3, -1, -1) if i & 1 else range(4)

def compute(a):
    FB = [128, 176]
    AW, AX, L16, ROW4, C8, AK = 224, 232, 236, 237, 238, 240
    a.c("---------------- compute waves ----------------")
    a(f"""
    L_compute:
    v_lshrrev_b32 v1, 4, v0
    v_and_b32 v2, 15, v0
    v_lshrrev_b32 v{ROW4}, 2, v0
    v_and_b32 v3, 3, v0
    v_lshlrev_b32 v{C8}, 3, v3
    v_lshlrev_b32 v{L16}, 4, v0
    s_lshl_b32 s51, s{S_WAVE}, 8
    v_lshl_add_u32 v4, v{ROW4}, 10, v{C8}
    v_add_u32 v4, s51, v4
    v_and_b32 v5, 7, v{ROW4}
    """)
    for dt in range(8): a(f"v_xor_b32 v6, {dt}, v5\nv_lshl_add_u32 v{AW+dt}, v6, 5, v4")
    a(f"""
    v_lshrrev_b32 v4, 3, v2
    v_lshlrev_b32 v4, 10, v4
    v_and_b32 v5, 7, v2
    v_lshl_add_u32 v4, v5, 7, v4
    v_and_b32 v5, 1, v1
    v_lshlrev_b32 v7, 3, v5
    v_add_u32 v4, v4, v7
    v_add_u32 v4, {XBASE}, v4
    v_lshrrev_b32 v8, 1, v1
    v_lshrrev_b32 v5, 1, v2
    v_xor_b32 v5, v5, v8
    """)
    for sp in range(4): a(f"v_xor_b32 v6, {2*sp}, v5\nv_lshl_add_u32 v{AX+sp}, v6, 4, v4")
    a(f"""
    s_lshl_b32 s51, s{S_WAVE}, 14
    s_add_u32 s52, s51, {KBASE}
    v_lshl_add_u32 v4, v2, 8, v7
    v_add_u32 v4, s52, v4
    v_xor_b32 v5, v2, v8
    """)
    for i in range(8): a(f"v_xor_b32 v6, {2*i}, v5\nv_lshl_add_u32 v{AK+i}, v6, 4, v4")
    a(f"""
    s_add_u32 s52, s51, {VBASE01}
    s_cmp_ge_u32 s{S_WAVE}, 2
    s_cselect_b32 s53, {LDS_BYTES}, 0
    s_sub_u32 s52, s52, s53
    s_lshl_b32 s53, s{S_G}, 3
    s_add_u32 s53, s53, s{S_HG}
    s_mul_i32 s53, s53, {PART}
    s_waitcnt lgkmcnt(0)
    """)
    srd(a, 32, S_WS, 53, PART)
    for i in range(128): a(f"v_mov_b32 v{i}, 0")
    def reads(u):
        fb = FB[(u >> 1) & 1] + 2*(u & 1)
        return ([f"ds_read_b64 {vr(fb+32+4*qt,2)}, v{AX+u%4} offset:{qt*2048}" for qt in range(4)] +
                [f"ds_read_b64_tr_b16 {vr(fb+4*dt,2)}, v{AW+dt} offset:{(u%4)*16384}" for dt in range(8)])
    def half(buf, hf):
        return [lambda dt=dt, qt=qt: mfma(a, 16*dt+4*qt, FB[buf]+4*dt, FB[buf]+32+4*qt) for dt in range(4*hf, 4*hf+4) for qt in sn(dt)]
    def interval(buf, hf, fill):
        mf = half(buf, hf)
        weave(a, mf[:15], fill)
        a("s_waitcnt lgkmcnt(0)")
        mf[15]()
    a("s_barrier")
    stamp(a, 1)
    for r in reads(0): a(r)
    a("s_mov_b32 s54, 9\ns_waitcnt lgkmcnt(0)\ns_barrier")
    for r in reads(1): a(r)
    a("s_waitcnt lgkmcnt(0)")
    a.c("-- Q^T += Wq^T x^T : 16 rows of Wq per barrier, operands are read one step ahead")
    if opt.al1 >= 0: a.l.append(".p2align 6"); a("s_nop 0\n"*opt.al1)
    a("L_g1_loop:\ns_barrier")
    interval(0, 0, reads(2))
    a("s_barrier")
    interval(0, 1, reads(3) + ["s_sub_u32 s54, s54, 1", f"v_add_u32 v{AX}, 8192, v{AX}", f"v_add_u32 v{AX+1}, 8192, v{AX+1}"])
    a("s_cmp_eq_u32 s54, 0\ns_cbranch_scc1 L_g1_last\ns_barrier")
    interval(1, 0, reads(4) + [f"v_add_u32 v{AX+i}, 8192, v{AX+i}" for i in (2, 3)])
    a("s_barrier")
    interval(1, 1, reads(5))
    a("s_branch L_g1_loop")
    if opt.al3 >= 0: a.l.append(f".p2align {opt.al3}")
    a.c("-- last k-step, K fragments, Q -> bf16, S^T = K Q^T, softmax over the keys, O^T = V^T P^T, O -> LDS")
    a("L_g1_last:\ns_barrier")
    KF = lambda kt, ds: 128 + 16*ds + 4*kt
    krd = lambda ds: [f"ds_read_b64 {vr(KF(kt,ds)+2*jj,2)}, v{AK+2*ds+jj} offset:{kt*4096}" for kt in range(4) for jj in range(2)]
    weave(a, half(1, 0), krd(0) + krd(1) + krd(2), per=2)
    QF = lambda ds, qt: 64*(ds >> 1) + 16*(ds & 1) + 4*qt
    qcvt = lambda ds: [cvt(QF(ds, qt)+2*u+e, 32*ds+16*u+4*qt+2*e) for qt in range(4) for u in range(2) for e in range(2)]
    av = [f"v_lshl_add_u32 v248, v{ROW4}, 8, v{C8}", "v_add_u32 v248, s52, v248", f"v_and_b32 v249, 7, v{ROW4}"]
    for dt in range(8): av += [f"v_xor_b32 v239, {dt}, v249", f"v_lshl_add_u32 v{AW+dt}, v239, 5, v248"]
    weave(a, half(1, 1), krd(3) + qcvt(0) + qcvt(1)[:8], per=2)
    stamp(a, 2)
    for x in qcvt(1)[8:]: a(x)
    a("s_waitcnt lgkmcnt(8)")
    S = lambda kt, qt: (32 if kt < 2 else 192) + 16*(kt & 1) + 4*qt
    g2 = lambda ds, kt, qt: (lambda: mfma(a, S(kt, qt), KF(kt, ds), QF(ds, qt), "zero" if ds == 0 else None))
    cbits = struct.unpack("<I", struct.pack("<f", math.log2(math.e) / math.sqrt(128.0)))[0]
    vals = [[S(kt, qt) + e for kt in range(4) for e in range(4)] for qt in range(4)]
    M = [240, 242, 244, 246]; SUM = [232, 234, 248, 250]
    def rowmax(qt):
        v = vals[qt]
        return ([f"v_max3_f32 v{M[qt]}, v{v[0]}, v{v[1]}, v{v[2]}"] +
                [f"v_max3_f32 v{M[qt]}, v{M[qt]}, v{v[i]}, v{v[i+1]}" for i in range(3, 15, 2)] +
                [f"v_max_f32 v{M[qt]}, v{M[qt]}, v{v[15]}"])
    weave(a, [g2(ds, kt, qt) for ds in range(2) for kt in range(4) for qt in sn(kt)],
          qcvt(2) + qcvt(3) + av + [f"s_mov_b32 s56, {hex(cbits)}", f"s_mov_b32 s57, {hex(cbits)}", "s_waitcnt lgkmcnt(0)"], per=2)
    for qt in range(4):
        weave(a, [g2(ds, kt, qt) for ds in (2, 3) for kt in range(4)], rowmax(qt-1) if qt else [], per=2, start=4)
    stamp(a, 3)
    m3 = rowmax(3)
    for x in ["s_nop 3"] + m3[:2] + ["s_nop 1"] + m3[2:]: a(x)
    xreduce(a, "v_max_f32", M, f"v_mul_f32 v{M[0]}, s56, v{M[0]}")
    for i in range(0, 16, 2):
        for qt in range(4):
            x = vals[qt][i]
            a(f"v_pk_fma_f32 {vr(x,2)}, {vr(x,2)}, s[56:57], {vr(M[qt],2)} op_sel_hi:[1,1,0] neg_lo:[0,0,1] neg_hi:[0,0,1]")
    for i in range(16):
        for qt in range(4): a(f"v_exp_f32 v{vals[qt][i]}, v{vals[qt][i]}")
    for qt in range(4): a(f"v_pk_add_f32 {vr(SUM[qt],2)}, {vr(vals[qt][0],2)}, {vr(vals[qt][2],2)}")
    for i in range(4, 16, 2):
        for qt in range(4): a(f"v_pk_add_f32 {vr(SUM[qt],2)}, {vr(SUM[qt],2)}, {vr(vals[qt][i],2)}")
    for qt in range(4): a(f"v_add_f32 v{SUM[qt]}, v{SUM[qt]}, v{SUM[qt]+1}")
    xreduce(a, "v_add_f32", SUM, f"v_rcp_f32 v{SUM[0]}, v{SUM[0]}\ns_nop 0")
    PF = lambda ks, qt: 96 + 16*ks + 4*qt
    for i in range(0, 16, 2):
        for qt in range(4):
            x = vals[qt][i]
            a(f"v_pk_mul_f32 {vr(x,2)}, {vr(x,2)}, {vr(SUM[qt],2)} op_sel_hi:[1,0]")
    for ks in range(2):
        for qt in range(4):
            for u in range(2):
                for e in range(2): a(cvt(PF(ks, qt)+2*u+e, S(2*ks+u, qt)+2*e))
    VF = lambda dt, ks: 128 + 16*(dt >> 1) + 8*ks + 4*(dt & 1)
    vrd = [f"ds_read_b64_tr_b16 {vr(VF(dt,ks)+2*j,2)}, v{AW+dt} offset:{ks*8192+j*4096}" for dt in range(8) for ks in range(2) for j in range(2)]
    a("s_barrier")
    for r in vrd[:16]: a(r)
    a("s_waitcnt lgkmcnt(8)")
    OT = lambda dt, qt: (16*dt if dt < 6 else 192 + 16*(dt-6)) + 4*qt
    g3 = lambda p: [lambda ks=ks, dt=dt, qt=qt: mfma(a, OT(dt, qt), VF(dt, ks), PF(ks, qt), "zero" if ks == 0 else None)
                    for ks in range(2) for dt in (2*p, 2*p+1) for qt in sn(dt)]
    OW, OR0, OR1, PV, AOB, AO, FV, ONE = 242, 243, 244, 245, 246, 248, 252, 253
    ad = f"""
    s_lshr_b32 s53, s{S_WAVE}, 1
    s_and_b32 s55, s{S_WAVE}, 1
    v_add_u32 v{OW}, s52, v{L16}
    s_lshl_b32 s55, s55, 11
    v_add_u32 v{OR1}, s55, v{L16}
    v_add_u32 v{OR0}, {VBASE01}, v{OR1}
    s_lshl_b32 s55, s{S_WAVE}, 11
    v_add_u32 v{PV}, s55, v{L16}
    s_lshl_b32 s53, s53, 1
    v_lshl_add_u32 v239, v{ROW4}, 7, v{C8}
    v_bfe_u32 v240, v{ROW4}, 1, 2
    v_xor_b32 v240, s53, v240
    v_lshl_add_u32 v{AOB}, v240, 5, v239
    v_xor_b32 v240, 1, v240
    v_lshl_add_u32 v{AOB+1}, v240, 5, v239
    v_add_u32 v{AO}, {WO_RING}, v{AOB}
    v_add_u32 v{AO+1}, {WO_RING}, v{AOB+1}
    s_lshl_b32 s55, s{S_G}, 12
    s_add_u32 s55, s55, {FLAG_OFF}
    s_add_u32 s16, s{S_WS}, s55
    s_addc_u32 s17, s{S_WS+1}, 0
    s_mov_b32 s18, 0
    s_mov_b32 s19, 0x20000
    s_lshl_b32 s55, s{S_WAVE}, 5
    s_lshl_b32 s53, s{S_HG}, 2
    s_add_u32 s55, s55, s53
    v_lshl_add_u32 v{FV}, v{L16}, 8, s55
    v_mov_b32 v{ONE}, 1
    """.strip().split("\n")
    OF = lambda k4, qt: 128 + 16*k4 + 4*qt
    def ocvt(k4):
        r = []
        for qt in range(4):
            r += [cvt(OF(k4, qt)+2*u+e, OT(2*k4+u, qt)+2*e) for u in range(2) for e in range(2)]
            r.append(f"ds_write_b128 v{OW}, {vr(OF(k4,qt),4)} offset:{(k4*4+qt)*1024}")
        return r
    weave(a, g3(0), [x for p in zip(vrd[16:24], ad[:8]) for x in p] + ad[8:24], per=2)
    a("s_waitcnt lgkmcnt(8)")
    weave(a, g3(1), vrd[24:32] + ad[24:26] + ocvt(0), per=2)
    a("s_waitcnt lgkmcnt(12)")
    weave(a, g3(2), ad[26:] + [None]*6 + ocvt(1), per=2)
    a("s_waitcnt lgkmcnt(8)")
    weave(a, g3(3), ocvt(2), per=2, start=4)
    a("s_nop 6")
    for x in ocvt(3): a(x)
    a("s_waitcnt lgkmcnt(0)\ns_barrier")
    stamp(a, 5)
    ACCA, ACCB, WB, PK = 128, 144, 160, 192
    wread = lambda k4, ni: [f"ds_read_b64_tr_b16 {vr(WB+8*k4+4*ni+2*j,2)}, v{AO+ni} offset:{k4*4096+j*2048}" for j in range(2)]
    oread = lambda h: [f"ds_read_b128 {vr(32*h+8*k4+4*qi,4)}, v{OR0 if h < 2 else OR1} offset:{(h&1)*16384+(k4*4+qi)*1024}" for k4 in range(4) for qi in range(2)]
    for r in oread(0) + oread(1): a(r)
    for k4 in range(4):
        for ni in range(2):
            for r in wread(k4, ni)[:1 if (k4, ni) == (3, 1) else 2]: a(r)
    a(f"""
    s_mov_b32 s54, 0
    s_mov_b32 s55, {WO_RING+16384}
    v_add_u32 v{AO}, s55, v{AOB}
    s_mov_b32 s58, {8*8192}
    s_mov_b32 s59, s{S_HG}
    s_mov_b32 s60, 0
    s_waitcnt lgkmcnt(0)
    """)
    cvts = [cvt(PK+4*qi+2*ni+e, ACCB+8*qi+4*ni+2*e) for qi in range(2) for ni in range(2) for e in range(2)]
    store = lambda qi: f"buffer_store_dwordx4 {vr(PK+4*qi,4)}, v{PV}, s[32:35], s58 offen offset:{qi*1024} sc1"
    flagst = f"buffer_store_dword v{ONE}, v{FV}, s[16:19], s60 offen sc1"
    def block(extra):
        for kq in range(4):
            if kq % 2 == 0: a("s_barrier")
            ex = list(extra[kq])
            sl = ["s_add_u32 s55, s55, 16384", f"s_cmp_eq_u32 s55, {LDS_BYTES}", "s_cselect_b32 s55, 0, s55"]
            ex = ex[:5] + [None]*(5 - len(ex[:5])) + sl + ex[5:] if len(ex) <= 7 else ex + [sl[0] + "\n" + sl[1], sl[2]]
            for k4 in range(4):
                for ni in range(2):
                    for qj in range(2):
                        qi = qj ^ ni; t = 8*qi + 4*ni; g = 4*k4 + 2*ni + qj
                        if kq == 3 and k4 == 3: mfma(a, ACCB+t, WB+8*k4+4*ni, 32*kq+8*k4+4*qi, ACCA+t)
                        else: mfma(a, ACCA+t, WB+8*k4+4*ni, 32*kq+8*k4+4*qi, "zero" if kq == 0 and k4 == 0 else None)
                        if qj == 1: a(wread(k4, ni)[0])
                        else: a(wread(*((k4, 0) if ni == 1 else ((k4 - 1) % 4, 1)))[1])
                        if g % 4 == 3: a("s_waitcnt lgkmcnt(11)")
                        elif g == 0: a(f"v_add_u32 v{AO+1}, s55, v{AOB+1}")
                        elif g == 14: a(f"v_add_u32 v{AO}, s55, v{AOB}")
                        elif ex:
                            x = ex.pop(0)
                            if x: a(x)
            assert not ex, (kq, ex)
    a.c("-- out^T block = Wo^T O^T, K = 512 ; the block before is converted, stored and (one later) flagged underneath")
    block([[x + "\n" + y for x, y in zip(oread(2), oread(3))], [], [], []])
    if opt.al2 >= 0: a.l.append(".p2align 6"); a("s_nop 0\n"*opt.al2)
    a("L_p2_loop:")
    ex = [cvts, [None]*7, [None]*7, [None]*7]
    p = [int(c) for c in opt.st_pos]
    ex[p[0]][p[1]] = store(0)
    ex[p[2]][p[3]] = store(1) + "\ns_waitcnt vmcnt(2)\n" + flagst
    ex[3][0:7] = ["s_lshr_b32 s60, s58, 6", "s_add_u32 s59, s59, 1", "s_and_b32 s59, s59, 7", "s_lshl_b32 s58, s59, 13",
                  "s_mov_b32 s18, 4096", None, "s_add_u32 s54, s54, 1"]
    if opt.lastflag:
        ex[3][5] = f"s_cmp_lg_u32 s54, 7\ns_cbranch_scc1 L_notlast\ns_waitcnt vmcnt(1)\n{flagst}\nL_notlast:"
    block(ex)
    a("s_cmp_lg_u32 s54, 8\ns_cbranch_scc1 L_p2_loop")
    stamp(a, 6)
    a.c("-- flag of the last published block; the own block goes to the loader waves through LDS")
    a(f"""
    {"s_waitcnt vmcnt(1)" if not opt.lastflag else "s_nop 0"}
    {flagst if not opt.lastflag else "s_nop 0"}
    s_lshr_b32 s52, s{S_HG}, 1
    s_lshl_b32 s52, s52, 5
    s_add_u32 s52, s52, 1024
    s_nop 1
    """)
    for x in cvts[:4] + [f"ds_write_b128 v{PV}, {vr(PK,4)} offset:{STAGE}"] + cvts[4:] + [f"ds_write_b128 v{PV}, {vr(PK+4,4)} offset:{STAGE+1024}"]: a(x)
    a(f"s_cmp_eq_u32 s{S_WAVE}, 0\ns_cbranch_scc1 L_last\ns_waitcnt lgkmcnt(0)\ns_barrier")
    if opt.stamps:
        stamp(a, 4); a("s_waitcnt vmcnt(0)"); stamp(a, 7); stamp_flush(a, 8)
    a("s_endpgm")
    a.c("-- wave 0 sums fragment hg of the shared block")
    a("L_last:\ns_waitcnt lgkmcnt(0)")
    poll_issue(a)
    a("s_barrier")
    a(f"s_mov_b32 s47, s52\nv_lshrrev_b32 v30, 4, v{L16}")
    sum_setup(a, 30, S_HG)
    a(f"s_mov_b32 s52, s47\ns_mov_b32 s45, s{S_ROT2}\ns_mov_b32 s44, {8*8192}")
    if opt.stamps: a(f"s_mov_b32 s{S_WAVE}, 8"); stamp(a, 1)
    poll_spin(a, "L_pl", 0xff)
    stamp(a, 2)
    for src in range(8):
        a(f"buffer_load_dwordx4 {vr(80+4*src,4)}, v22, s[36:39], s44 offen sc1")
        if src < 7: a(f"s_add_u32 s44, s44, {PART}")
    for src in range(8):
        a(f"s_waitcnt vmcnt({7-src})")
        acc_in(a, 64, 80+4*src, src == 0)
    if opt.stamps: a("s_waitcnt lgkmcnt(0)")
    put(a, 144, (64,))
    if opt.stamps:
        stamp(a, 3); a("s_branch L_fin")
    a("L_end:\ns_endpgm")

HEAD = """; Two attention blocks (A, B) with cached K/V, outputs concatenated: out[b, q, br*576 + n].
; d_debug[group].
; Kernarg: A_x A_k A_v A_wq A_wo (0..32)  B_x B_k B_v B_wq B_wo (40..72)  out 80  debug 88  ws 96"""

def build():
    main = NAME + "_kernel"
    a = Asm()
    prologue(a); loader(a); compute(a)
    return f"""{HEAD}
; @launch grid=(256,1,1) block=(512,1,1) lds={LDS_BYTES}
.amdgcn_target "amdgcn-amd-amdhsa--gfx950"
.text
.globl {main}
.p2align 8
.type {main},@function
{main}:
{a.text()}
.section .rodata,"a"
.p2align 6
.amdhsa_kernel {main}
  .amdhsa_next_free_vgpr 256
  .amdhsa_next_free_sgpr 102
  .amdhsa_accum_offset 256
  .amdhsa_group_segment_fixed_size 0
  .amdhsa_kernarg_size 104
  .amdhsa_user_sgpr_count 2
  .amdhsa_user_sgpr_kernarg_segment_ptr 1
  .amdhsa_system_sgpr_workgroup_id_x 1
  .amdhsa_float_denorm_mode_32 3
.end_amdhsa_kernel
"""

if __name__ == "__main__":
    for kv in sys.argv[2:]:
        k, v = kv.split("=", 1)
        setattr(opt, k, type(getattr(opt, k))(v))
    open(sys.argv[1], "w").write(build())
```
